```python
import torch

def _softmax(x, axis=-1):
    return torch.softmax(x, dim=axis)
def _gelu(x):
    return torch.nn.functional.gelu(x, approximate="tanh")
def _silu(x):
    return torch.nn.functional.silu(x)
def _sigmoid(x):
    return torch.sigmoid(x)
def _layernorm(x, axis=-1, eps=1e-5):
    m = x.mean(dim=axis, keepdim=True)
    v = x.var(dim=axis, keepdim=True, unbiased=False)
    return (x - m) / torch.sqrt(v + eps)
def _scatter_add(tgt, idx, src, axis=0):
    return tgt.clone().index_add_(axis, idx, src)
def _segment_sum(src, seg, n):
    out = torch.zeros((n,) + src.shape[1:], dtype=src.dtype)
    return out.index_add_(0, seg, src)
def _pad(x, pw):
    flat = tuple(v for pair in reversed(pw) for v in pair)
    return torch.nn.functional.pad(x, flat)

kernel_name = 'interleave_layers__mha_block__glu_gated_reglu__prompt'

def setup_inputs():

    _w = (lambda a: (lambda t: t.to(torch.bfloat16) if t.is_floating_point() else t)(torch.as_tensor(a)))
    def _A_setup():
        B, S, D, H = 1, 2048, 640, 32
        return {
            "x": _w((lambda *s: torch.randn(*s, dtype=torch.bfloat16) * 0.05)(B, S, D)),
            "wqkv": _w((lambda *s: torch.randn(*s, dtype=torch.bfloat16) * 0.05)(D, 3 * D)),
            "wo": _w((lambda *s: torch.randn(*s, dtype=torch.bfloat16) * 0.05)(D, D)),
        }
    _A_in = _A_setup()

    def _B_setup():
        B, S, D, F = 1, 2048, 640, 1728
        return {
            "x": _w((lambda *s: torch.randn(*s, dtype=torch.bfloat16) * 0.05)(B, S, D)),
            "W_gate": _w((lambda *s: torch.randn(*s, dtype=torch.bfloat16) * 0.8)(D, F) * (2.0 / D) ** 0.5),
            "W_up": _w((lambda *s: torch.randn(*s, dtype=torch.bfloat16) * 0.8)(D, F) * (2.0 / D) ** 0.5),
            "W_down": _w((lambda *s: torch.randn(*s, dtype=torch.bfloat16) * 0.8)(F, D) * (1.0 / F) ** 0.5),
        }
    _B_in = _B_setup()

    return {
        "A_x": _A_in["x"],
        "A_wqkv": _A_in["wqkv"],
        "A_wo": _A_in["wo"],
        "B_x": _B_in["x"],
        "B_W_gate": _B_in["W_gate"],
        "B_W_up": _B_in["W_up"],
        "B_W_down": _B_in["W_down"],
    }

def reference(A_x, A_wqkv, A_wo, B_x, B_W_gate, B_W_up, B_W_down):
    def _A_ref(x, wqkv, wo):
        B, S, D = x.shape
        H = 32
        Dh = D // H
        qkv = (lambda x, *d: x.permute(*d))((x @ wqkv).reshape(B, S, 3, H, Dh), 2, 0, 3, 1, 4)
        q, k, v = qkv[0], qkv[1], qkv[2]
        scores = torch.einsum("bhqd,bhkd->bhqk", q, k) * (Dh ** -0.5)
        p = _softmax(scores, axis=-1)
        o = torch.einsum("bhqk,bhkd->bhqd", p, v)
        return (lambda x, *d: x.permute(*d))(o, 0, 2, 1, 3).reshape(B, S, D) @ wo

    def _B_ref(x, W_gate, W_up, W_down):
        gate = torch.einsum("bsd,df->bsf", x, W_gate)
        up = torch.einsum("bsd,df->bsf", x, W_up)
        gate = gate * (lambda x, dt: x.to(dt))(gate > 0, gate.dtype)
        h = gate * up
        return torch.einsum("bsf,fd->bsd", h, W_down)

    x = A_x
    x = x + _A_ref(_layernorm(x, axis=-1), A_wqkv, A_wo)
    x = x + _B_ref(_layernorm(x, axis=-1), B_W_gate, B_W_up, B_W_down)
    x = x + _A_ref(_layernorm(x, axis=-1), A_wqkv, A_wo)
    x = x + _B_ref(_layernorm(x, axis=-1), B_W_gate, B_W_up, B_W_down)
    return x
```

```python
import math, struct, sys

NAME = "interleave_layers__mha_block__glu_gated_reglu__prompt"

WQKV_F = 0x0000000
WGU_F  = 0x0300000
WO_F   = 0x0800000
WD_F   = 0x0900000
XF     = 0x0C00000
STATS  = 0x0F00000
QKVI   = 0x1000000
OF     = 0x1A00000
HF     = 0x1D00000
WS_SIZE = 0x10000000
UNIT = 163840

def f2u(x):
    return struct.unpack("<I", struct.pack("<f", x))[0]

SQRTC = math.sqrt(math.log2(math.e) / math.sqrt(20.0))


class K:
    def __init__(self, name):
        self.name = name
        self.l = []
        self.nlab = 0
    def __call__(self, s):
        for x in s.split("\n"):
            x = x.strip()
            if x:
                self.l.append("    " + x)
    def label(self, s):
        self.l.append(s + ":")
    def newlabel(self, p="L"):
        self.nlab += 1
        return f"{p}_{self.name}_{self.nlab}"
    def nop(self, n):
        while n > 0:
            m = min(n, 16)
            self(f"s_nop {m-1}")
            n -= m
    def text(self, vgpr, sgpr=96):
        acc = (vgpr + 3) // 4 * 4
        kn = self.name + "_kernel"
        t = [".text", f".globl {kn}", ".p2align 8", f".type {kn},@function", f"{kn}:"]
        t += self.l
        d = ['.section .rodata,"a"', ".p2align 6", f".amdhsa_kernel {kn}",
             f"  .amdhsa_next_free_vgpr {vgpr}", f"  .amdhsa_next_free_sgpr {sgpr}",
             f"  .amdhsa_accum_offset {acc}", "  .amdhsa_group_segment_fixed_size 0",
             "  .amdhsa_kernarg_size 80", "  .amdhsa_user_sgpr_count 2",
             "  .amdhsa_user_sgpr_kernarg_segment_ptr 1", "  .amdhsa_system_sgpr_workgroup_id_x 1",
             ".end_amdhsa_kernel"]
        return "\n".join(t + d) + "\n"


def vr(b, n):
    return f"v[{b}:{b+n-1}]" if n > 1 else f"v{b}"

def srd(k, d, base, size):
    k(f"s_mov_b32 s{d}, s{base}")
    k(f"s_mov_b32 s{d+1}, s{base+1}")
    k(f"s_mov_b32 s{d+2}, {size:#x}")
    k(f"s_mov_b32 s{d+3}, 0x00020000")


def gen_prep():
    k = K("prep")
    NW_UNITS = 60 + 112 + 20 + 55
    NWG = NW_UNITS + 64
    L_end = "L_prep_end"
    k(f"s_cmp_ge_u32 s2, {NWG}")
    k(f"s_cbranch_scc1 {L_end}")
    k("s_load_dwordx4 s[24:27], s[0:1], 0")
    k("s_load_dwordx2 s[28:29], s[0:1], 16")
    k("s_load_dwordx4 s[32:35], s[0:1], 32")
    k("s_load_dwordx2 s[36:37], s[0:1], 48")
    k("s_load_dwordx2 s[4:5], s[0:1], 72")
    k("v_and_b32 v1, 63, v0")
    k("v_lshrrev_b32 v2, 6, v0")
    k("s_nop 0")
    k("v_readfirstlane_b32 s12, v2")
    k("s_mov_b32 s40, 0x05040100")
    k("s_mov_b32 s41, 0x07060302")
    k("s_waitcnt lgkmcnt(0)")
    srd(k, 8, 4, WS_SIZE)
    k("s_cmp_ge_u32 s2, 60")
    k("s_cbranch_scc0 L_prep_qkv")
    k("s_cmp_ge_u32 s2, 172")
    k("s_cbranch_scc0 L_prep_gu")
    k("s_cmp_ge_u32 s2, 192")
    k("s_cbranch_scc0 L_prep_wo")
    k(f"s_cmp_ge_u32 s2, {NW_UNITS}")
    k("s_cbranch_scc0 L_prep_wd")
    k("s_branch L_prep_x")

    def body(kind, RS, colsum):
        k("s_mul_i32 s14, s13, 20")
        k("s_mul_i32 s15, s12, 5")
        k("s_add_u32 s14, s14, s15")
        k("s_mov_b64 exec, s[20:21]")
        for i in range(5):
            k(f"s_add_u32 s42, s14, {i}")
            if kind == "wd":
                k("s_min_u32 s42, s42, 215")
            if kind == "nat":
                k("s_lshl_b32 s43, s42, 3")
                k("s_add_u32 s44, s43, 4")
            elif kind == "wd":
                k("s_lshr_b32 s43, s42, 1")
                k("s_lshl_b32 s43, s43, 4")
                k("s_and_b32 s44, s42, 1")
                k("s_lshl_b32 s44, s44, 2")
                k("s_add_u32 s43, s43, s44")
                k("s_add_u32 s44, s43, 8")
            elif kind == "wo":
                k("s_lshr_b32 s43, s42, 1")
                k("s_mul_i32 s43, s43, 20")
                k("s_and_b32 s44, s42, 1")
                k("s_lshl_b32 s44, s44, 2")
                k("s_add_u32 s43, s43, s44")
                k("s_add_u32 s44, s43, 8")
                k("s_sub_u32 s45, s42, 64")
                k("s_mul_i32 s45, s45, 40")
                k("s_add_u32 s45, s45, 16")
                k("s_add_u32 s46, s45, 20")
                k("s_cmp_ge_u32 s42, 64")
                k("s_cselect_b32 s43, s45, s43")
                k("s_cselect_b32 s44, s46, s44")
            k(f"s_mul_i32 s43, s43, {RS}")
            k(f"s_mul_i32 s44, s44, {RS}")
            for j in range(8):
                sreg = "s43" if j < 4 else "s44"
                k(f"buffer_load_dword v{16+8*i+j}, v3, s[16:19], {sreg} offen")
                if j not in (3, 7):
                    k(f"s_add_u32 {sreg}, {sreg}, {RS}")
        if colsum:
            k("v_mov_b32 v8, 0")
            k("v_mov_b32 v9, 0")
        psz = 512 if kind == "nat" else 256
        k(f"s_mul_i32 s47, s14, {psz}")
        k("s_waitcnt vmcnt(0)")
        for i in range(5):
            a = 16 + 8 * i
            o = 64 + 8 * i
            for j in range(4):
                k(f"v_perm_b32 v{o+j}, v{a+2*j+1}, v{a+2*j}, s40")
                k(f"v_perm_b32 v{o+4+j}, v{a+2*j+1}, v{a+2*j}, s41")
            if kind == "wd":
                k(f"s_add_u32 s42, s14, {i}")
                k("s_cmp_ge_u32 s42, 216")
                k(f"s_cbranch_scc1 {L_end}")
            so = "s47"
            k(f"buffer_store_dwordx4 {vr(o,4)}, v4, s[8:11], {so} offen offset:{i*psz}")
            k(f"buffer_store_dwordx4 {vr(o+4,4)}, v4, s[8:11], {so} offen offset:{i*psz+16}")
        k("s_mov_b64 exec, -1")
        if colsum:
            for r in range(40):
                k(f"v_lshlrev_b32 v10, 16, v{16+r}")
                k(f"v_and_b32 v11, 0xffff0000, v{16+r}")
                k("v_add_f32 v8, v8, v10")
                k("v_add_f32 v9, v9, v11")
            k("v_lshlrev_b32 v10, 3, v0")
            k("ds_write_b64 v10, v[8:9]")
            k("s_waitcnt lgkmcnt(0)")
            k("s_barrier")
            k("s_cmp_lg_u32 s12, 0")
            k(f"s_cbranch_scc1 {L_end}")
            k("ds_read_b64 v[12:13], v10 offset:512")
            k("ds_read_b64 v[14:15], v10 offset:1024")
            k("ds_read_b64 v[16:17], v10 offset:1536")
            k("s_waitcnt lgkmcnt(0)")
            for b in (12, 14, 16):
                k(f"v_add_f32 v8, v8, v{b}")
                k(f"v_add_f32 v9, v9, v{b+1}")
            for (c, d) in ((8, 20), (9, 22)):
                k(f"v_cvt_pk_bf16_f32 v18, v{c}, v{c}")
                k("v_and_b32 v18, 0xffff0000, v18")
                k(f"v_sub_f32 v18, v{c}, v18")
                k(f"v_cvt_pk_bf16_f32 v{d}, v{c}, v18")
                k(f"v_mov_b32 v{d+1}, v{d}")
            k("s_lshr_b32 s42, s13, 1")
            k("s_lshl_b32 s42, s42, 9")
            k("s_and_b32 s43, s13, 1")
            k("s_lshl_b32 s43, s43, 3")
            k("s_add_u32 s42, s42, s43")
            k(f"s_add_u32 s42, s42, {40*1024}")
            k("s_mov_b64 exec, s[20:21]")
            k("buffer_store_dwordx2 v[20:21], v4, s[8:11], s42 offen")
            k("buffer_store_dwordx2 v[22:23], v4, s[8:11], s42 offen offset:16")
        k("s_endpgm")

    k.label("L_prep_qkv")
    srd(k, 16, 26, 640 * 3840)
    k("s_mov_b64 s[20:21], -1")
    k("s_and_b32 s13, s2, 3")
    k("s_lshr_b32 s22, s2, 2")
    k("s_lshl_b32 s22, s22, 7")
    k("v_lshlrev_b32 v5, 1, v1")
    k("v_add_u32 v5, s22, v5")
    k("v_lshlrev_b32 v3, 1, v5")
    k("v_mul_u32_u24 v6, 3277, v5")
    k("v_lshrrev_b32 v6, 16, v6")
    k("v_mul_u32_u24 v7, 20, v6")
    k("v_sub_u32 v7, v5, v7")
    k("v_mul_u32_u24 v8, 43, v6")
    k("v_lshrrev_b32 v8, 8, v8")
    k("v_mul_u32_u24 v9, 6, v8")
    k("v_sub_u32 v9, v6, v9")
    k("v_lshrrev_b32 v10, 1, v9")
    k("v_and_b32 v11, 1, v9")
    k("v_lshlrev_b32 v12, 4, v11")
    k("v_and_b32 v13, 4, v7")
    k("v_lshlrev_b32 v13, 1, v13")
    k("v_add_u32 v12, v12, v13")
    k("v_and_b32 v13, 8, v7")
    k("v_lshrrev_b32 v13, 1, v13")
    k("v_add_u32 v12, v12, v13")
    k("v_and_b32 v13, 3, v7")
    k("v_add_u32 v12, v12, v13")
    k("v_lshlrev_b32 v14, 3, v10")
    k("v_lshlrev_b32 v15, 2, v11")
    k("v_add3_u32 v14, v14, v15, v13")
    k("v_cmp_le_u32 s[42:43], 16, v7")
    k("s_nop 1")
    k("v_cndmask_b32 v12, v12, v14, s[42:43]")
    k("v_cndmask_b32 v10, v10, 3, s[42:43]")
    k("v_lshl_add_u32 v10, v8, 2, v10")
    k("v_lshrrev_b32 v14, 5, v5")
    k("v_add_u32 v14, 4, v14")
    k("v_and_b32 v15, 31, v5")
    k("s_movk_i32 s42, 1280")
    k("v_cmp_le_u32 s[42:43], s42, v5")
    k("s_nop 1")
    k("v_cndmask_b32 v10, v10, v14, s[42:43]")
    k("v_cndmask_b32 v12, v12, v15, s[42:43]")
    k("v_mul_u32_u24 v4, 41984, v10")
    k("v_lshl_add_u32 v4, v12, 4, v4")
    if WQKV_F:
        k(f"v_add_u32 v4, {WQKV_F:#x}, v4")
    body("nat", 3840, True)

    k.label("L_prep_gu")
    k("s_sub_u32 s22, s2, 60")
    k("s_and_b32 s13, s22, 3")
    k("s_lshr_b32 s22, s22, 2")
    k("s_cmp_ge_u32 s22, 14")
    k("s_cselect_b32 s16, s34, s32")
    k("s_cselect_b32 s17, s35, s33")
    k("s_cselect_b32 s23, 256, 0")
    k("s_cselect_b32 s42, 14, 0")
    k("s_sub_u32 s22, s22, s42")
    k(f"s_mov_b32 s18, {640*3456}")
    k("s_mov_b32 s19, 0x00020000")
    k("s_lshl_b32 s22, s22, 7")
    k("v_lshlrev_b32 v5, 1, v1")
    k("v_add_u32 v5, s22, v5")
    k("v_lshlrev_b32 v3, 1, v5")
    k("s_movk_i32 s42, 1728")
    k("v_cmp_gt_u32 s[20:21], s42, v5")
    k("v_lshrrev_b32 v6, 4, v5")
    k("v_mul_u32_u24 v4, 41984, v6")
    k("v_and_b32 v6, 15, v5")
    k("v_lshl_add_u32 v4, v6, 4, v4")
    k(f"s_add_u32 s23, s23, {WGU_F:#x}")
    k("v_add_u32 v4, s23, v4")
    body("nat", 3456, True)

    for (lab, base_id, ptr, rows, kind, bstride, dst) in (
            ("L_prep_wo", 172, 28, 640, "wo", 20480, WO_F),
            ("L_prep_wd", 192, 36, 1728, "wd", 55296, WD_F)):
        k.label(lab)
        srd(k, 16, ptr, rows * 1280)
        k("s_mov_b64 s[20:21], -1")
        k(f"s_sub_u32 s22, s2, {base_id}")
        k("s_mul_i32 s13, s22, 52")
        k("s_lshr_b32 s13, s13, 8")
        k("s_mul_i32 s42, s13, 5")
        k("s_sub_u32 s22, s22, s42")
        k("s_lshl_b32 s22, s22, 7")
        k("v_lshlrev_b32 v5, 1, v1")
        k("v_add_u32 v5, s22, v5")
        k("v_lshlrev_b32 v3, 1, v5")
        k("v_lshrrev_b32 v6, 4, v5")
        k(f"v_mul_u32_u24 v4, {bstride}, v6")
        k("v_and_b32 v6, 15, v5")
        k("v_lshl_add_u32 v4, v6, 4, v4")
        k(f"v_add_u32 v4, {dst:#x}, v4")
        body(kind, 1280, False)

    k.label("L_prep_x")
    srd(k, 16, 24, 2048 * 1280)
    k(f"s_sub_u32 s22, s2, {NW_UNITS}")
    k("s_lshl_b32 s23, s12, 3")
    k("v_lshrrev_b32 v5, 3, v1")
    k("v_add_u32 v5, s23, v5")
    k("v_and_b32 v6, 7, v1")
    k("v_mul_u32_u24 v3, 1280, v5")
    k("v_lshl_add_u32 v3, v6, 4, v3")
    k(f"s_mul_i32 s42, s22, {32*1280}")
    for i in range(10):
        k(f"buffer_load_dwordx4 {vr(16+4*i,4)}, v3, s[16:19], s42 offen offset:{128*i}")
    k("v_lshlrev_b32 v4, 9, v6")
    k("v_lshl_add_u32 v4, v5, 4, v4")
    k(f"s_add_u32 s43, s42, {XF:#x}")
    k("v_mov_b32 v8, 0")
    k("v_mov_b32 v9, 0")
    k("s_waitcnt vmcnt(0)")
    for i in range(10):
        k(f"buffer_store_dwordx4 {vr(16+4*i,4)}, v4, s[8:11], s43 offen")
        k("s_add_u32 s43, s43, 4096")
    for r in range(40):
        k(f"v_lshlrev_b32 v10, 16, v{16+r}")
        k(f"v_and_b32 v11, 0xffff0000, v{16+r}")
        k("v_add_f32 v8, v8, v10")
        k("v_fmac_f32 v9, v10, v10")
        k("v_add_f32 v8, v8, v11")
        k("v_fmac_f32 v9, v11, v11")
    k("v_lshlrev_b32 v4, 14, v6")
    k("v_lshl_add_u32 v4, v5, 3, v4")
    k("s_lshl_b32 s43, s22, 8")
    k(f"s_add_u32 s43, s43, {STATS:#x}")
    k("buffer_store_dwordx2 v[8:9], v4, s[8:11], s43 offen")
    k.label(L_end)
    k("s_endpgm")
    return k.text(104, 56), NWG


def gen_gemm(name, kind):
    k = K(name)
    big = kind in ("qkv", "gu")
    NB = {"qkv": 4, "gu": 7, "wo": 5, "down": 5, "downf": 5}[kind]
    nsteps = {"qkv": 40, "gu": 40, "wo": 20, "down": 54, "downf": 54}[kind]
    R = {"qkv": 5, "gu": 3, "wo": 4, "down": 4, "downf": 4}[kind]
    XSRC = {"qkv": XF, "gu": XF, "wo": OF, "down": HF, "downf": HF}[kind]
    WSRC = {"qkv": WQKV_F, "gu": WGU_F, "wo": WO_F, "down": WD_F, "downf": WD_F}[kind]
    XS = nsteps * 1024
    WS = (nsteps + 1) * 1024 if big else nsteps * 1024
    NF = 4 + NB
    STEP = NF * 1024
    STAGE = 4 * STEP
    nst = (nsteps + 3) // 4
    tail = nsteps - 4 * (nst - 1)
    AR = 16 if big else 4
    MF = "v_mfma_f32_32x32x16_bf16" if big else "v_mfma_f32_16x16x32_bf16"
    L_end = f"L_{name}_end"
    L_load = f"L_{name}_load"

    k("s_cmp_ge_u32 s2, 256")
    k(f"s_cbranch_scc1 {L_end}")
    k("s_load_dwordx2 s[4:5], s[0:1], 72")
    if kind == "downf":
        k("s_load_dwordx2 s[6:7], s[0:1], 56")
    k("v_and_b32 v1, 63, v0")
    k("v_lshrrev_b32 v2, 6, v0")
    k("s_and_b32 s15, s2, 7")
    k("v_readfirstlane_b32 s12, v2")
    if big:
        k("s_lshl_b32 s13, s15, 1")
        k("s_bfe_u32 s15, s2, 0x10003")
        k("s_add_u32 s13, s13, s15")
        k("s_lshr_b32 s14, s2, 4")
    else:
        k("s_lshl_b32 s13, s15, 2")
        k("s_bfe_u32 s15, s2, 0x20003")
        k("s_add_u32 s13, s13, s15")
        k("s_lshr_b32 s14, s2, 5")
    k("v_lshlrev_b32 v3, 4, v1")
    k("s_waitcnt lgkmcnt(0)")
    srd(k, 8, 4, WS_SIZE)
    k("s_cmp_ge_u32 s12, 4")
    k(f"s_cbranch_scc1 {L_load}")

    ACC = 16
    FB = ACC + NB * AR
    FSZ = (1 + NB) * 4
    def XB(b): return FB + b * FSZ
    def WB(b, j): return FB + b * FSZ + 4 + 4 * j
    TOP = FB + 2 * FSZ
    def acc(j): return vr(ACC + j * AR, AR)
    k("s_lshl_b32 s16, s12, 10")
    k("v_add_u32 v4, s16, v3")

    variants = ["qk", "v"] if kind == "qkv" else [kind]

    if big:
        T = XB(0)
        k("v_and_b32 v7, 31, v1")
        k("v_lshrrev_b32 v8, 5, v1")
        k("v_lshlrev_b32 v9, 16, v8")
        k("v_lshl_add_u32 v9, v7, 3, v9")
        k("s_lshl_b32 s16, s13, 2")
        k("s_add_u32 s16, s16, s12")
        k("s_lshl_b32 s17, s16, 8")
        k(f"s_add_u32 s17, s17, {STATS:#x}")
        for i in range(4):
            k(f"buffer_load_dwordx2 {vr(T+2*i,2)}, v9, s[8:11], s17 offen")
            if i < 3:
                k("s_add_u32 s17, s17, 16384")
        k(f"s_mul_i32 s17, s14, {NB*WS}")
        k(f"s_add_u32 s17, s17, {WSRC + nsteps*1024:#x}")
        for j in range(NB):
            k(f"buffer_load_dwordx4 {vr(WB(1,j),4)}, v3, s[8:11], s17 offen")
            if j < NB - 1:
                k(f"s_add_u32 s17, s17, {WS}")
        k(f"s_waitcnt vmcnt({NB})")
        for i in range(1, 4):
            k(f"v_add_f32 v{T}, v{T}, v{T+2*i}")
            k(f"v_add_f32 v{T+1}, v{T+1}, v{T+2*i+1}")
        k(f"v_mov_b32 v{T+2}, v{T}")
        k(f"v_mov_b32 v{T+3}, v{T+1}")
        k("s_nop 1")
        k(f"v_permlane32_swap_b32 v{T}, v{T+2}")
        k(f"v_permlane32_swap_b32 v{T+1}, v{T+3}")
        k("s_nop 1")
        k(f"v_add_f32 v{T}, v{T}, v{T+2}")
        k(f"v_add_f32 v{T+1}, v{T+1}, v{T+3}")
        k(f"v_mul_f32 v{T}, {f2u(-1.0/640):#x}, v{T}")
        k(f"v_mul_f32 v{T+1}, {f2u(1.0/640):#x}, v{T+1}")
        k(f"v_fma_f32 v{T+1}, -v{T}, v{T}, v{T+1}")
        k(f"v_max_f32 v{T+1}, 0, v{T+1}")
        k(f"v_add_f32 v{T+1}, {f2u(1e-5):#x}, v{T+1}")
        k(f"v_rsq_f32 v10, v{T+1}")
        E = XB(1)
        k(f"v_cvt_pk_bf16_f32 v{E}, v{T}, v{T}")
        k(f"v_and_b32 v{T+2}, 0xffff0000, v{E}")
        k(f"v_sub_f32 v{T+2}, v{T}, v{T+2}")
        k(f"v_cvt_pk_bf16_f32 v{E+1}, v{T+2}, v{T+2}")
        k(f"v_mov_b32 v{E+2}, v{E}")
        k(f"v_mov_b32 v{E+3}, v{E+1}")
        k("s_waitcnt vmcnt(0)")
        if kind == "qkv":
            k("s_cmp_ge_u32 s14, 11")
            k(f"s_cbranch_scc1 L_{name}_v")
    else:
        k("v_and_b32 v7, 15, v1")
        k("v_lshrrev_b32 v8, 4, v1")
        k("v_lshrrev_b32 v9, 1, v8")
        k("v_lshlrev_b32 v9, 9, v9")
        k("v_lshl_add_u32 v9, v7, 4, v9")
        k("v_and_b32 v10, 1, v8")
        k("v_lshl_add_u32 v9, v10, 3, v9")
        k("s_lshl_b32 s16, s13, 2")
        k("s_add_u32 s16, s16, s12")
        k("s_lshr_b32 s17, s16, 1")
        k("s_mul_i32 s17, s17, 40960")
        k("s_and_b32 s18, s16, 1")
        k("s_lshl_b32 s18, s18, 8")
        k("s_add_u32 s17, s17, s18")
        k("s_mul_i32 s18, s14, 5120")
        k("s_add_u32 s17, s17, s18")
        k(f"s_add_u32 s17, s17, {XF:#x}")
        k("s_add_u32 s18, s17, 4096")
        T = XB(1)
        for j in range(NB):
            so, off = ("s17", j * 1024) if j < 4 else ("s18", 0)
            k(f"buffer_load_dwordx2 {vr(T+2*j,2)}, v9, s[8:11], {so} offen offset:{off}")
        k("s_waitcnt vmcnt(0)")
        for j in range(NB):
            for d in range(2):
                k(f"v_lshlrev_b32 v{ACC+4*j+2*d}, 16, v{T+2*j+d}")
                k(f"v_and_b32 v{ACC+4*j+2*d+1}, 0xffff0000, v{T+2*j+d}")

    for var in variants:
        if var == "v":
            k.label(f"L_{name}_v")
        swap = var != "v"
        def mfma(j, b, c=None):
            a_, b_ = (vr(WB(b, j), 4), vr(XB(b), 4)) if swap else (vr(XB(b), 4), vr(WB(b, j), 4))
            k(f"{MF} {acc(j)}, {a_}, {b_}, {c if c is not None else acc(j)}")
        if big:
            k("s_nop 0")
            for j in range(NB):
                mfma(j, 1, "0")
        def reads(b, st):
            r = [f"ds_read_b128 {vr(XB(b),4)}, v5 offset:{st*STEP}"]
            r += [f"ds_read_b128 {vr(WB(b,j),4)}, v6 offset:{st*STEP+4096+1024*j}" for j in range(NB)]
            return r
        def step(b, rd):
            rd = list(rd)
            for j in range(NB):
                mfma(j, b)
                for _ in range(2):
                    if rd:
                        k(rd.pop(0))
            for x in rd:
                k(x)
        k("v_mov_b32 v5, v4")
        k("v_mov_b32 v6, v3")
        k("s_mov_b32 s20, 0")
        k(f"s_mov_b32 s21, {nst-1}")
        k("s_barrier")
        for x in reads(0, 0):
            k(x)
        L = f"L_{name}_{var}_loop"
        k.label(L)
        for j in range(4):
            if j == 3:
                k(f"s_add_u32 s20, s20, {STAGE}")
                k(f"s_cmp_eq_u32 s20, {R*STAGE}")
                k("s_cselect_b32 s20, 0, s20")
                k("v_add_u32 v5, s20, v4")
                k("v_add_u32 v6, s20, v3")
            k("s_waitcnt lgkmcnt(0)")
            if j == 3:
                k("s_barrier")
            step(j & 1, reads((j + 1) & 1, (j + 1) & 3))
        k("s_sub_u32 s21, s21, 1")
        k("s_cmp_lg_u32 s21, 0")
        k(f"s_cbranch_scc1 {L}")
        for j in range(tail):
            k("s_waitcnt lgkmcnt(0)")
            step(j & 1, reads((j + 1) & 1, j + 1) if j < tail - 1 else [])
        k("s_barrier")
        if var == "qk":
            k(f"v_mul_f32 v10, {f2u(SQRTC):#x}, v10")
            k("s_mul_i32 s17, s14, 6")
            k(f"s_mul_i32 s18, s17, {UNIT}")
            k("s_mul_i32 s19, s13, 10240")
            k("s_add_u32 s18, s18, s19")
            k(f"s_add_u32 s18, s18, {QKVI:#x}")
            k("s_lshl_b32 s19, s12, 10")
            k("s_add_u32 s22, s18, s19")
            k("s_lshl_b32 s19, s12, 8")
            k("s_add_u32 s23, s18, s19")
            k("s_add_u32 s23, s23, 4096")
            k(f"v_mul_u32_u24 v9, {UNIT}, v8")
            k("v_lshl_add_u32 v9, v7, 3, v9")
            k.nop(4)
            for j in range(NB):
                a = ACC + 16 * j
                o = FB + 8 * (j & 1) + 16 * (j >> 1)
                for i in range(16):
                    k(f"v_mul_f32 v{a+i}, v10, v{a+i}")
                for i in range(8):
                    k(f"v_cvt_pk_bf16_f32 v{o+i}, v{a+2*i}, v{a+2*i+1}")
                if j < 3:
                    if j == 2:
                        k("s_cmp_eq_u32 s14, 10")
                        k(f"s_cbranch_scc1 L_{name}_skip2")
                    for u in range(2):
                        k(f"buffer_store_dwordx4 {vr(o+4*u,4)}, v3, s[8:11], s22 offen")
                        k(f"s_add_u32 s22, s22, {UNIT}")
                    if j == 2:
                        k.label(f"L_{name}_skip2")
                else:
                    for q in range(3):
                        if q == 2:
                            k("s_cmp_eq_u32 s14, 10")
                            k(f"s_cbranch_scc1 {L_end}")
                        k(f"buffer_store_dwordx2 {vr(o+2*q,2)}, v9, s[8:11], s23 offen")
                        k(f"s_add_u32 s23, s23, {2*UNIT}")
            k("s_endpgm")
        elif var == "v":
            k("v_lshlrev_b32 v9, 2, v7")
            k("s_lshl_b32 s19, s12, 7")
            k("v_add_u32 v9, s19, v9")
            k("ds_write_b32 v9, v10")
            k("v_lshlrev_b32 v9, 4, v8")
            k("v_add_u32 v9, s19, v9")
            k("s_waitcnt lgkmcnt(0)")
            RS = FB
            for q in range(4):
                k(f"ds_read_b128 {vr(RS+4*q,4)}, v9 offset:{32*q}")
            k("s_mul_i32 s18, s13, 10240")
            k("s_mul_i32 s19, s12, 1280")
            k("s_add_u32 s18, s18, s19")
            k(f"s_add_u32 s18, s18, {QKVI + 32*UNIT + 5120:#x}")
            k("s_sub_u32 s19, s14, 11")
            k("s_lshl_b32 s19, s19, 7")
            k("v_mul_u32_u24 v11, 320, v8")
            k("s_waitcnt lgkmcnt(0)")
            for j in range(NB):
                a = ACC + 16 * j
                o = FB + 16 + 8 * (j & 1)
                k(f"v_add_u32 v12, s19, v7")
                k("v_mul_u32_u24 v13, 3277, v12")
                k("v_lshrrev_b32 v13, 16, v13")
                k("v_mul_u32_u24 v14, 20, v13")
                k("v_sub_u32 v14, v12, v14")
                k(f"v_mul_u32_u24 v13, {UNIT}, v13")
                k("v_lshl_add_u32 v13, v14, 4, v13")
                k("v_add_u32 v13, v13, v11")
                for i in range(16):
                    k(f"v_mul_f32 v{a+i}, v{RS+i}, v{a+i}")
                for i in range(8):
                    k(f"v_cvt_pk_bf16_f32 v{o+i}, v{a+2*i}, v{a+2*i+1}")
                k(f"buffer_store_dwordx4 {vr(o,4)}, v13, s[8:11], s18 offen")
                k(f"buffer_store_dwordx4 {vr(o+4,4)}, v13, s[8:11], s18 offen offset:640")
                k("s_add_u32 s19, s19, 32")
            k("s_endpgm")
        elif var == "gu":
            k("v_mul_f32 v10, v10, v10")
            k("v_lshrrev_b32 v9, 4, v7")
            k("v_mul_u32_u24 v9, 55296, v9")
            k("v_and_b32 v11, 15, v7")
            k("v_lshl_add_u32 v9, v11, 4, v9")
            k("v_lshl_add_u32 v9, v8, 8, v9")
            k(f"s_mul_i32 s18, s16, {2*55296}")
            k(f"s_mul_i32 s19, s14, {7*512}")
            k("s_add_u32 s18, s18, s19")
            k(f"s_add_u32 s18, s18, {HF:#x}")
            k.nop(4)
            for j in range(NB):
                a = ACC + 16 * j
                o = FB + 4 * j
                for i in range(8):
                    k(f"v_max_f32 v{a+i}, 0, v{a+i}")
                    k(f"v_mul_f32 v{a+8+i}, v10, v{a+8+i}")
                for i in range(8):
                    k(f"v_mul_f32 v{a+i}, v{a+i}, v{a+8+i}")
                for i in range(4):
                    k(f"v_cvt_pk_bf16_f32 v{o+i}, v{a+2*i}, v{a+2*i+1}")
                k(f"buffer_store_dwordx4 {vr(o,4)}, v9, s[8:11], s18 offen offset:{512*j}")
                if j == 2:
                    k("s_cmp_eq_u32 s14, 15")
                    k(f"s_cbranch_scc1 {L_end}")
            k("s_endpgm")
        else:
            k.nop(8)
            O = FB
            for j in range(NB):
                for d in range(2):
                    k(f"v_cvt_pk_bf16_f32 v{O+2*j+d}, v{ACC+4*j+2*d}, v{ACC+4*j+2*d+1}")
            if kind == "downf":
                srd(k, 24, 6, 2048 * 1280)
                k("v_mul_u32_u24 v9, 1280, v7")
                k("v_lshl_add_u32 v9, v8, 3, v9")
                k(f"s_mul_i32 s17, s16, {16*1280}")
                k("s_mul_i32 s18, s14, 160")
                k("s_add_u32 s17, s17, s18")
                for j in range(NB):
                    k(f"buffer_store_dwordx2 {vr(O+2*j,2)}, v9, s[24:27], s17 offen offset:{32*j}")
            else:
                for j in range(NB):
                    so, off = ("s17", j * 1024) if j < 4 else ("s18", 0)
                    k(f"buffer_store_dwordx2 {vr(O+2*j,2)}, v9, s[8:11], {so} offen offset:{off}")
                k(f"v_mov_b32 v12, v{ACC}")
                k(f"v_mul_f32 v13, v{ACC}, v{ACC}")
                for i in range(1, 20):
                    k(f"v_add_f32 v12, v12, v{ACC+i}")
                    k(f"v_fmac_f32 v13, v{ACC+i}, v{ACC+i}")
                for sw in ("v_permlane32_swap_b32", "v_permlane16_swap_b32"):
                    k("v_mov_b32 v14, v12")
                    k("v_mov_b32 v15, v13")
                    k("s_nop 1")
                    k(f"{sw} v12, v14")
                    k(f"{sw} v13, v15")
                    k("s_nop 1")
                    k("v_add_f32 v12, v12, v14")
                    k("v_add_f32 v13, v13, v15")
                k("v_lshlrev_b32 v11, 3, v7")
                k("s_lshl_b32 s19, s14, 14")
                k("s_lshl_b32 s22, s16, 7")
                k("s_add_u32 s19, s19, s22")
                k(f"s_add_u32 s19, s19, {STATS:#x}")
                k("s_mov_b64 exec, 0xffff")
                k("buffer_store_dwordx2 v[12:13], v11, s[8:11], s19 offen")
            k("s_endpgm")

    k.label(L_load)
    k("s_sub_u32 s12, s12, 4")
    k("s_lshl_b32 s16, s12, 10")
    k(f"s_mul_i32 s17, s13, {4*XS}")
    k("s_add_u32 s17, s17, s16")
    k(f"s_add_u32 s17, s17, {XSRC:#x}")
    k(f"s_mul_i32 s18, s14, {NB*WS}")
    k("s_add_u32 s18, s18, s16")
    k(f"s_add_u32 s18, s18, {WSRC:#x}")
    for f in range(NF):
        k(f"v_add_u32 v{8+f}, {'s17' if f < 4 else 's18'}, v3")
        if f < 4:
            k(f"s_add_u32 s17, s17, {XS}")
        else:
            k(f"s_add_u32 s18, s18, {WS}")
    k(f"s_mul_i32 s22, s12, {STEP}")
    k("s_mov_b32 s20, 0")
    k("s_mov_b32 s23, 0")
    def issue(last):
        lab = None
        if last and tail < 4:
            lab = k.newlabel()
            k(f"s_cmp_ge_u32 s12, {tail}")
            k(f"s_cbranch_scc1 {lab}")
        k("s_add_u32 m0, s20, s22")
        for f in range(NF):
            k("s_nop 0")
            k(f"buffer_load_dwordx4 v{8+f}, s[8:11], s23 offen lds")
            if f < NF - 1:
                k("s_add_u32 m0, m0, 1024")
        if lab:
            k.label(lab)
        k("s_add_u32 s23, s23, 4096")
        k(f"s_add_u32 s20, s20, {STAGE}")
        k(f"s_cmp_eq_u32 s20, {R*STAGE}")
        k("s_cselect_b32 s20, 0, s20")
    Lp = k.newlabel()
    k(f"s_mov_b32 s21, {R}")
    k.label(Lp)
    issue(False)
    k("s_sub_u32 s21, s21, 1")
    k("s_cmp_lg_u32 s21, 0")
    k(f"s_cbranch_scc1 {Lp}")
    k(f"s_waitcnt vmcnt({(R-1)*NF})")
    k("s_barrier")
    nsteady = nst - R
    assert nsteady >= 1
    if nsteady > 1:
        Ls = k.newlabel()
        k(f"s_mov_b32 s21, {nsteady-1}")
        k.label(Ls)
        k(f"s_waitcnt vmcnt({(R-2)*NF})")
        k("s_barrier")
        issue(False)
        k("s_sub_u32 s21, s21, 1")
        k("s_cmp_lg_u32 s21, 0")
        k(f"s_cbranch_scc1 {Ls}")
    k(f"s_waitcnt vmcnt({(R-2)*NF})")
    k("s_barrier")
    issue(True)
    for s in range(nst - R + 1, nst):
        n = nst - 1 - s
        if tail < 4 and n > 0:
            n -= 1
        k(f"s_waitcnt vmcnt({n*NF})")
        k("s_barrier")
    k("s_barrier")
    k.label(L_end)
    k("s_endpgm")
    return k.text(max(TOP, 48)), R * STAGE


def gen_attn():
    k = K("attn")
    L_end = "L_attn_end"
    M16 = "v_mfma_f32_32x32x16_bf16"
    M8 = "v_mfma_f32_32x32x8_bf16"
    QL, QH = 8, 12
    S = [16, 32]
    O = 48
    NM = 64
    P = 80
    KL = [88, 94]
    V = [100, 108]
    TOP = 116
    k("s_cmp_ge_u32 s2, 256")
    k(f"s_cbranch_scc1 {L_end}")
    k("s_load_dwordx2 s[4:5], s[0:1], 72")
    k("v_and_b32 v1, 63, v0")
    k("v_lshrrev_b32 v2, 6, v0")
    k("s_and_b32 s13, s2, 7")
    k("v_readfirstlane_b32 s12, v2")
    k("s_lshl_b32 s13, s13, 2")
    k("s_bfe_u32 s14, s2, 0x20003")
    k("s_add_u32 s13, s13, s14")
    k("s_lshr_b32 s14, s2, 5")
    k("v_lshlrev_b32 v3, 4, v1")
    k("v_and_b32 v6, 31, v1")
    k("v_lshrrev_b32 v7, 5, v1")
    k("v_lshlrev_b32 v4, 3, v6")
    k("v_mul_u32_u24 v5, 320, v7")
    k("v_lshl_add_u32 v5, v6, 4, v5")
    k(f"v_mov_b32 v{QH}, 0")
    k(f"v_mov_b32 v{QH+1}, 0")
    k(f"s_mul_i32 s16, s13, {UNIT}")
    k("s_lshl_b32 s17, s14, 1")
    k("s_lshr_b32 s18, s12, 2")
    k("s_add_u32 s17, s17, s18")
    k("s_mul_i32 s17, s17, 10240")
    k("s_add_u32 s17, s17, s16")
    k(f"s_add_u32 s17, s17, {QKVI:#x}")
    k("s_and_b32 s18, s12, 3")
    k("s_lshl_b32 s19, s18, 10")
    k("s_add_u32 s19, s19, s17")
    k("s_lshl_b32 s18, s18, 8")
    k("s_add_u32 s18, s18, s17")
    k("s_add_u32 s18, s18, 4096")
    k("s_lshl_b32 s20, s12, 10")
    k("s_add_u32 s21, s16, s20")
    k(f"s_add_u32 s21, s21, {QKVI + 32*UNIT:#x}")
    k("s_waitcnt lgkmcnt(0)")
    srd(k, 8, 4, WS_SIZE)
    k(f"buffer_load_dwordx4 {vr(QL,4)}, v3, s[8:11], s19 offen")
    k("s_mov_b64 exec, 0xffffffff")
    k(f"buffer_load_dwordx2 {vr(QH,2)}, v4, s[8:11], s18 offen")
    k("s_mov_b64 exec, -1")
    k("s_mov_b32 m0, s20")
    for j in range(20):
        k("s_nop 0")
        k("buffer_load_dwordx4 v3, s[8:11], s21 offen lds")
        if j < 19:
            k("s_add_u32 m0, m0, 8192")
            k("s_add_u32 s21, s21, 8192")
    k("s_mov_b32 s22, 0x000fffff")
    k("s_mov_b32 s23, 0x000fffff")
    k("s_mov_b32 s24, 0x01100000")
    k("s_mov_b32 s25, 0x01100000")
    k("v_mov_b32 v14, 0x3f803f80")
    k("v_cndmask_b32 v14, 0, v14, s[24:25]")
    for i in range(16):
        k(f"v_mov_b32 v{V[0]+i}, v14")
    k("s_mov_b32 s30, 0")

    def rdK(b, t):
        c, tt = divmod(t, 4)
        return [f"ds_read_b128 {vr(KL[b],4)}, v3 offset:{c*10240 + tt*1024}",
                f"ds_read_b64 {vr(KL[b]+4,2)}, v4 offset:{c*10240 + 4096 + tt*256}"]
    def rdV(b, t):
        c, tt = divmod(t, 4)
        o = c * 10240 + 5120 + tt * 1280
        return ["s_mov_b64 exec, s[22:23]",
                f"ds_read_b128 {vr(V[b],4)}, v5 offset:{o}",
                f"ds_read_b128 {vr(V[b]+4,4)}, v5 offset:{o+640}",
                "s_mov_b64 exec, -1"]
    def smfma(sb, kb, c):
        return [f"{M16} {vr(S[sb],16)}, {vr(KL[kb],4)}, {vr(QL,4)}, {c}",
                f"{M8} {vr(S[sb],16)}, {vr(KL[kb]+4,2)}, {vr(QH,2)}, {vr(S[sb],16)}"]

    k("s_waitcnt vmcnt(18)")
    k("s_barrier")
    for x in rdK(0, 0):
        k(x)
    k("s_waitcnt lgkmcnt(0)")
    for x in smfma(0, 0, "0"):
        k(x)
    k.nop(16)
    def rowmax_into(dst, sb, first):
        s = S[sb]
        if first:
            k(f"v_max3_f32 v{dst}, v{s}, v{s+1}, v{s+2}")
            rest = list(range(3, 16))
        else:
            rest = list(range(16))
        while len(rest) >= 2:
            k(f"v_max3_f32 v{dst}, v{dst}, v{s+rest[0]}, v{s+rest[1]}")
            rest = rest[2:]
        if rest:
            k(f"v_max_f32 v{dst}, v{dst}, v{s+rest[0]}")
    rowmax_into(14, 0, True)
    k.label("L_attn_start")
    k("v_mov_b32 v15, v14")
    k("s_nop 1")
    k("v_permlane32_swap_b32 v14, v15")
    k("s_nop 1")
    k("v_max_f32 v14, v14, v15")
    k("v_sub_f32 v14, 0, v14")
    for i in range(16):
        k(f"v_mov_b32 v{NM+i}, v14")
        k(f"v_mov_b32 v{O+i}, 0")
    for i in range(4):
        k(f"v_mov_b32 v{P+4+i}, 0")
    for x in rdK(0, 0) + rdK(1, 1) + rdV(0, 0) + rdV(1, 0):
        k(x)
    k("s_waitcnt lgkmcnt(0)")
    for x in smfma(0, 0, vr(NM, 16)):
        k(x)
    k.nop(8)
    k("s_mov_b32 s26, 0")
    k.label("L_attn_loop")
    for t in range(4):
        a = S[t & 1]
        sm = smfma((t + 1) & 1, (t + 1) & 1, vr(NM, 16))
        ex = [f"v_exp_f32 v{a+i}, v{a+i}" for i in range(16)]
        cv = [f"v_cvt_pk_bf16_f32 v{P+i}, v{a+2*i}, v{a+2*i+1}" for i in range(8)]
        pv_prev = f"{M16} {vr(O,16)}, {vr(V[(t+1)&1]+4,4)}, {vr(P+4,4)}, {vr(O,16)}"
        pv0 = f"{M16} {vr(O,16)}, {vr(V[t&1],4)}, {vr(P,4)}, {vr(O,16)}"
        if t == 2:
            lab = k.newlabel()
            k("s_lshl_b32 s27, 1, s26")
            k("s_and_b32 s27, s27, s31")
            k(f"s_cbranch_scc1 L_attn_ck")
            k.label("L_attn_ckret")
        k(pv_prev)
        for x in rdK(t & 1, t + 2):
            k(x)
        for x in ex[0:4]:
            k(x)
        k("s_waitcnt lgkmcnt(2)")
        k(sm[0])
        for x in rdV((t + 1) & 1, t + 1):
            k(x)
        for x in ex[4:8] + cv[0:2]:
            k(x)
        k(sm[1])
        for x in ex[8:10] + cv[2:4] + ex[10:12]:
            k(x)
        k(pv0)
        for x in ex[12:16] + cv[4:8]:
            k(x)
        if t == 3:
            k("v_add_u32 v3, 10240, v3")
            k("v_add_u32 v4, 10240, v4")
            k("v_add_u32 v5, 10240, v5")
            k("s_add_u32 s26, s26, 1")
            k("s_cmp_lg_u32 s26, 16")
            k("s_cbranch_scc1 L_attn_loop")
        else:
            k("s_nop 1")
    k(f"{M16} {vr(O,16)}, {vr(V[1]+4,4)}, {vr(P+4,4)}, {vr(O,16)}")
    k("s_waitcnt lgkmcnt(0)")
    k(f"v_subrev_u32 v3, {UNIT}, v3")
    k(f"v_subrev_u32 v4, {UNIT}, v4")
    k(f"v_subrev_u32 v5, {UNIT}, v5")
    k("s_mov_b32 s28, 0")
    k("s_mov_b32 s29, -1")
    k.nop(12)
    k(f"v_cndmask_b32 v14, v{O+12}, v{O+8}, s[28:29]")
    k("v_sub_f32 v15, v14, v14")
    for i in range(12):
        k(f"v_fma_f32 v15, v{O+i}, 0, v15")
    k("v_cmp_u_f32 vcc, v15, v15")
    k("s_cmp_lg_u32 s30, 0")
    k("s_cbranch_scc1 L_attn_out")
    k("s_cbranch_vccnz L_attn_slow")
    k.label("L_attn_out")
    k("v_rcp_f32 v14, v14")
    k("s_nop 0")
    for i in range(12):
        k(f"v_mul_f32 v{O+i}, v14, v{O+i}")
    for i in range(6):
        k(f"v_cvt_pk_bf16_f32 v{P+i}, v{O+2*i}, v{O+2*i+1}")
    k("v_lshrrev_b32 v14, 4, v6")
    k("v_mul_u32_u24 v14, 20480, v14")
    k("v_and_b32 v15, 15, v6")
    k("v_lshl_add_u32 v14, v15, 4, v14")
    k("v_lshl_add_u32 v15, v7, 8, v14")
    k("s_lshl_b32 s16, s14, 3")
    k("s_add_u32 s16, s16, s12")
    k("s_mul_i32 s16, s16, 40960")
    k(f"s_add_u32 s16, s16, {OF:#x}")
    k("s_lshl_b32 s17, s13, 9")
    k("s_add_u32 s17, s17, s16")
    k("s_lshr_b32 s18, s13, 1")
    k("s_lshl_b32 s18, s18, 8")
    k("s_and_b32 s19, s13, 1")
    k("s_lshl_b32 s19, s19, 3")
    k("s_add_u32 s18, s18, s19")
    k("s_add_u32 s18, s18, s16")
    k("s_add_u32 s18, s18, 16384")
    k(f"buffer_store_dwordx4 {vr(P,4)}, v15, s[8:11], s17 offen")
    k("s_mov_b64 exec, 0xffffffff")
    k(f"buffer_store_dwordx2 {vr(P+4,2)}, v14, s[8:11], s18 offen")
    k.label(L_end)
    k("s_endpgm")

    k.label("L_attn_ck")
    k("s_cmp_eq_u32 s26, 0")
    k("s_cbranch_scc0 L_attn_ck1")
    k("s_waitcnt vmcnt(15)")
    k("s_barrier")
    k("s_branch L_attn_ckret")
    k.label("L_attn_ck1")
    k("s_cmp_eq_u32 s26, 3")
    k("s_cbranch_scc0 L_attn_ck2")
    k("s_waitcnt vmcnt(10)")
    k("s_barrier")
    k("s_branch L_attn_ckret")
    k.label("L_attn_ck2")
    k("s_waitcnt vmcnt(0)")
    k("s_barrier")
    k("s_branch L_attn_ckret")

    k.label("L_attn_slow")
    k("s_mov_b32 s30, 1")
    k("s_mov_b32 s31, 0")
    k("v_mov_b32 v14, 0xff800000")
    k("s_mov_b32 s26, 0")
    k.label("L_attn_slow_loop")
    for t in range(4):
        for x in rdK(0, t):
            k(x)
        k("s_waitcnt lgkmcnt(0)")
        for x in smfma(0, 0, "0"):
            k(x)
        k.nop(16)
        rowmax_into(14, 0, False)
    k("v_add_u32 v3, 10240, v3")
    k("v_add_u32 v4, 10240, v4")
    k("s_add_u32 s26, s26, 1")
    k("s_cmp_lg_u32 s26, 16")
    k("s_cbranch_scc1 L_attn_slow_loop")
    k(f"v_subrev_u32 v3, {UNIT}, v3")
    k(f"v_subrev_u32 v4, {UNIT}, v4")
    k("s_branch L_attn_start")
    txt = k.text(TOP)
    txt = txt.replace("    s_mov_b32 s30, 0\n", "    s_mov_b32 s30, 0\n    s_mov_b32 s31, 0x89\n", 1)
    return txt


def main(out):
    hdr = open("cdna_kernels/" + NAME + ".s.ref").read().split("\n")
    hdr = [l for l in hdr if l.startswith(";") and "@launch" not in l and "Override launch" not in l and "grid=ceil" not in l]
    prep, nprep = gen_prep()
    g = {}
    for nm in ("qkv", "gu", "wo", "down", "downf"):
        g[nm] = gen_gemm(nm, nm)
    attn = gen_attn()
    L = []
    L.append(f"; @launch kernel=prep_kernel grid=({nprep},1,1) block=(256,1,1) lds=2048")
    for layer in range(2):
        for nm in ("qkv", "attn", "wo", "gu", "down" if layer == 0 else "downf"):
            lds = UNIT if nm == "attn" else g[nm][1]
            L.append(f"; @launch kernel={nm}_kernel grid=(256,1,1) block=(512,1,1) lds={lds}")
    txt = "\n".join(hdr + L) + "\n" + '.amdgcn_target "amdgcn-amd-amdhsa--gfx950"\n'
    txt += prep + "".join(g[n][0] for n in g) + attn
    open(out, "w").write(txt)


if __name__ == "__main__":
    main(sys.argv[1] if len(sys.argv) > 1 else "cdna_kernels/" + NAME + ".s")
```

```python
import math, struct, sys, os

NAME = "interleave_layers__mha_block__glu_gated_reglu__prompt"
INSTR = os.environ.get("INSTR", "0") == "1"

WQKV_F = 0x0000000
WGU_F  = 0x0300000
WO_F   = 0x0800000
WD_F   = 0x0900000
CNT    = 0x0C00000
LBASE  = 0x1000000
LSTR   = 0x2000000
XA     = LBASE + 0x0000000
STA    = LBASE + 0x0280000
XB     = LBASE + 0x0300000
STB    = LBASE + 0x0580000
QKVI   = LBASE + 0x0600000
OF     = LBASE + 0x1000000
HF     = LBASE + 0x1300000
TSBUF  = 0x8000000
WS_SIZE = 0x10000000
UNIT = 163840
SLOT = 49152
SCRATCH = 3 * SLOT
SC = "sc0 sc1"
LSC = "sc1"

def f2u(x):
    return struct.unpack("<I", struct.pack("<f", x))[0]

SQRTC = math.sqrt(math.log2(math.e) / math.sqrt(20.0))
MF = "v_mfma_f32_16x16x32_bf16"


class K:
    def __init__(self, name):
        self.name = name
        self.l = []
        self.nlab = 0
    def __call__(self, s):
        for x in s.split("\n"):
            x = x.strip()
            if x.startswith("LABEL "):
                self.l.append(x.split()[1] + ":")
            elif x:
                self.l.append("    " + x)
    def label(self, s):
        self.l.append(s + ":")
    def newlabel(self, p="L"):
        self.nlab += 1
        return f"{p}_{self.name}_{self.nlab}"
    def nop(self, n):
        while n > 0:
            m = min(n, 16)
            self(f"s_nop {m-1}")
            n -= m
    def text(self, vgpr, sgpr=96):
        acc = (vgpr + 3) // 4 * 4
        kn = self.name + "_kernel"
        t = [".text", f".globl {kn}", ".p2align 8", f".type {kn},@function", f"{kn}:"]
        t += self.l
        d = ['.section .rodata,"a"', ".p2align 6", f".amdhsa_kernel {kn}",
             f"  .amdhsa_next_free_vgpr {vgpr}", f"  .amdhsa_next_free_sgpr {sgpr}",
             f"  .amdhsa_accum_offset {acc}", "  .amdhsa_group_segment_fixed_size 0",
             "  .amdhsa_kernarg_size 80", "  .amdhsa_user_sgpr_count 2",
             "  .amdhsa_user_sgpr_kernarg_segment_ptr 1", "  .amdhsa_system_sgpr_workgroup_id_x 1",
             ".end_amdhsa_kernel"]
        return "\n".join(t + d) + "\n"


def vr(b, n):
    return f"v[{b}:{b+n-1}]" if n > 1 else f"v{b}"

def srd(k, d, base, size):
    k(f"s_mov_b32 s{d}, s{base}")
    k(f"s_mov_b32 s{d+1}, s{base+1}")
    k(f"s_mov_b32 s{d+2}, {size:#x}")
    k(f"s_mov_b32 s{d+3}, 0x00020000")


def gen_prep():
    k = K("prep")
    NW_UNITS = 60 + 112 + 20 + 55
    NWG = NW_UNITS + 64
    L_end = "L_prep_end"
    k(f"s_cmp_ge_u32 s2, {NWG}")
    k(f"s_cbranch_scc1 {L_end}")
    k("s_load_dwordx4 s[24:27], s[0:1], 0")
    k("s_load_dwordx2 s[28:29], s[0:1], 16")
    k("s_load_dwordx4 s[32:35], s[0:1], 32")
    k("s_load_dwordx2 s[36:37], s[0:1], 48")
    k("s_load_dwordx2 s[4:5], s[0:1], 72")
    k("v_and_b32 v1, 63, v0")
    k("v_lshrrev_b32 v2, 6, v0")
    k("s_nop 0")
    k("v_readfirstlane_b32 s12, v2")
    k("s_mov_b32 s40, 0x05040100")
    k("s_mov_b32 s41, 0x07060302")
    k("s_waitcnt lgkmcnt(0)")
    srd(k, 8, 4, WS_SIZE)
    k("s_cmp_ge_u32 s2, 60")
    k("s_cbranch_scc0 L_prep_qkv")
    k("s_cmp_ge_u32 s2, 172")
    k("s_cbranch_scc0 L_prep_gu")
    k("s_cmp_ge_u32 s2, 192")
    k("s_cbranch_scc0 L_prep_wo")
    k(f"s_cmp_ge_u32 s2, {NW_UNITS}")
    k("s_cbranch_scc0 L_prep_wd")
    k("s_branch L_prep_x")

    def body(kind, RS, colsum):
        k("s_mul_i32 s14, s13, 20")
        k("s_mul_i32 s15, s12, 5")
        k("s_add_u32 s14, s14, s15")
        k("s_mov_b64 exec, s[20:21]")
        for i in range(5):
            k(f"s_add_u32 s42, s14, {i}")
            if kind == "wd":
                k("s_min_u32 s42, s42, 215")
            k("s_and_b32 s49, s42, 3")
            k("s_lshl_b32 s49, s49, 2")
            k("s_lshr_b32 s50, s42, 2")
            if kind == "x":
                k("s_lshr_b32 s43, s50, 1")
                k("s_mul_i32 s43, s43, 80")
                k("s_and_b32 s44, s50, 1")
                k("s_lshl_b32 s44, s44, 5")
                k("s_add_u32 s43, s43, s44")
                k("s_mul_i32 s45, s50, 160")
                k(f"s_sub_u32 s45, s45, {2560-64}")
                k("s_cmp_ge_u32 s50, 16")
                k("s_cselect_b32 s43, s45, s43")
                k("s_cselect_b32 s44, 80, 16")
                k("s_add_u32 s43, s43, s49")
                k("s_add_u32 s44, s43, s44")
            elif kind == "wd":
                k("s_mul_i32 s43, s50, 86")
                k("s_lshr_b32 s43, s43, 8")
                k("s_mul_i32 s44, s43, 3")
                k("s_sub_u32 s44, s50, s44")
                k("s_lshl_b32 s44, s44, 5")
                k("s_mul_i32 s43, s43, 112")
                k("s_add_u32 s43, s43, s44")
                k("s_mul_i32 s45, s50, 224")
                k(f"s_sub_u32 s45, s45, {224*46-96}")
                k("s_cmp_eq_u32 s50, 53")
                k("s_cselect_b32 s46, 48, 112")
                k("s_cmp_ge_u32 s50, 46")
                k("s_cselect_b32 s43, s45, s43")
                k("s_cselect_b32 s44, s46, 16")
                k("s_add_u32 s43, s43, s49")
                k("s_add_u32 s44, s43, s44")
            elif kind == "wo":
                k("s_lshr_b32 s43, s42, 1")
                k("s_mul_i32 s43, s43, 20")
                k("s_and_b32 s44, s42, 1")
                k("s_lshl_b32 s44, s44, 2")
                k("s_add_u32 s43, s43, s44")
                k("s_add_u32 s44, s43, 8")
                k("s_sub_u32 s45, s42, 64")
                k("s_mul_i32 s45, s45, 40")
                k("s_add_u32 s45, s45, 16")
                k("s_add_u32 s46, s45, 20")
                k("s_cmp_ge_u32 s42, 64")
                k("s_cselect_b32 s43, s45, s43")
                k("s_cselect_b32 s44, s46, s44")
            k(f"s_mul_i32 s43, s43, {RS}")
            k(f"s_mul_i32 s44, s44, {RS}")
            for j in range(8):
                sreg = "s43" if j < 4 else "s44"
                k(f"buffer_load_dword v{16+8*i+j}, v3, s[16:19], {sreg} offen")
                if j not in (3, 7):
                    k(f"s_add_u32 {sreg}, {sreg}, {RS}")
        if colsum:
            k("v_mov_b32 v8, 0")
            k("v_mov_b32 v9, 0")
        k("s_lshl_b32 s47, s14, 8")
        k("s_waitcnt vmcnt(0)")
        for i in range(5):
            a = 16 + 8 * i
            o = 64 + 8 * i
            for j in range(4):
                k(f"v_perm_b32 v{o+j}, v{a+2*j+1}, v{a+2*j}, s40")
                k(f"v_perm_b32 v{o+4+j}, v{a+2*j+1}, v{a+2*j}, s41")
            if kind == "wd":
                k(f"s_add_u32 s42, s14, {i}")
                k("s_cmp_ge_u32 s42, 216")
                k(f"s_cbranch_scc1 {L_end}")
            k(f"buffer_store_dwordx4 {vr(o,4)}, v4, s[8:11], s47 offen offset:{i*256}")
            k(f"buffer_store_dwordx4 {vr(o+4,4)}, v4, s[8:11], s47 offen offset:{i*256+16}")
        k("s_mov_b64 exec, -1")
        if colsum:
            for r in range(40):
                k(f"v_lshlrev_b32 v10, 16, v{16+r}")
                k(f"v_and_b32 v11, 0xffff0000, v{16+r}")
                k("v_add_f32 v8, v8, v10")
                k("v_add_f32 v9, v9, v11")
            k("v_lshlrev_b32 v10, 3, v0")
            k("ds_write_b64 v10, v[8:9]")
            k("s_waitcnt lgkmcnt(0)")
            k("s_barrier")
            k("s_cmp_lg_u32 s12, 0")
            k(f"s_cbranch_scc1 {L_end}")
            k("ds_read_b64 v[12:13], v10 offset:512")
            k("ds_read_b64 v[14:15], v10 offset:1024")
            k("ds_read_b64 v[16:17], v10 offset:1536")
            k("s_waitcnt lgkmcnt(0)")
            for b in (12, 14, 16):
                k(f"v_add_f32 v8, v8, v{b}")
                k(f"v_add_f32 v9, v9, v{b+1}")
            for (c, d) in ((8, 20), (9, 24)):
                k(f"v_cvt_pk_bf16_f32 v18, v{c}, v{c}")
                k("v_and_b32 v18, 0xffff0000, v18")
                k(f"v_sub_f32 v18, v{c}, v18")
                k(f"v_cvt_pk_bf16_f32 v{d}, v{c}, v18")
                k(f"v_mov_b32 v{d+1}, v{d}")
                k(f"v_mov_b32 v{d+2}, 0")
                k(f"v_mov_b32 v{d+3}, 0")
            k("s_lshl_b32 s42, s13, 8")
            k(f"s_add_u32 s42, s42, {20*1024}")
            k("s_mov_b64 exec, s[20:21]")
            k("buffer_store_dwordx4 v[20:23], v4, s[8:11], s42 offen")
            k("buffer_store_dwordx4 v[24:27], v4, s[8:11], s42 offen offset:16")
        k("s_endpgm")

    k.label("L_prep_qkv")
    srd(k, 16, 26, 640 * 3840)
    k("s_mov_b64 s[20:21], -1")
    k("s_and_b32 s13, s2, 3")
    k("s_lshr_b32 s22, s2, 2")
    k("s_lshl_b32 s22, s22, 7")
    k("v_lshlrev_b32 v5, 1, v1")
    k("v_add_u32 v5, s22, v5")
    k("v_lshlrev_b32 v3, 1, v5")
    k("v_mul_u32_u24 v6, 3277, v5")
    k("v_lshrrev_b32 v6, 16, v6")
    k("v_mul_u32_u24 v7, 20, v6")
    k("v_sub_u32 v7, v5, v7")
    k("v_mul_u32_u24 v8, 43, v6")
    k("v_lshrrev_b32 v8, 8, v8")
    k("v_mul_u32_u24 v9, 6, v8")
    k("v_sub_u32 v9, v6, v9")
    k("v_and_b32 v10, 6, v9")
    k("v_bfe_u32 v11, v7, 2, 1")
    k("v_add_u32 v10, v10, v11")
    k("v_and_b32 v11, 1, v9")
    k("v_lshlrev_b32 v12, 3, v11")
    k("v_bfe_u32 v11, v7, 3, 1")
    k("v_lshl_add_u32 v12, v11, 2, v12")
    k("v_lshrrev_b32 v14, 2, v9")
    k("v_add_u32 v14, 6, v14")
    k("v_and_b32 v15, 3, v9")
    k("v_lshlrev_b32 v15, 2, v15")
    k("v_cmp_le_u32 s[42:43], 16, v7")
    k("s_nop 1")
    k("v_cndmask_b32 v10, v10, v14, s[42:43]")
    k("v_cndmask_b32 v12, v12, v15, s[42:43]")
    k("v_and_b32 v13, 3, v7")
    k("v_add_u32 v12, v12, v13")
    k("v_lshl_add_u32 v10, v8, 3, v10")
    k("v_lshrrev_b32 v14, 4, v5")
    k("v_add_u32 v14, 8, v14")
    k("v_and_b32 v15, 15, v5")
    k("s_movk_i32 s42, 1280")
    k("v_cmp_le_u32 s[42:43], s42, v5")
    k("s_nop 1")
    k("v_cndmask_b32 v10, v10, v14, s[42:43]")
    k("v_cndmask_b32 v12, v12, v15, s[42:43]")
    k("v_mul_u32_u24 v4, 21504, v10")
    k("v_lshl_add_u32 v4, v12, 4, v4")
    body("x", 3840, True)

    k.label("L_prep_gu")
    k("s_sub_u32 s22, s2, 60")
    k("s_and_b32 s13, s22, 3")
    k("s_lshr_b32 s22, s22, 2")
    k("s_cmp_ge_u32 s22, 14")
    k("s_cselect_b32 s16, s34, s32")
    k("s_cselect_b32 s17, s35, s33")
    k("s_cselect_b32 s23, 21504, 0")
    k("s_cselect_b32 s42, 14, 0")
    k("s_sub_u32 s22, s22, s42")
    k(f"s_mov_b32 s18, {640*3456}")
    k("s_mov_b32 s19, 0x00020000")
    k("s_lshl_b32 s22, s22, 7")
    k("v_lshlrev_b32 v5, 1, v1")
    k("v_add_u32 v5, s22, v5")
    k("v_lshlrev_b32 v3, 1, v5")
    k("s_movk_i32 s42, 1728")
    k("v_cmp_gt_u32 s[20:21], s42, v5")
    k("v_lshrrev_b32 v6, 4, v5")
    k("v_mov_b32 v7, 111")
    k("v_cmp_eq_u32 vcc, 107, v6")
    k("s_nop 1")
    k("v_cndmask_b32 v6, v6, v7, vcc")
    k("v_mul_u32_u24 v4, 43008, v6")
    k("v_and_b32 v6, 15, v5")
    k("v_lshl_add_u32 v4, v6, 4, v4")
    k(f"s_add_u32 s23, s23, {WGU_F:#x}")
    k("v_add_u32 v4, s23, v4")
    body("x", 3456, True)

    for (lab, base_id, ptr, rows, kind, bstride, dst) in (
            ("L_prep_wo", 172, 28, 640, "wo", 20480, WO_F),
            ("L_prep_wd", 192, 36, 1728, "wd", 55296, WD_F)):
        k.label(lab)
        srd(k, 16, ptr, rows * 1280)
        k("s_mov_b64 s[20:21], -1")
        k(f"s_sub_u32 s22, s2, {base_id}")
        k("s_mul_i32 s13, s22, 52")
        k("s_lshr_b32 s13, s13, 8")
        k("s_mul_i32 s42, s13, 5")
        k("s_sub_u32 s22, s22, s42")
        k("s_lshl_b32 s22, s22, 7")
        k("v_lshlrev_b32 v5, 1, v1")
        k("v_add_u32 v5, s22, v5")
        k("v_lshlrev_b32 v3, 1, v5")
        k("v_lshrrev_b32 v6, 4, v5")
        k(f"v_mul_u32_u24 v4, {bstride}, v6")
        k("v_and_b32 v6, 15, v5")
        k("v_lshl_add_u32 v4, v6, 4, v4")
        k(f"v_add_u32 v4, {dst:#x}, v4")
        body(kind, 1280, False)

    k.label("L_prep_x")
    srd(k, 16, 24, 2048 * 1280)
    k(f"s_sub_u32 s22, s2, {NW_UNITS}")
    k("s_lshl_b32 s23, s12, 3")
    k("v_lshrrev_b32 v5, 3, v1")
    k("v_add_u32 v5, s23, v5")
    k("v_and_b32 v6, 7, v1")
    k("v_mul_u32_u24 v3, 1280, v5")
    k("v_lshl_add_u32 v3, v6, 4, v3")
    k(f"s_mul_i32 s42, s22, {32*1280}")
    for i in range(10):
        k(f"buffer_load_dwordx4 {vr(16+4*i,4)}, v3, s[16:19], s42 offen offset:{128*i}")
    k("v_mov_b32 v8, 0")
    k("v_mov_b32 v9, 0")
    k("v_lshlrev_b32 v10, 3, v0")
    k("s_lshl_b32 s43, s22, 11")
    k(f"s_add_u32 s43, s43, {CNT:#x}")
    k("buffer_store_dwordx2 v[8:9], v10, s[8:11], s43 offen")
    k("v_lshrrev_b32 v4, 4, v5")
    k("v_mul_u32_u24 v4, 20480, v4")
    k("v_and_b32 v10, 15, v5")
    k("v_lshl_add_u32 v4, v10, 4, v4")
    k("v_and_b32 v10, 1, v6")
    k("v_lshl_add_u32 v4, v10, 9, v4")
    k("v_lshrrev_b32 v7, 1, v6")
    for i in range(10):
        d = 64 + i
        k(f"v_add_u32 v10, {4*i}, v7")
        k("v_mul_u32_u24 v11, 52, v10")
        k("v_lshrrev_b32 v11, 8, v11")
        k("v_mul_u32_u24 v12, 5, v11")
        k("v_sub_u32 v12, v10, v12")
        k("v_lshl_add_u32 v13, v11, 2, v12")
        k("v_add_u32 v14, 32, v11")
        k("v_cmp_eq_u32 vcc, 4, v12")
        k("s_nop 1")
        k("v_cndmask_b32 v13, v13, v14, vcc")
        k("v_lshrrev_b32 v14, 1, v13")
        k("v_and_b32 v13, 1, v13")
        k(f"v_lshl_add_u32 v{d}, v14, 10, v4")
        k(f"v_lshl_add_u32 v{d}, v13, 3, v{d}")
    k(f"s_add_u32 s43, s42, {XA:#x}")
    k("s_waitcnt vmcnt(0)")
    for i in range(10):
        k(f"buffer_store_dwordx2 {vr(16+4*i,2)}, v{64+i}, s[8:11], s43 offen")
        k(f"buffer_store_dwordx2 {vr(18+4*i,2)}, v{64+i}, s[8:11], s43 offen offset:256")
    for r in range(40):
        k(f"v_lshlrev_b32 v10, 16, v{16+r}")
        k(f"v_and_b32 v11, 0xffff0000, v{16+r}")
        k("v_add_f32 v8, v8, v10")
        k("v_fmac_f32 v9, v10, v10")
        k("v_add_f32 v8, v8, v11")
        k("v_fmac_f32 v9, v11, v11")
    k("v_lshlrev_b32 v4, 14, v6")
    k("v_lshl_add_u32 v4, v5, 3, v4")
    k("s_lshl_b32 s43, s22, 8")
    k(f"s_add_u32 s43, s43, {STA:#x}")
    k("buffer_store_dwordx2 v[8:9], v4, s[8:11], s43 offen")
    k.label(L_end)
    k("s_endpgm")
    return k.text(104, 56), NWG


class Ph:
    def __init__(s, name, big, NB, nsteps, xsrc, wsrc):
        s.name, s.big, s.NB, s.nsteps, s.xsrc, s.wsrc = name, big, NB, nsteps, xsrc, wsrc
        s.MX = 2 if big else 1
        s.NXF = 4 * s.MX
        s.SPS = 2 if big else 4
        s.STEP = (s.NXF + NB) * 1024
        s.XS = nsteps * 1024
        s.WS = (nsteps + 1) * 1024 if big else nsteps * 1024
        s.nst = (nsteps + s.SPS - 1) // s.SPS
        s.tail = nsteps - s.SPS * (s.nst - 1)
        s.nx = 4
        s.nw = NB // 2 if big else NB
        s.n = s.nx + s.nw
        assert s.SPS * s.STEP <= SLOT

PH = {
    "qkv": Ph("qkv", True, 8, 20, XA, WQKV_F),
    "wo": Ph("wo", False, 5, 20, OF, WO_F),
    "gu": Ph("gu", True, 14, 20, XB, WGU_F),
    "down": Ph("down", False, 5, 54, HF, WD_F),
}

S_W = 12
S_RB, S_CB = 13, 14
S_RS, S_CS = 15, 16
S_HD, S_QB = 17, 18
S_LAY = 19
S_SLOT = 20
S_SEAM = 21
S_TS = 22
RES = 16


def gen_mega():
    k = K("mega")
    L_end = "L_mega_end"

    def ts(i):
        if not INSTR:
            return
        lab = k.newlabel()
        k(f"s_cmp_lg_u32 s{S_W}, 0")
        k(f"s_cbranch_scc1 {lab}")
        k("s_memtime s[88:89]")
        k("s_memrealtime s[90:91]")
        k("s_waitcnt lgkmcnt(0)")
        k("v_mov_b32 v250, s88")
        k("v_mov_b32 v251, s90")
        k("v_mov_b32 v252, 0")
        k("s_mov_b64 s[92:93], exec")
        k("s_mov_b64 exec, 1")
        k(f"buffer_store_dwordx2 v[250:251], v252, s[8:11], s{S_TS} offen offset:{8*i}")
        k("s_mov_b64 exec, s[92:93]")
        k.label(lab)

    def next_slot(dst=S_SLOT):
        k(f"s_add_u32 s{dst}, s{dst}, {SLOT}")
        k(f"s_cmp_eq_u32 s{dst}, {3*SLOT}")
        k(f"s_cselect_b32 s{dst}, 0, s{dst}")

    k("s_cmp_ge_u32 s2, 256")
    k(f"s_cbranch_scc1 {L_end}")
    k("s_load_dwordx2 s[4:5], s[0:1], 72")
    k("s_load_dwordx2 s[6:7], s[0:1], 56")
    k("v_and_b32 v1, 63, v0")
    k("v_lshrrev_b32 v2, 6, v0")
    k("v_lshlrev_b32 v3, 4, v1")
    k(f"v_readfirstlane_b32 s{S_W}, v2")
    k(f"s_and_b32 s{S_RB}, s2, 1")
    k(f"s_lshl_b32 s{S_RB}, s{S_RB}, 3")
    k("s_bfe_u32 s28, s2, 0x30003")
    k(f"s_add_u32 s{S_RB}, s{S_RB}, s28")
    k(f"s_bfe_u32 s{S_CB}, s2, 0x20001")
    k(f"s_lshl_b32 s{S_CB}, s{S_CB}, 2")
    k("s_lshr_b32 s28, s2, 6")
    k(f"s_add_u32 s{S_CB}, s{S_CB}, s28")
    k("s_and_b32 s28, s2, 7")
    k(f"s_lshl_b32 s{S_RS}, s28, 2")
    k("s_bfe_u32 s28, s2, 0x20003")
    k(f"s_add_u32 s{S_RS}, s{S_RS}, s28")
    k(f"s_lshr_b32 s{S_CS}, s2, 5")
    k(f"s_mov_b32 s{S_HD}, s{S_RS}")
    k(f"s_mov_b32 s{S_QB}, s{S_CS}")
    k(f"s_mov_b32 s{S_LAY}, 0")
    k(f"s_mov_b32 s{S_SLOT}, 0")
    k(f"s_mov_b32 s{S_SEAM}, 0")
    k(f"s_lshl_b32 s{S_TS}, s2, 10")
    k(f"s_add_u32 s{S_TS}, s{S_TS}, {TSBUF:#x}")
    k("s_waitcnt lgkmcnt(0)")
    srd(k, 8, 4, WS_SIZE)
    srd(k, 24, 6, 2048 * 1280)
    k(f"s_cmp_lt_u32 s{S_W}, 4")
    k("s_cbranch_scc1 L_comp")

    k(f"s_sub_u32 s{S_W}, s{S_W}, 4")
    AX = {"qkv": 8, "wo": 24, "gu": 8, "down": 24}
    def l_setup_w(p):
        a = AX[p.name] + 4
        rc = S_CB if p.big else S_CS
        k(f"s_mul_i32 s28, s{rc}, {p.NB*p.WS}")
        if p.big:
            k(f"s_and_b32 s29, s{S_W}, 1")
            k(f"s_mul_i32 s29, s29, {p.nw*p.WS}")
            k("s_add_u32 s28, s28, s29")
            k(f"s_lshr_b32 s29, s{S_W}, 1")
        else:
            k(f"s_mov_b32 s29, s{S_W}")
        k("s_lshl_b32 s29, s29, 10")
        k("s_add_u32 s28, s28, s29")
        k(f"s_add_u32 s28, s28, {p.wsrc:#x}")
        for j in range(p.nw):
            k(f"v_add_u32 v{a+j}, s28, v3")
            if j < p.nw - 1:
                k(f"s_add_u32 s28, s28, {p.WS}")
    def l_setup_x(p):
        a = AX[p.name]
        rr = S_RB if p.big else S_RS
        k(f"s_mul_i32 s28, s{rr}, {p.NXF*p.XS}")
        if p.big:
            k(f"s_and_b32 s29, s{S_W}, 1")
            k(f"s_mul_i32 s29, s29, {4*p.XS}")
            k("s_add_u32 s28, s28, s29")
            k(f"s_lshr_b32 s29, s{S_W}, 1")
        else:
            k(f"s_mov_b32 s29, s{S_W}")
        k("s_lshl_b32 s29, s29, 10")
        k("s_add_u32 s28, s28, s29")
        k(f"s_add_u32 s28, s28, {p.xsrc:#x}")
        k(f"s_add_u32 s28, s28, s{S_LAY}")
        for j in range(4):
            k(f"v_add_u32 v{a+j}, s28, v3")
            if j < 3:
                k(f"s_add_u32 s28, s28, {p.XS}")
    LOFF = {"qkv": 40, "wo": 42, "gu": 44, "down": 42}
    for nm in ("qkv", "wo", "gu"):
        p = PH[nm]
        r = LOFF[nm]
        if p.big:
            k(f"s_lshr_b32 s28, s{S_W}, 1")
            k(f"s_mul_i32 s28, s28, {p.STEP}")
            k(f"s_and_b32 s29, s{S_W}, 1")
            k(f"s_lshl_b32 s30, s29, 12")
            k(f"s_add_u32 s{r}, s28, s30")
            k(f"s_mul_i32 s30, s29, {p.nw*1024}")
            k(f"s_add_u32 s{r+1}, s28, s30")
            k(f"s_add_u32 s{r+1}, s{r+1}, {p.NXF*1024}")
        else:
            k(f"s_mul_i32 s{r}, s{S_W}, {p.STEP}")
            k(f"s_add_u32 s{r+1}, s{r}, 4096")
    def l_issue(p, part, slot, soff):
        a = AX[p.name] + (0 if part == "x" else 4)
        n = p.nx if part == "x" else p.nw
        r = LOFF[p.name] + (0 if part == "x" else 1)
        k(f"s_add_u32 m0, s{slot}, s{r}")
        for j in range(n):
            k("s_nop 0")
            k(f"buffer_load_dwordx4 v{a+j}, s[8:11], {soff} offen {LSC if part == 'x' else ''} lds")
            if j < n - 1:
                k("s_add_u32 m0, m0, 1024")
    def l_w_first(p, i):
        k(f"s_mov_b32 s{32+i}, s{S_SLOT}")
        k(f"s_movk_i32 s35, {i*p.SPS*1024}")
        l_issue(p, "w", S_SLOT, "s35")
        next_slot()
    def l_gemm(p, nxt):
        for i in range(3):
            k(f"s_movk_i32 s35, {i*p.SPS*1024}")
            l_issue(p, "x", 32 + i, "s35")
        if nxt:
            l_setup_w(nxt)
        k(f"s_waitcnt vmcnt({2*p.nx})")
        k("s_barrier")
        k(f"s_waitcnt vmcnt({p.nx})")
        k(f"s_movk_i32 s35, {3*p.SPS*1024}")
        cnt = p.nst - 3
        part_tail = p.tail < p.SPS
        nloop = cnt - 1 if part_tail else cnt
        L = k.newlabel()
        k(f"s_mov_b32 s36, {nloop}")
        k.label(L)
        k("s_barrier")
        l_issue(p, "x", S_SLOT, "s35")
        l_issue(p, "w", S_SLOT, "s35")
        next_slot()
        k(f"s_add_u32 s35, s35, {p.SPS*1024}")
        k("s_sub_u32 s36, s36, 1")
        k("s_cmp_lg_u32 s36, 0")
        k(f"s_waitcnt vmcnt({p.n})")
        k(f"s_cbranch_scc1 {L}")
        if part_tail:
            l1, l2 = k.newlabel(), k.newlabel()
            k("s_barrier")
            k(f"s_cmp_ge_u32 s{S_W}, {p.tail}")
            k(f"s_cbranch_scc1 {l1}")
            l_issue(p, "x", S_SLOT, "s35")
            l_issue(p, "w", S_SLOT, "s35")
            k(f"s_waitcnt vmcnt({p.n})")
            k(f"s_branch {l2}")
            k.label(l1)
            k("s_waitcnt vmcnt(0)")
            k.label(l2)
            next_slot()
        k("s_barrier")
        if nxt:
            l_w_first(nxt, 0)
            k(f"s_waitcnt vmcnt({nxt.nw})")
        else:
            k("s_waitcnt vmcnt(0)")
        k("s_barrier")
        if nxt:
            l_w_first(nxt, 1)

    l_setup_w(PH["qkv"])
    for i in range(3):
        l_w_first(PH["qkv"], i)
    k.label("L_l_layer")
    l_setup_x(PH["qkv"])
    k("s_barrier")
    l_gemm(PH["qkv"], None)
    k("s_barrier")
    k(f"s_mul_i32 s28, s{S_HD}, {UNIT}")
    k(f"s_add_u32 s28, s28, s{S_LAY}")
    k(f"s_lshl_b32 s29, s{S_W}, 10")
    k("s_add_u32 s28, s28, s29")
    k(f"s_add_u32 s28, s28, {QKVI + 32*UNIT:#x}")
    k("s_mov_b32 m0, s29")
    l_setup_w_wo_later = True
    k("s_barrier")
    def pieces(n):
        lab = k.newlabel()
        k(f"s_mov_b32 s36, {n}")
        k.label(lab)
        k(f"buffer_load_dwordx4 v3, s[8:11], s28 offen {LSC} lds")
        k("s_add_u32 m0, m0, 4096")
        k("s_add_u32 s28, s28, 4096")
        k("s_sub_u32 s36, s36, 1")
        k("s_cmp_lg_u32 s36, 0")
        k(f"s_cbranch_scc1 {lab}")
    pieces(6)
    k("s_waitcnt vmcnt(3)")
    k("s_barrier")
    pieces(12)
    k("s_waitcnt vmcnt(8)")
    k("s_barrier")
    pieces(22)
    k("s_waitcnt vmcnt(20)")
    k("s_barrier")
    k("s_waitcnt vmcnt(0)")
    k("s_barrier")
    l_setup_w(PH["wo"])
    l_setup_x(PH["wo"])
    k(f"s_mov_b32 s{S_SLOT}, 0")
    k("s_barrier")
    for i in range(3):
        l_w_first(PH["wo"], i)
    k("s_barrier")
    l_gemm(PH["wo"], PH["gu"])
    l_setup_x(PH["gu"])
    k("s_barrier")
    l_w_first(PH["gu"], 2)
    k("s_barrier")
    l_gemm(PH["gu"], PH["down"])
    l_setup_x(PH["down"])
    k("s_barrier")
    l_w_first(PH["down"], 2)
    k("s_barrier")
    l_gemm(PH["down"], PH["qkv"])
    k(f"s_cmp_lg_u32 s{S_LAY}, 0")
    k("s_cbranch_scc1 L_l_done")
    k(f"s_mov_b32 s{S_LAY}, {LSTR:#x}")
    k("s_barrier")
    l_w_first(PH["qkv"], 2)
    k("s_branch L_l_layer")
    k.label("L_l_done")
    k("s_waitcnt vmcnt(0)")
    k("s_endpgm")

    k.label("L_comp")
    k("v_and_b32 v7, 15, v1")
    k("v_lshrrev_b32 v8, 4, v1")
    k("v_mov_b32 v15, 1")
    k("v_lshlrev_b32 v2, 7, v1")

    def small_addr():
        k(f"s_lshl_b32 s28, s{S_RS}, 2")
        k(f"s_add_u32 s28, s28, s{S_W}")
        k("s_mul_i32 s29, s28, 20480")
        k(f"s_lshl_b32 s30, s{S_CS}, 11")
        k("s_add_u32 s30, s30, s29")
        k(f"s_lshr_b32 s31, s{S_CS}, 1")
        k("s_lshl_b32 s31, s31, 10")
        k("s_add_u32 s31, s31, s29")
        k(f"s_and_b32 s29, s{S_CS}, 1")
        k("s_lshl_b32 s29, s29, 3")
        k("s_add_u32 s31, s31, s29")
        k("s_add_u32 s31, s31, 16384")
    small_addr()
    k(f"s_add_u32 s30, s30, {XA:#x}")
    k(f"s_add_u32 s31, s31, {XA:#x}")
    k(f"buffer_load_dwordx4 {vr(RES,4)}, v3, s[8:11], s30 offen")
    k(f"buffer_load_dwordx4 {vr(RES+4,4)}, v3, s[8:11], s30 offen offset:1024")
    k(f"buffer_load_dwordx2 {vr(RES+8,2)}, v3, s[8:11], s31 offen")

    def signal(seam, setup):
        lab = k.newlabel()
        k(f"s_cmp_lg_u32 s{S_W}, 0")
        k(f"s_cbranch_scc1 {lab}")
        setup()
        k(f"s_add_u32 s29, s{S_SEAM}, {CNT + 4*seam:#x}")
        k(f"buffer_atomic_add v15, v12, s[8:11], s29 offen sc1")
        k("s_mov_b64 exec, -1")
        k.label(lab)
    def poll(seam, idx_setup):
        lab, lp = k.newlabel(), k.newlabel()
        k(f"s_cmp_lg_u32 s{S_W}, 0")
        k(f"s_cbranch_scc1 {lab}")
        idx_setup()
        k("s_lshl_b32 s28, s28, 9")
        k(f"s_add_u32 s28, s28, s{S_SEAM}")
        k(f"s_add_u32 s28, s28, {CNT + 4*seam:#x}")
        k("s_mov_b32 s29, 0x40000")
        k("s_mov_b64 exec, 15")
        k.label(lp)
        k("buffer_load_dword v14, v2, s[8:11], s28 offen sc1")
        k("s_sub_u32 s29, s29, 1")
        k("s_waitcnt vmcnt(0)")
        k("v_cmp_ne_u32 vcc, v13, v14")
        k("s_cmp_eq_u32 s29, 0")
        k(f"s_cbranch_scc1 {lp}_x")
        k(f"s_cbranch_vccnz {lp}")
        k.label(lp + "_x")
        k("s_mov_b64 exec, -1")
        k.label(lab)
    def targets(t):
        k("v_mov_b32 v13, 0")
        for i, x in enumerate(t):
            if x:
                k(f"v_writelane_b32 v13, {x}, {i}")

    ACC = 32
    def c_layout(p):
        FB = ACC + p.MX * p.NB * 4
        if p.name == "gu":
            XBUF = [FB, FB + 8]; WBUF = [FB + 16, FB + 44]; top = FB + 72
        elif p.name == "qkv":
            XBUF = [FB, FB + 8]; WBUF = [FB + 16, FB + 48]; top = FB + 80
        else:
            XBUF = [FB, FB + 8]; WBUF = [FB + 16, FB + 56]; top = FB + 96
        return FB, XBUF, WBUF, top
    def acc(p, m, j):
        return ACC + (m * p.NB + j) * 4
    def c_units(p):
        FB, XBUF, WBUF, top = c_layout(p)
        U = []
        if p.name == "gu":
            for u in range(4):
                st, h = u >> 1, u & 1
                rd = []
                if h == 0:
                    rd += [(XBUF[st] + 4 * m, 5, st * p.STEP + 1024 * m) for m in range(2)]
                rd += [(WBUF[h] + 4 * j, 6, st * p.STEP + (8 + 7 * h + j) * 1024) for j in range(7)]
                mm = [(acc(p, m, 7 * h + j), WBUF[h] + 4 * j, XBUF[st] + 4 * m) for j in range(7) for m in range(2)]
                U.append((rd, mm))
        elif p.name == "qkv":
            for st in range(2):
                rd = [(XBUF[st] + 4 * m, 5, st * p.STEP + 1024 * m) for m in range(2)]
                rd += [(WBUF[st] + 4 * j, 6, st * p.STEP + (8 + j) * 1024) for j in range(8)]
                mm = [(acc(p, m, j), WBUF[st] + 4 * j, XBUF[st] + 4 * m) for j in range(8) for m in range(2)]
                U.append((rd, mm))
        else:
            for u in range(2):
                rd, mm = [], []
                for s_ in range(2):
                    st = 2 * u + s_
                    rd += [(XBUF[u] + 4 * s_, 5, st * p.STEP)]
                    rd += [(WBUF[u] + 20 * s_ + 4 * j, 6, st * p.STEP + (4 + j) * 1024) for j in range(5)]
                    mm += [(acc(p, 0, j), WBUF[u] + 20 * s_ + 4 * j, XBUF[u] + 4 * s_) for j in range(5)]
                U.append((rd, mm))
        return U
    def c_mainloop(p, swap, tag):
        U = c_units(p)
        def rdi(r): return f"ds_read_b128 {vr(r[0],4)}, v{r[1]} offset:{r[2]}"
        def run(mm, rd):
            rd = list(rd)
            per = 1 if len(rd) <= len(mm) else 2
            for (a, w, x) in mm:
                a_, b_ = (w, x) if swap else (x, w)
                k(f"{MF} {vr(a,4)}, {vr(a_,4)}, {vr(b_,4)}, {vr(a,4)}")
                for _ in range(per):
                    if rd:
                        k(rdi(rd.pop(0)))
            for r in rd:
                k(rdi(r))
        k(f"s_mul_i32 s28, s{S_W}, {p.MX*1024}")
        k("v_add_u32 v4, s28, v3")
        k(f"v_add_u32 v5, s{S_SLOT}, v4")
        k(f"v_add_u32 v6, s{S_SLOT}, v3")
        k(f"s_mov_b32 s36, {p.nst-1}")
        k("s_barrier")
        ts(tag + 1)
        for r in U[0][0]:
            k(rdi(r))
        L = k.newlabel()
        k(".p2align 4")
        k.label(L)
        for u in range(len(U)):
            last = u == len(U) - 1
            if last:
                next_slot()
                k(f"v_add_u32 v5, s{S_SLOT}, v4")
                k(f"v_add_u32 v6, s{S_SLOT}, v3")
                k("s_sub_u32 s36, s36, 1")
                k("s_cmp_lg_u32 s36, 0")
            k("s_waitcnt lgkmcnt(0)")
            if last:
                k("s_barrier")
            run(U[u][1], U[(u + 1) % len(U)][0])
        k(f"s_cbranch_scc1 {L}")
        nt = len(U) * p.tail // p.SPS
        for u in range(nt):
            k("s_waitcnt lgkmcnt(0)")
            run(U[u][1], U[u + 1][0] if u < nt - 1 else [])
        next_slot()
        ts(tag + 2)

    def c_ext_loads(p):
        FB, XBUF, WBUF, top = c_layout(p)
        k(f"s_mul_i32 s28, s{S_CB}, {p.NB*p.WS}")
        k(f"s_add_u32 s28, s28, {p.wsrc + p.nsteps*1024:#x}")
        regs = [WBUF[0] + 4 * j for j in range(14)] if p.name == "gu" else [WBUF[1] + 4 * j for j in range(8)]
        for j, r in enumerate(regs):
            k(f"buffer_load_dwordx4 {vr(r,4)}, v3, s[8:11], s28 offen")
            if j < len(regs) - 1:
                k(f"s_add_u32 s28, s28, {p.WS}")
        return regs
    def c_stats(p, stats):
        FB, XBUF, WBUF, top = c_layout(p)
        T = XBUF[0]
        k("v_lshlrev_b32 v9, 15, v8")
        k("v_lshl_add_u32 v9, v7, 3, v9")
        k(f"s_lshl_b32 s28, s{S_RB}, 2")
        k(f"s_add_u32 s28, s28, s{S_W}")
        k("s_lshl_b32 s28, s28, 8")
        k(f"s_add_u32 s28, s28, s{S_LAY}")
        k(f"s_add_u32 s28, s28, {stats:#x}")
        k("s_add_u32 s29, s28, 16384")
        for m in range(2):
            k(f"buffer_load_dwordx2 {vr(T+4*m,2)}, v9, s[8:11], s28 offen offset:{128*m} {LSC}")
            k(f"buffer_load_dwordx2 {vr(T+4*m+2,2)}, v9, s[8:11], s29 offen offset:{128*m} {LSC}")
        k("s_waitcnt vmcnt(0)")
        for m in range(2):
            k(f"v_add_f32 v{T+4*m}, v{T+4*m}, v{T+4*m+2}")
            k(f"v_add_f32 v{T+4*m+1}, v{T+4*m+1}, v{T+4*m+3}")
        for sw in ("v_permlane32_swap_b32", "v_permlane16_swap_b32"):
            for m in range(2):
                k(f"v_mov_b32 v{T+4*m+2}, v{T+4*m}")
                k(f"v_mov_b32 v{T+4*m+3}, v{T+4*m+1}")
            k("s_nop 1")
            for m in range(2):
                k(f"{sw} v{T+4*m}, v{T+4*m+2}")
                k(f"{sw} v{T+4*m+1}, v{T+4*m+3}")
            k("s_nop 0")
            for m in range(2):
                k(f"v_add_f32 v{T+4*m}, v{T+4*m}, v{T+4*m+2}")
                k(f"v_add_f32 v{T+4*m+1}, v{T+4*m+1}, v{T+4*m+3}")
        for m in range(2):
            t = T + 4 * m
            E = XBUF[1] + 4 * m
            k(f"v_mul_f32 v{t}, {f2u(-1.0/640):#x}, v{t}")
            k(f"v_mul_f32 v{t+1}, {f2u(1.0/640):#x}, v{t+1}")
            k(f"v_cvt_pk_bf16_f32 v{E}, v{t}, v{t}")
            k(f"v_fma_f32 v{t+1}, -v{t}, v{t}, v{t+1}")
            k(f"v_and_b32 v{t+2}, 0xffff0000, v{E}")
            k(f"v_max_f32 v{t+1}, 0, v{t+1}")
            k(f"v_sub_f32 v{t+2}, v{t}, v{t+2}")
            k(f"v_add_f32 v{t+1}, {f2u(1e-5):#x}, v{t+1}")
            k(f"v_cvt_pk_bf16_f32 v{E+1}, v{t+2}, v{t+2}")
            k(f"v_rsq_f32 v{10+m}, v{t+1}")
            k(f"v_mov_b32 v{E+2}, 0")
            k(f"v_mov_b32 v{E+3}, 0")
    def c_ext_mfma(p, regs, swap):
        FB, XBUF, WBUF, top = c_layout(p)
        k("s_nop 1")
        for j, r in enumerate(regs):
            for m in range(2):
                x = XBUF[1] + 4 * m
                a_, b_ = (r, x) if swap else (x, r)
                k(f"{MF} {vr(acc(p,m,j),4)}, {vr(a_,4)}, {vr(b_,4)}, 0")

    def c_res_to_acc():
        for i in range(10):
            k(f"v_lshlrev_b32 v{ACC+2*i}, 16, v{RES+i}")
            k(f"v_and_b32 v{ACC+2*i+1}, 0xffff0000, v{RES+i}")

    def c_small_epilogue(xdst, sdst, layadd):
        small_addr()
        k(f"s_add_u32 s29, s{S_LAY}, {xdst + layadd:#x}")
        k("s_add_u32 s30, s30, s29")
        k("s_add_u32 s31, s31, s29")
        for i in range(10):
            k(f"v_cvt_pk_bf16_f32 v{RES+i}, v{ACC+2*i}, v{ACC+2*i+1}")
        k(f"buffer_store_dwordx4 {vr(RES,4)}, v3, s[8:11], s30 offen {SC}")
        k(f"buffer_store_dwordx4 {vr(RES+4,4)}, v3, s[8:11], s30 offen offset:1024 {SC}")
        k(f"buffer_store_dwordx2 {vr(RES+8,2)}, v3, s[8:11], s31 offen {SC}")
        k(f"v_add_f32 v10, v{ACC}, v{ACC+1}")
        k(f"v_mul_f32 v11, v{ACC}, v{ACC}")
        k(f"v_add_f32 v12, v{ACC+2}, v{ACC+3}")
        k(f"v_mul_f32 v13, v{ACC+1}, v{ACC+1}")
        for i in range(2, 20):
            if i >= 4:
                k(f"v_add_f32 v{10+2*(i&1)}, v{10+2*(i&1)}, v{ACC+i}")
            k(f"v_fmac_f32 v{11+2*(i&1)}, v{ACC+i}, v{ACC+i}")
        k("v_add_f32 v10, v10, v12")
        k("v_add_f32 v11, v11, v13")
        for sw in ("v_permlane32_swap_b32", "v_permlane16_swap_b32"):
            k("v_mov_b32 v12, v10")
            k("v_mov_b32 v13, v11")
            k("s_nop 1")
            k(f"{sw} v10, v12")
            k(f"{sw} v11, v13")
            k("s_nop 0")
            k("v_add_f32 v10, v10, v12")
            k("v_add_f32 v11, v11, v13")
        k("v_lshlrev_b32 v9, 3, v7")
        k(f"s_lshl_b32 s29, s{S_CS}, 14")
        k("s_lshl_b32 s28, s28, 7")
        k("s_add_u32 s29, s29, s28")
        k(f"s_add_u32 s29, s29, s{S_LAY}")
        k(f"s_add_u32 s29, s29, {sdst + layadd:#x}")
        k("s_mov_b64 exec, 0xffff")
        k(f"buffer_store_dwordx2 v[10:11], v9, s[8:11], s29 offen {SC}")
        k("s_mov_b64 exec, -1")

    def sig_rows_big():
        k(f"s_lshr_b32 s28, s{S_RS}, 1")
        k("s_lshl_b32 s28, s28, 13")
        k("v_lshl_add_u32 v12, v1, 9, s28")
        k("s_mov_b64 exec, 0xffff")
    def idx_big():
        k(f"s_lshl_b32 s28, s{S_RB}, 4")
        k(f"s_add_u32 s28, s28, s{S_CB}")
    def idx_small():
        k(f"s_lshl_b32 s28, s{S_RS}, 3")
        k(f"s_add_u32 s28, s28, s{S_CS}")

    p = PH["qkv"]
    FB, XBUF, WBUF, top_qkv = c_layout(p)
    regs = c_ext_loads(p)
    k.label("L_c_layer")
    k("s_barrier")
    ts(0)
    c_stats(p, STA)
    k(f"s_cmp_ge_u32 s{S_CB}, 11")
    k("s_cbranch_scc1 L_c_v")
    c_ext_mfma(p, regs, True)
    c_mainloop(p, True, 0)
    k(f"v_mul_f32 v10, {f2u(SQRTC):#x}, v10")
    k(f"v_mul_f32 v11, {f2u(SQRTC):#x}, v11")
    k("v_and_b32 v9, 7, v7")
    k("v_lshrrev_b32 v12, 3, v7")
    k("v_lshl_add_u32 v9, v12, 4, v9")
    k("v_lshrrev_b32 v12, 1, v8")
    k(f"v_mul_u32_u24 v12, {UNIT}, v12")
    k("v_and_b32 v13, 1, v8")
    k("v_lshl_add_u32 v12, v13, 9, v12")
    k("v_lshl_add_u32 v12, v9, 4, v12")
    k(f"v_mul_u32_u24 v13, {UNIT}, v8")
    k("v_lshl_add_u32 v13, v9, 3, v13")
    k(f"s_mul_i32 s28, s{S_CB}, {6*UNIT}")
    k(f"s_mul_i32 s29, s{S_RB}, 10240")
    k("s_add_u32 s28, s28, s29")
    k(f"s_add_u32 s28, s28, s{S_LAY}")
    k(f"s_add_u32 s28, s28, {QKVI:#x}")
    k(f"s_lshl_b32 s29, s{S_W}, 10")
    k("s_add_u32 s30, s28, s29")
    k(f"s_and_b32 s29, s{S_W}, 1")
    k("s_lshl_b32 s29, s29, 9")
    k("s_add_u32 s31, s28, s29")
    k(f"s_lshr_b32 s29, s{S_W}, 1")
    k("s_lshl_b32 s29, s29, 8")
    k("s_add_u32 s31, s31, s29")
    k("s_add_u32 s31, s31, 4096")
    def scale_pack(a, o, r):
        k(f"v_pk_mul_f32 {vr(a,2)}, {vr(a,2)}, {vr(r,2)} op_sel:[0,{r&1}] op_sel_hi:[1,{r&1}]".replace(vr(r, 2), vr(r & ~1, 2)))
        k(f"v_pk_mul_f32 {vr(a+2,2)}, {vr(a+2,2)}, {vr(r,2)} op_sel:[0,{r&1}] op_sel_hi:[1,{r&1}]".replace(vr(r, 2), vr(r & ~1, 2)))
        k(f"v_cvt_pk_bf16_f32 v{o}, v{a}, v{a+1}")
        k(f"v_cvt_pk_bf16_f32 v{o+1}, v{a+2}, v{a+3}")
    for b in range(3):
        if b == 2:
            k(f"s_cmp_eq_u32 s{S_CB}, 10")
            k("s_cbranch_scc1 L_c_qk_skip")
        for m in range(2):
            o = FB + 8 * b + 4 * m
            scale_pack(acc(p, m, 2 * b), o, 10 + m)
            scale_pack(acc(p, m, 2 * b + 1), o + 2, 10 + m)
            k(f"buffer_store_dwordx4 {vr(o,4)}, v12, s[8:11], s30 offen offset:{128*m} {SC}")
        k(f"s_add_u32 s30, s30, {2*UNIT}")
    k(f"s_add_u32 s29, s31, {4*UNIT}")
    for m in range(2):
        scale_pack(acc(p, m, 7), FB + 28 + 2 * m, 10 + m)
    k("s_mov_b64 exec, 0xffffffff")
    for m in range(2):
        k(f"buffer_store_dwordx2 {vr(FB+28+2*m,2)}, v13, s[8:11], s29 offen offset:{64*m} {SC}")
    k("s_mov_b64 exec, -1")
    k.label("L_c_qk_skip")
    for m in range(2):
        scale_pack(acc(p, m, 6), FB + 24 + 2 * m, 10 + m)
        k(f"buffer_store_dwordx2 {vr(FB+24+2*m,2)}, v13, s[8:11], s31 offen offset:{64*m} {SC}")
    k("s_waitcnt vmcnt(0)")
    k("s_barrier")
    ts(3)
    def sig_qk():
        k("v_lshrrev_b32 v9, 3, v1")
        k("v_and_b32 v13, 7, v1")
        k(f"s_mul_i32 s28, s{S_CB}, 6")
        k("v_add_u32 v14, s28, v9")
        k("v_and_b32 v12, 31, v14")
        k("v_lshl_add_u32 v12, v12, 3, v13")
        k("v_lshlrev_b32 v12, 9, v12")
        k(f"s_lshr_b32 s28, s{S_RB}, 1")
        k("v_cmp_eq_u32 s[30:31], s28, v13")
        k("v_cmp_le_u32 vcc, 32, v14")
        k("s_or_b64 s[30:31], s[30:31], vcc")
        k("v_cmp_gt_u32 vcc, 64, v14")
        k("s_and_b64 s[30:31], s[30:31], vcc")
        k("v_cmp_gt_u32 vcc, 6, v9")
        k("s_and_b64 exec, s[30:31], vcc")
    signal(0, sig_qk)
    k("s_branch L_c_attn")

    k.label("L_c_v")
    c_ext_mfma(p, regs, False)
    k(f"s_lshl_b32 s28, s{S_W}, 7")
    k(f"s_add_u32 s28, s28, {SCRATCH}")
    k("v_lshl_add_u32 v9, v7, 2, s28")
    k("ds_write_b32 v9, v10")
    k("ds_write_b32 v9, v11 offset:64")
    k("v_lshl_add_u32 v9, v8, 4, s28")
    k("s_waitcnt lgkmcnt(0)")
    RSV = top_qkv
    k(f"ds_read_b128 {vr(RSV,4)}, v9")
    k(f"ds_read_b128 {vr(RSV+4,4)}, v9 offset:64")
    c_mainloop(p, False, 0)
    k(f"s_mul_i32 s28, s{S_RB}, 10240")
    k(f"s_mul_i32 s29, s{S_W}, 1280")
    k("s_add_u32 s28, s28, s29")
    k(f"s_add_u32 s28, s28, s{S_LAY}")
    k(f"s_add_u32 s28, s28, {QKVI + 32*UNIT + 5120:#x}")
    k(f"s_sub_u32 s29, s{S_CB}, 11")
    k("s_lshl_b32 s29, s29, 7")
    k("v_mul_u32_u24 v9, 320, v8")
    k("v_add_u32 v10, s29, v7")
    for j in range(8):
        o = FB + 4 * j
        k("v_mul_u32_u24 v12, 3277, v10")
        k("v_lshrrev_b32 v12, 16, v12")
        k(f"v_mul_u32_u24 v13, {UNIT-320}, v12")
        k("v_lshl_add_u32 v13, v10, 4, v13")
        k(f"v_add_u32 v{FB+40+j}, v13, v9")
        k("v_add_u32 v10, 16, v10")
        for m in range(2):
            a = acc(p, m, j)
            k(f"v_pk_mul_f32 {vr(a,2)}, {vr(a,2)}, {vr(RSV+4*m,2)}")
            k(f"v_pk_mul_f32 {vr(a+2,2)}, {vr(a+2,2)}, {vr(RSV+4*m+2,2)}")
            k(f"v_cvt_pk_bf16_f32 v{o+2*m}, v{a}, v{a+1}")
            k(f"v_cvt_pk_bf16_f32 v{o+2*m+1}, v{a+2}, v{a+3}")
        k(f"buffer_store_dwordx4 {vr(o,4)}, v{FB+40+j}, s[8:11], s28 offen {SC}")
    k("s_waitcnt vmcnt(0)")
    k("s_barrier")
    ts(3)
    def sig_v():
        k(f"s_sub_u32 s28, s{S_CB}, 11")
        k("s_lshl_b32 s30, s28, 7")
        k("s_mul_i32 s31, s30, 3277")
        k("s_lshr_b32 s31, s31, 16")
        k("s_add_u32 s30, s30, 127")
        k("s_mul_i32 s30, s30, 3277")
        k("s_lshr_b32 s30, s30, 16")
        k("s_and_b32 s28, s28, 1")
        k("s_lshl_b32 s28, s28, 7")
        k("s_add_u32 s28, s28, 128")
        k("s_lshl_b32 s29, s31, 12")
        k("s_add_u32 s28, s28, s29")
        k("v_lshl_add_u32 v12, v1, 9, s28")
        k("v_lshrrev_b32 v9, 3, v1")
        k("v_add_u32 v9, s31, v9")
        k("v_cmp_ge_u32 vcc, s30, v9")
        k("s_mov_b64 exec, vcc")
    signal(0, sig_v)

    k.label("L_c_attn")
    M16 = "v_mfma_f32_32x32x16_bf16"
    M8 = "v_mfma_f32_32x32x8_bf16"
    QL = [32, 36]; QHA = [40, 42]; QHB = [44, 46]
    S = [48, 64]; O = [80, 96]; NM = [112, 128]; P = 144
    KL = [152, 156]; KH = 160; V = [164, 172]
    A3, A4, A5, A6, A7, A8 = 26, 27, 28, 29, 30, 31
    def idx_attn():
        k(f"s_mul_i32 s28, s{S_HD}, 20")
        k("s_add_u32 s29, s28, 19")
        k("s_lshr_b32 s28, s28, 7")
        k("s_lshr_b32 s29, s29, 7")
        k("s_and_b32 s30, s28, s29")
        k("s_or_b32 s31, s28, s29")
        k("s_and_b32 s30, s30, 1")
        k("s_xor_b32 s30, s30, 1")
        k("s_lshl_b32 s30, s30, 4")
        k("s_and_b32 s31, s31, 1")
        k("s_lshl_b32 s31, s31, 4")
        k("v_mov_b32 v13, 0")
        k("v_writelane_b32 v13, 18, 0")
        k("v_writelane_b32 v13, s30, 1")
        k("v_writelane_b32 v13, s31, 2")
        k(f"s_lshl_b32 s28, s{S_HD}, 3")
        k(f"s_add_u32 s28, s28, s{S_QB}")
    k(f"v_mov_b32 v{A3}, v3")
    k(f"v_and_b32 v{A6}, 31, v1")
    k(f"v_lshrrev_b32 v{A7}, 5, v1")
    k(f"v_lshlrev_b32 v{A4}, 3, v1")
    k(f"v_lshlrev_b32 v{A8}, 3, v{A6}")
    k(f"v_mul_u32_u24 v{A5}, 320, v{A7}")
    k(f"v_lshl_add_u32 v{A5}, v{A6}, 4, v{A5}")
    k("s_mov_b32 s40, 0x000fffff")
    k("s_mov_b32 s41, 0x000fffff")
    k("s_mov_b32 s42, 0x01100000")
    k("s_mov_b32 s43, 0x01100000")
    k("s_mov_b32 s44, 0")
    k("s_mov_b32 s45, -1")
    k("v_mov_b32 v9, 0x3f803f80")
    k("v_cndmask_b32 v9, 0, v9, s[42:43]")
    for i in range(16):
        k(f"v_mov_b32 v{V[0]+i}, v9")
    k("s_mov_b32 s46, 0")
    k("s_mov_b32 s47, 0x89")
    k("s_movk_i32 s48, 10240")
    poll(0, idx_attn)
    k(f"s_mul_i32 s28, s{S_HD}, {UNIT}")
    k(f"s_lshl_b32 s29, s{S_QB}, 1")
    k(f"s_lshr_b32 s30, s{S_W}, 1")
    k("s_add_u32 s29, s29, s30")
    k("s_mul_i32 s29, s29, 10240")
    k("s_add_u32 s28, s28, s29")
    k(f"s_add_u32 s28, s28, s{S_LAY}")
    k(f"s_add_u32 s28, s28, {QKVI:#x}")
    k(f"s_and_b32 s30, s{S_W}, 1")
    k("s_lshl_b32 s29, s30, 11")
    k("s_add_u32 s29, s29, s28")
    k("s_lshl_b32 s30, s30, 8")
    k("s_add_u32 s30, s30, s28")
    k("s_add_u32 s30, s30, 4096")
    k("s_barrier")
    ts(4)
    for q in range(2):
        k(f"buffer_load_dwordx4 {vr(QL[q],4)}, v3, s[8:11], s29 offen offset:{1024*q} {LSC}")
        k(f"buffer_load_dwordx2 {vr(QHA[q],2)}, v{A8}, s[8:11], s30 offen offset:{512*q} {LSC}")
    def rdK(b, t):
        c, tt = divmod(t, 4)
        return f"ds_read_b128 {vr(KL[b],4)}, v{A3} offset:{c*10240 + tt*1024}"
    def rdH(pp, c):
        return f"ds_read_b64 {vr(KH+2*pp,2)}, v{A4} offset:{c*10240 + 4096 + pp*512}"
    def rdV(b, t):
        c, tt = divmod(t, 4)
        o = c * 10240 + 5120 + tt * 1280
        return ["s_mov_b64 exec, s[40:41]",
                f"ds_read_b128 {vr(V[b],4)}, v{A5} offset:{o}",
                f"ds_read_b128 {vr(V[b]+4,4)}, v{A5} offset:{o+640}",
                "s_mov_b64 exec, -1"]
    def smfma(sb, t, q, c):
        qh = QHA[q] if (t & 3) < 2 else QHB[q]
        return [f"{M16} {vr(S[sb],16)}, {vr(KL[t&1],4)}, {vr(QL[q],4)}, {c}",
                f"{M8} {vr(S[sb],16)}, {vr(KH+2*(t&1),2)}, {vr(qh,2)}, {vr(S[sb],16)}"]
    def rowmax_into(dst, sb, first):
        s = S[sb]
        if first:
            k(f"v_max3_f32 v{dst}, v{s}, v{s+1}, v{s+2}")
            rest = list(range(3, 16))
        else:
            rest = list(range(16))
        while len(rest) >= 2:
            k(f"v_max3_f32 v{dst}, v{dst}, v{s+rest[0]}, v{s+rest[1]}")
            rest = rest[2:]
        if rest:
            k(f"v_max_f32 v{dst}, v{dst}, v{s+rest[0]}")
    k("s_waitcnt vmcnt(0)")
    for q in range(2):
        for i in range(2):
            k(f"v_cndmask_b32 v{QHB[q]+i}, 0, v{QHA[q]+i}, s[44:45]")
            k(f"v_cndmask_b32 v{QHA[q]+i}, v{QHA[q]+i}, 0, s[44:45]")
    k("s_barrier")
    ts(5)
    k(rdK(0, 0))
    k(rdH(0, 0))
    k("s_waitcnt lgkmcnt(0)")
    for q in range(2):
        for x in smfma(q, 0, q, "0"):
            k(x)
    k.nop(12)
    rowmax_into(10, 0, True)
    rowmax_into(11, 1, True)
    k.label("L_attn_start")
    for x in [rdK(0, 0), rdH(0, 0), rdK(1, 1), rdH(1, 0)] + rdV(0, 0) + rdV(1, 0):
        k(x)
    k("v_mov_b32 v12, v10")
    k("v_mov_b32 v13, v11")
    k("s_nop 1")
    k("v_permlane32_swap_b32 v10, v12")
    k("v_permlane32_swap_b32 v11, v13")
    k("s_nop 1")
    k("v_max_f32 v10, v10, v12")
    k("v_max_f32 v11, v11, v13")
    k("v_sub_f32 v10, 0, v10")
    k("v_sub_f32 v11, 0, v11")
    for i in range(16):
        k(f"v_mov_b32 v{NM[0]+i}, v10")
    k("s_waitcnt lgkmcnt(0)")
    k("s_nop 0")
    for x in smfma(0, 0, 0, vr(NM[0], 16)):
        k(x)
    for i in range(16):
        k(f"v_mov_b32 v{NM[1]+i}, v11")
        k(f"v_mov_b32 v{O[0]+i}, 0")
        k(f"v_mov_b32 v{O[1]+i}, 0")
    for i in range(4):
        k(f"v_mov_b32 v{P+4+i}, 0")
    k("s_mov_b32 s36, 0")
    k(f"v_exp_f32 v{S[0]}, v{S[0]}")
    k(f"v_exp_f32 v{S[0]+1}, v{S[0]+1}")
    k(".p2align 6")
    k.label("L_attn_loop")
    for t in range(4):
        for q in range(2):
            a = S[q]
            nt, nq = (t, 1) if q == 0 else (t + 1, 0)
            pt, pq = (t - 1, 1) if q == 0 else (t, 0)
            sm = smfma(nq, nt, nq, vr(NM[nq], 16))
            ex = [f"v_exp_f32 v{a+i}, v{a+i}" for i in range(16)]
            cv = [f"v_cvt_pk_bf16_f32 v{P+i}, v{a+2*i}, v{a+2*i+1}" for i in range(8)]
            nex = [f"v_exp_f32 v{S[nq]+i}, v{S[nq]+i}" for i in range(2)]
            pvb = f"{M16} {vr(O[pq],16)}, {vr(V[pt&1]+4,4)}, {vr(P+4,4)}, {vr(O[pq],16)}"
            pva = f"{M16} {vr(O[q],16)}, {vr(V[t&1],4)}, {vr(P,4)}, {vr(O[q],16)}"
            g1 = ex[2:6] + cv[0:2]
            g2 = ex[6:10] + cv[2:4]
            g3 = ex[10:14] + cv[4:6]
            g4 = ex[14:16] + cv[6:8] + nex
            if q == 0:
                if t == 2:
                    g1[1:1] = ["s_lshl_b32 s37, 1, s36"]
                    g1[3:3] = ["s_and_b32 s37, s37, s47"]
                    g1[5:5] = ["s_cbranch_scc1 L_attn_ck", "LABEL L_attn_ckret"]
                g2[2:2] = ["s_waitcnt lgkmcnt(0)"]
                g3[0:0] = rdV((t + 1) & 1, t + 1)
                if t >= 2:
                    g4[0:0] = [rdH(t & 1, 1)]
            else:
                g1[0:0] = [rdK(t & 1, t + 2)]
                if t == 3:
                    g2[1:1] = ["s_add_u32 s36, s36, 1"]
                    g2[3:3] = ["s_cmp_lg_u32 s36, 16"]
                    g3 += [f"v_add_u32 v{x}, s48, v{x}" for x in (A3, A4, A5)]
            for x in [sm[0]] + g1 + [sm[1]] + g2 + [pvb] + g3 + [pva] + g4:
                k(x)
    k("s_cbranch_scc1 L_attn_loop")
    k(f"{M16} {vr(O[1],16)}, {vr(V[1]+4,4)}, {vr(P+4,4)}, {vr(O[1],16)}")
    k("s_waitcnt lgkmcnt(0)")
    ts(6)
    for x in (A3, A4, A5):
        k(f"v_subrev_u32 v{x}, {UNIT}, v{x}")
    k(f"v_bfe_u32 v9, v{A6}, 3, 1")
    k("v_mul_u32_u24 v9, 20480, v9")
    k(f"v_and_b32 v12, 7, v{A6}")
    k("v_lshl_add_u32 v9, v12, 4, v9")
    k(f"v_lshrrev_b32 v12, 4, v{A6}")
    k("v_lshl_add_u32 v9, v12, 7, v9")
    k(f"v_lshl_add_u32 v14, v{A7}, 8, v9")
    k(f"s_lshl_b32 s28, s{S_QB}, 2")
    k(f"s_add_u32 s28, s28, s{S_W}")
    k("s_mul_i32 s28, s28, 81920")
    k(f"s_add_u32 s28, s28, s{S_LAY}")
    k(f"s_add_u32 s28, s28, {OF:#x}")
    k(f"s_lshl_b32 s29, s{S_HD}, 9")
    k("s_add_u32 s29, s29, s28")
    k(f"s_lshr_b32 s30, s{S_HD}, 1")
    k("s_lshl_b32 s30, s30, 8")
    k(f"s_and_b32 s31, s{S_HD}, 1")
    k("s_lshl_b32 s31, s31, 3")
    k("s_add_u32 s30, s30, s31")
    k("s_add_u32 s30, s30, s28")
    k("s_add_u32 s30, s30, 16384")
    for q in range(2):
        k(f"v_cndmask_b32 v{10+q}, v{O[q]+12}, v{O[q]+8}, s[44:45]")
    k("v_mul_f32 v12, 0, v10")
    k("v_mul_f32 v13, 0, v11")
    for i in range(12):
        k(f"v_fma_f32 v12, v{O[0]+i}, 0, v12")
        k(f"v_fma_f32 v13, v{O[1]+i}, 0, v13")
    k("v_cmp_u_f32 vcc, v12, v13")
    k("v_rcp_f32 v10, v10")
    k("v_rcp_f32 v11, v11")
    k("s_cmp_lg_u32 s46, 0")
    k("s_cbranch_scc1 L_attn_out")
    k("s_cbranch_vccnz L_attn_slow")
    k.label("L_attn_out")
    for q in range(2):
        o = S[q]
        for i in range(3):
            scale_pack(O[q] + 4 * i, o + 2 * i, 10 + q)
        k(f"buffer_store_dwordx4 {vr(o,4)}, v14, s[8:11], s29 offen {SC}")
        k("s_mov_b64 exec, 0xffffffff")
        k(f"buffer_store_dwordx2 {vr(o+4,2)}, v9, s[8:11], s30 offen {SC}")
        k("s_mov_b64 exec, -1")
        if q == 0:
            k("s_add_u32 s29, s29, 40960")
            k("s_add_u32 s30, s30, 40960")
    c_res_to_acc()
    k(f"s_mov_b32 s{S_SLOT}, 0")
    k("s_waitcnt vmcnt(0)")
    k("s_barrier")
    ts(7)
    def sig_attn():
        k(f"s_lshl_b32 s28, s{S_QB}, 14")
        k(f"s_and_b32 s29, s{S_HD}, 1")
        k("s_lshl_b32 s29, s29, 7")
        k("s_add_u32 s28, s28, s29")
        k("v_lshl_add_u32 v12, v1, 9, s28")
        k("s_mov_b64 exec, 0xffffffff")
    signal(1, sig_attn)

    targets([16, 16])
    poll(1, idx_small)
    k("s_barrier")
    ts(8)
    c_mainloop(PH["wo"], True, 8)
    k.nop(4)
    c_small_epilogue(XB, STB, 0)
    k("s_waitcnt vmcnt(0)")
    k("s_barrier")
    ts(11)
    signal(2, sig_rows_big)

    p = PH["gu"]
    FB, XBUF, WBUF, top_gu = c_layout(p)
    regs = c_ext_loads(p)
    targets([16])
    poll(2, idx_big)
    k("s_barrier")
    ts(12)
    c_stats(p, STB)
    c_ext_mfma(p, regs, True)
    c_mainloop(p, True, 12)
    k("v_mul_f32 v10, v10, v10")
    k("v_mul_f32 v11, v11, v11")
    k(f"s_lshl_b32 s28, s{S_RB}, 2")
    k(f"s_add_u32 s28, s28, s{S_W}")
    k(f"s_mul_i32 s28, s28, {2*55296}")
    k(f"s_add_u32 s28, s28, s{S_LAY}")
    k(f"s_add_u32 s28, s28, {HF:#x}")
    k(f"s_mul_i32 s29, s{S_CB}, 3072")
    k("s_add_u32 s30, s28, s29")
    k("s_add_u32 s31, s30, 55296")
    k(f"s_lshr_b32 s29, s{S_CB}, 1")
    k("s_lshl_b32 s29, s29, 10")
    k("s_add_u32 s28, s28, s29")
    k(f"s_and_b32 s29, s{S_CB}, 1")
    k("s_lshl_b32 s29, s29, 3")
    k("s_add_u32 s28, s28, s29")
    k(f"s_add_u32 s28, s28, {46*1024}")
    k("s_add_u32 s29, s28, 55296")
    def glu(m, b, o):
        g_, u_ = acc(p, m, 2 * b), acc(p, m, 2 * b + 1)
        for i in range(4):
            k(f"v_max_f32 v{g_+i}, 0, v{g_+i}")
        for i in (0, 2):
            k(f"v_pk_mul_f32 {vr(g_+i,2)}, {vr(g_+i,2)}, {vr(u_+i,2)}")
        scale_pack(g_, o, 10 + m)
    for m in range(2):
        glu(m, 6, FB + 2 * m)
        k(f"buffer_store_dwordx2 {vr(FB+2*m,2)}, v3, s[8:11], s{28+m} offen {SC}")
    for j in range(3):
        for m in range(2):
            o = FB + 4 + 8 * j + 4 * m
            glu(m, 2 * j, o)
            glu(m, 2 * j + 1, o + 2)
            k(f"buffer_store_dwordx4 {vr(o,4)}, v3, s[8:11], s{30+m} offen offset:{1024*j} {SC}")
        if j == 0:
            k(f"s_cmp_eq_u32 s{S_CB}, 15")
            k("s_cbranch_scc1 L_c_gu_skip")
    k.label("L_c_gu_skip")
    c_res_to_acc()
    k("s_waitcnt vmcnt(0)")
    k("s_barrier")
    ts(15)
    def sig_gu():
        k(f"s_lshl_b32 s28, s{S_RB}, 13")
        k("v_lshl_add_u32 v12, v1, 9, s28")
        k("s_mov_b64 exec, 0xffff")
    signal(3, sig_gu)

    targets([16])
    poll(3, idx_small)
    k("s_barrier")
    ts(16)
    c_mainloop(PH["down"], True, 16)
    k(f"s_cmp_lg_u32 s{S_LAY}, 0")
    k("s_cbranch_scc1 L_c_final")
    k.nop(2)
    c_small_epilogue(XA, STA, LSTR)
    k("s_waitcnt vmcnt(0)")
    k("s_barrier")
    ts(19)
    signal(4, sig_rows_big)
    c_ext_loads(PH["qkv"])
    targets([16])
    poll(4, idx_big)
    k(f"s_mov_b32 s{S_LAY}, {LSTR:#x}")
    k(f"s_mov_b32 s{S_SEAM}, 20")
    k(f"s_add_u32 s{S_TS}, s{S_TS}, 160")
    k("s_branch L_c_layer")

    k.label("L_c_final")
    k("v_mul_u32_u24 v9, 1280, v7")
    k("v_lshl_add_u32 v9, v8, 3, v9")
    k(f"s_lshl_b32 s28, s{S_RS}, 2")
    k(f"s_add_u32 s28, s28, s{S_W}")
    k(f"s_mul_i32 s28, s28, {16*1280}")
    k(f"s_mul_i32 s29, s{S_CS}, 160")
    k("s_add_u32 s28, s28, s29")
    for i in range(10):
        k(f"v_cvt_pk_bf16_f32 v{RES+i}, v{ACC+2*i}, v{ACC+2*i+1}")
    for j in range(5):
        k(f"buffer_store_dwordx2 {vr(RES+2*j,2)}, v9, s[24:27], s28 offen offset:{32*j}")
    if INSTR:
        k("s_waitcnt vmcnt(0)")
        ts(19)
    k.label(L_end)
    k("s_endpgm")

    k.label("L_attn_ck")
    k("s_barrier")
    k("s_branch L_attn_ckret")

    k.label("L_attn_slow")
    k("s_mov_b32 s46, 1")
    k("s_mov_b32 s47, 0")
    k("v_mov_b32 v10, 0xff800000")
    k("v_mov_b32 v11, 0xff800000")
    k("s_mov_b32 s36, 0")
    k.label("L_attn_slow_loop")
    k(rdH(0, 0))
    k(rdH(1, 0))
    for t in range(4):
        k(rdK(t & 1, t))
        k("s_waitcnt lgkmcnt(0)")
        for q in range(2):
            for x in smfma(q, t, q, "0"):
                k(x)
        k.nop(16)
        rowmax_into(10, 0, False)
        rowmax_into(11, 1, False)
    k(f"v_add_u32 v{A3}, s48, v{A3}")
    k(f"v_add_u32 v{A4}, s48, v{A4}")
    k("s_add_u32 s36, s36, 1")
    k("s_cmp_lg_u32 s36, 16")
    k("s_cbranch_scc1 L_attn_slow_loop")
    k(f"v_subrev_u32 v{A3}, {UNIT}, v{A3}")
    k(f"v_subrev_u32 v{A4}, {UNIT}, v{A4}")
    k("s_branch L_attn_start")
    return k.text(256 if INSTR else max(top_gu, top_qkv + 8, 180))


def main(out):
    hdr = open("cdna_kernels/" + NAME + ".s.ref").read().split("\n")
    hdr = [l for l in hdr if l.startswith(";") and "@launch" not in l and "Override launch" not in l and "grid=ceil" not in l]
    prep, nprep = gen_prep()
    mega = gen_mega()
    L = [f"; @launch kernel=prep_kernel grid=({nprep},1,1) block=(256,1,1) lds=2048",
         f"; @launch kernel=mega_kernel grid=(256,1,1) block=(512,1,1) lds={UNIT}"]
    txt = "\n".join(hdr + L) + "\n" + '.amdgcn_target "amdgcn-amd-amdhsa--gfx950"\n'
    txt += prep + mega
    open(out, "w").write(txt)


if __name__ == "__main__":
    main(sys.argv[1] if len(sys.argv) > 1 else "cdna_kernels/" + NAME + ".s")
```

```python
import math, struct, sys, os

NAME = "interleave_layers__mha_block__glu_gated_reglu__prompt"
INSTR = os.environ.get("INSTR", "0") == "1"

WQKV_F = 0x0000000
WGU_F  = 0x0300000
WO_F   = 0x0800000
WD_F   = 0x0900000
CNT    = 0x0C00000
LBASE  = 0x1000000
LSTR   = 0x2000000
XA     = LBASE + 0x0000000
STA    = LBASE + 0x0280000
XB     = XA
STB    = STA
QKVI   = LBASE + 0x0600000
OF     = LBASE + 0x1000000
HF     = LBASE + 0x1300000
TSBUF  = 0x8000000
WS_SIZE = 0x10000000
UNIT = 163840
SLOT = 49152
SCRATCH = 3 * SLOT
SC = "sc0 sc1"
LSC = os.environ.get("LSC", "sc1")

def f2u(x):
    return struct.unpack("<I", struct.pack("<f", x))[0]

SQRTC = math.sqrt(math.log2(math.e) / math.sqrt(20.0))
MF = "v_mfma_f32_16x16x32_bf16"
ROT = int(os.environ.get("ROT", "0"))
CK2 = int(os.environ.get("CK2", "2"))
PF = int(os.environ.get("PF", "0"))
WARM = int(os.environ.get("WARM", "1"))
LPRIO = int(os.environ.get("LPRIO", "0"))
TOUCH = int(os.environ.get("TOUCH", "3"))
W2LATE = int(os.environ.get("W2LATE", "7"))
POLL2 = int(os.environ.get("POLL2", "0"))


class K:
    def __init__(self, name):
        self.name = name
        self.l = []
        self.nlab = 0
    def __call__(self, s):
        for x in s.split("\n"):
            x = x.strip()
            if x.startswith("LABEL "):
                self.l.append(x.split()[1] + ":")
            elif x:
                self.l.append("    " + x)
    def label(self, s):
        self.l.append(s + ":")
    def newlabel(self, p="L"):
        self.nlab += 1
        return f"{p}_{self.name}_{self.nlab}"
    def nop(self, n):
        while n > 0:
            m = min(n, 16)
            self(f"s_nop {m-1}")
            n -= m
    def text(self, vgpr, sgpr=96):
        acc = (vgpr + 3) // 4 * 4
        kn = self.name + "_kernel"
        t = [".text", f".globl {kn}", ".p2align 8", f".type {kn},@function", f"{kn}:"]
        t += self.l
        d = ['.section .rodata,"a"', ".p2align 6", f".amdhsa_kernel {kn}",
             f"  .amdhsa_next_free_vgpr {vgpr}", f"  .amdhsa_next_free_sgpr {sgpr}",
             f"  .amdhsa_accum_offset {acc}", "  .amdhsa_group_segment_fixed_size 0",
             "  .amdhsa_kernarg_size 80", "  .amdhsa_user_sgpr_count 2",
             "  .amdhsa_user_sgpr_kernarg_segment_ptr 1", "  .amdhsa_system_sgpr_workgroup_id_x 1",
             ".end_amdhsa_kernel"]
        return "\n".join(t + d) + "\n"


def vr(b, n):
    return f"v[{b}:{b+n-1}]" if n > 1 else f"v{b}"

def srd(k, d, base, size):
    k(f"s_mov_b32 s{d}, s{base}")
    k(f"s_mov_b32 s{d+1}, s{base+1}")
    k(f"s_mov_b32 s{d+2}, {size:#x}")
    k(f"s_mov_b32 s{d+3}, 0x00020000")


def prep_rows(k, kind, sb):
    t = lambda i: f"s{sb+2+i}"
    for i in range(5):
        P, G4, S_, r0, r1, u, w = t(0), t(1), t(2), t(3), t(4), t(5), t(6)
        k(f"s_add_u32 {P}, s{sb+23}, {i}")
        if kind == "wd":
            k(f"s_min_u32 {P}, {P}, 215")
        k(f"s_and_b32 {G4}, {P}, 3")
        k(f"s_lshl_b32 {G4}, {G4}, 2")
        k(f"s_lshr_b32 {S_}, {P}, 2")
        if kind in ("x", "wd"):
            if kind == "x":
                k(f"s_lshr_b32 {r0}, {S_}, 1")
                k(f"s_and_b32 {r1}, {S_}, 1")
                tw, lim, sub = 80, 16, 2560 - 64
            else:
                k(f"s_mul_i32 {r0}, {S_}, 86")
                k(f"s_lshr_b32 {r0}, {r0}, 8")
                k(f"s_mul_i32 {r1}, {r0}, 3")
                k(f"s_sub_u32 {r1}, {S_}, {r1}")
                tw, lim, sub = 112, 46, 224 * 46 - 96
            k(f"s_mul_i32 {r0}, {r0}, {tw}")
            k(f"s_lshl_b32 {r1}, {r1}, 5")
            k(f"s_add_u32 {r0}, {r0}, {r1}")
            k(f"s_add_u32 {r0}, {r0}, {G4}")
            k(f"s_lshr_b32 {u}, {P}, 1")
            k(f"s_mul_i32 {u}, {u}, {tw}")
            k(f"s_sub_u32 {u}, {u}, {sub}")
            if kind == "wd":
                k(f"s_min_u32 {u}, {u}, 1712")
            k(f"s_and_b32 {w}, {P}, 1")
            k(f"s_lshl_b32 {w}, {w}, 3")
            k(f"s_add_u32 {u}, {u}, {w}")
            k(f"s_cmp_ge_u32 {S_}, {lim}")
            k(f"s_cselect_b32 {r0}, {u}, {r0}")
            k(f"s_cselect_b32 {r1}, 4, 16")
            k(f"s_add_u32 {r1}, {r0}, {r1}")
        else:
            k(f"s_sub_u32 {S_}, {P}, 8")
            k(f"s_lshr_b32 {r0}, {S_}, 1")
            k(f"s_mul_i32 {r0}, {r0}, 20")
            k(f"s_and_b32 {r1}, {P}, 1")
            k(f"s_lshl_b32 {r1}, {r1}, 2")
            k(f"s_add_u32 {r0}, {r0}, {r1}")
            k(f"s_and_b32 {u}, {P}, 15")
            k(f"s_mul_i32 {u}, {u}, 40")
            k(f"s_add_u32 {u}, {u}, 16")
            k(f"s_cmp_ge_u32 {S_}, 64")
            k(f"s_cselect_b32 {r0}, {u}, {r0}")
            k(f"s_cselect_b32 {r1}, 20, 8")
            k(f"s_add_u32 {r1}, {r0}, {r1}")
        k(f"s_mul_i32 s{sb+10+2*i}, {r0}, s{sb+20}")
        k(f"s_mul_i32 s{sb+11+2*i}, {r1}, s{sb+20}")

def prep_loads(k, sb, vb, v0):
    for i in range(5):
        for j in range(8):
            sreg = f"s{sb+10+2*i+(j>>2)}"
            k(f"buffer_load_ushort v{v0+8*i+j}, v{vb}, s[{sb+24}:{sb+27}], {sreg} offen")
            if j not in (3, 7):
                k(f"s_add_u32 {sreg}, {sreg}, s{sb+20}")

def prep_finish(k, sb, vb, NP, sc, npieces_reg, colsum_reg):
    done, nocs = k.newlabel(), k.newlabel()
    k(f"s_lshl_b32 s{sb+2}, s{sb+1}, 8")
    for i in range(NP):
        a = vb + 16 + 8 * i
        o = vb + 8 + 4 * (i & 1)
        if i:
            k(f"s_add_u32 s{sb+3}, s{sb+1}, {i}")
            k(f"s_cmp_ge_u32 s{sb+3}, {npieces_reg}")
            k(f"s_cbranch_scc1 {done}")
        for j in range(4):
            k(f"v_lshl_or_b32 v{o+j}, v{a+2*j+1}, 16, v{a+2*j}")
        k(f"buffer_store_dwordx4 {vr(o,4)}, v{vb+1}, s[8:11], s{sb+2} offen offset:{i*256} {sc}")
    k.label(done)
    k(f"s_cmp_eq_u32 {colsum_reg}, 0")
    k(f"s_cbranch_scc1 {nocs}")
    e = vb + 16
    for r in range(0, 8 * NP, 2):
        k(f"v_lshlrev_b32 v{e+r}, 16, v{e+r}")
        k(f"v_lshlrev_b32 v{e+r+1}, 16, v{e+r+1}")
        if r:
            k(f"v_pk_add_f32 {vr(e,2)}, {vr(e,2)}, {vr(e+r,2)}")
    k(f"v_add_f32 v{e}, v{e}, v{e+1}")
    lg = 2 if NP == 5 else 1
    k(f"s_lshr_b32 s{sb+2}, s{sb}, {lg}")
    k(f"s_lshl_b32 s{sb+2}, s{sb+2}, {6+lg}")
    k(f"s_and_b32 s{sb+3}, s{sb}, {(1<<lg)-1}")
    k(f"s_lshl_b32 s{sb+3}, s{sb+3}, 2")
    k(f"s_add_u32 s{sb+2}, s{sb+2}, s{sb+3}")
    k(f"s_add_u32 s{sb+2}, s{sb+2}, {20*1024}")
    k(f"buffer_store_dword v{e}, v{vb+2}, s[8:11], s{sb+2} offen {sc}")
    k.label(nocs)


def gen_prep():
    k = K("prep")
    NWG = 246
    L_end = "L_prep_end"
    sb, vb = 40, 16
    k(f"s_cmp_ge_u32 s2, {NWG}")
    k(f"s_cbranch_scc1 {L_end}")
    k("s_load_dwordx4 s[24:27], s[0:1], 0")
    k("s_load_dwordx2 s[4:5], s[0:1], 72")
    k("v_and_b32 v1, 63, v0")
    k("v_lshrrev_b32 v2, 6, v0")
    k("s_nop 0")
    k("v_readfirstlane_b32 s12, v2")
    if WARM:
        k("s_getpc_b64 s[28:29]")
        k.label("L_prep_pc")
        k("s_add_u32 s28, s28, mega_kernel - L_prep_pc")
        k("s_addc_u32 s29, s29, 0")
        k("s_lshr_b32 s30, s2, 3")
        k("s_mul_i32 s30, s30, 3")
        k("s_add_u32 s30, s30, s12")
        k("s_lshl_b32 s30, s30, 9")
        k("s_min_u32 s30, s30, L_mega_last - mega_kernel - 512")
        k("v_lshl_add_u32 v4, v1, 3, s30")
        k("global_load_dwordx2 v[86:87], v4, s[28:29]")
    k(f"s_mul_i32 s12, s12, {NWG}")
    k("s_add_u32 s12, s12, s2")
    k("s_cmp_ge_u32 s12, 480")
    k("s_cbranch_scc1 L_prep_x")
    k(f"s_and_b32 s{sb}, s12, 15")
    k(f"s_mul_i32 s{sb+1}, s{sb}, 5")
    k(f"s_mov_b32 s{sb+23}, s{sb+1}")
    k("s_lshr_b32 s22, s12, 4")
    k("s_lshl_b32 s22, s22, 6")
    k(f"s_movk_i32 s{sb+20}, 3840")
    k("v_add_u32 v5, s22, v1")
    k(f"v_lshlrev_b32 v{vb}, 1, v5")
    prep_rows(k, "x", sb)
    k("s_waitcnt lgkmcnt(0)")
    srd(k, sb + 24, 26, 640 * 3840)
    srd(k, 8, 4, WS_SIZE)
    prep_loads(k, sb, vb, vb + 16)
    k("v_mul_u32_u24 v6, 3277, v5")
    k("v_lshrrev_b32 v6, 16, v6")
    k("v_mul_u32_u24 v7, 20, v6")
    k("v_sub_u32 v7, v5, v7")
    k("v_mul_u32_u24 v8, 43, v6")
    k("v_lshrrev_b32 v8, 8, v8")
    k("v_mul_u32_u24 v9, 6, v8")
    k("v_sub_u32 v9, v6, v9")
    k("v_and_b32 v10, 6, v9")
    k("v_bfe_u32 v11, v7, 2, 1")
    k("v_add_u32 v10, v10, v11")
    k("v_and_b32 v11, 1, v9")
    k("v_lshlrev_b32 v12, 3, v11")
    k("v_bfe_u32 v11, v7, 3, 1")
    k("v_lshl_add_u32 v12, v11, 2, v12")
    k("v_lshrrev_b32 v14, 2, v9")
    k("v_add_u32 v14, 6, v14")
    k("v_and_b32 v15, 3, v9")
    k("v_lshlrev_b32 v15, 2, v15")
    k("v_cmp_le_u32 s[30:31], 16, v7")
    k("s_nop 1")
    k("v_cndmask_b32 v10, v10, v14, s[30:31]")
    k("v_cndmask_b32 v12, v12, v15, s[30:31]")
    k("v_and_b32 v13, 3, v7")
    k("v_add_u32 v12, v12, v13")
    k("v_lshl_add_u32 v10, v8, 3, v10")
    k("v_lshrrev_b32 v14, 4, v5")
    k("v_add_u32 v14, 8, v14")
    k("v_and_b32 v15, 15, v5")
    k("s_movk_i32 s30, 1280")
    k("v_cmp_le_u32 s[30:31], s30, v5")
    k("s_nop 1")
    k("v_cndmask_b32 v10, v10, v14, s[30:31]")
    k("v_cndmask_b32 v12, v12, v15, s[30:31]")
    k(f"v_mul_u32_u24 v{vb+1}, 21504, v10")
    k(f"v_lshl_add_u32 v{vb+1}, v12, 4, v{vb+1}")
    k(f"v_mov_b32 v{vb+2}, v{vb+1}")
    k("s_waitcnt vmcnt(0)")
    prep_finish(k, sb, vb, 5, "", "80", "1")
    k("s_endpgm")

    k.label("L_prep_x")
    k("s_sub_u32 s22, s12, 480")
    k("s_cmp_ge_u32 s22, 256")
    k(f"s_cbranch_scc1 {L_end}")
    k("s_and_b32 s23, s22, 1")
    k("s_lshl_b32 s23, s23, 3")
    k("v_lshrrev_b32 v5, 3, v1")
    k("v_add_u32 v5, s23, v5")
    k("v_and_b32 v6, 7, v1")
    k("v_mul_u32_u24 v3, 1280, v5")
    k("v_lshl_add_u32 v3, v6, 4, v3")
    k("s_lshr_b32 s23, s22, 1")
    k("s_mul_i32 s42, s23, 20480")
    k("s_waitcnt lgkmcnt(0)")
    srd(k, 16, 24, 2048 * 1280)
    srd(k, 8, 4, WS_SIZE)
    for i in range(10):
        k(f"buffer_load_dwordx4 {vr(16+4*i,4)}, v3, s[16:19], s42 offen offset:{128*i}")
    k("v_mov_b32 v8, 0")
    k("v_mov_b32 v9, 0")
    k("v_lshlrev_b32 v10, 3, v1")
    k("s_lshl_b32 s43, s22, 9")
    k(f"s_add_u32 s43, s43, {CNT:#x}")
    k("buffer_store_dwordx2 v[8:9], v10, s[8:11], s43 offen")
    k("v_lshlrev_b32 v4, 4, v5")
    k("v_and_b32 v15, 1, v6")
    k("v_lshrrev_b32 v7, 1, v6")
    k("v_mov_b32 v56, 0x100")
    for i in range(10):
        d = 64 + 2 * i
        k(f"v_add_u32 v10, {4*i}, v7")
        k("v_mul_u32_u24 v11, 52, v10")
        k("v_lshrrev_b32 v11, 8, v11")
        k("v_mul_u32_u24 v12, 5, v11")
        k("v_sub_u32 v12, v10, v12")
        k("v_lshrrev_b32 v13, 1, v12")
        k("v_lshl_add_u32 v13, v11, 1, v13")
        k("v_lshl_add_u32 v13, v13, 1, v15")
        k("v_lshlrev_b32 v13, 9, v13")
        k("v_and_b32 v14, 1, v12")
        k("v_lshl_add_u32 v13, v14, 3, v13")
        k("v_lshl_add_u32 v14, v11, 1, v15")
        k("v_lshlrev_b32 v14, 8, v14")
        k("v_add_u32 v14, 0x4000, v14")
        k("v_cmp_eq_u32 s[44:45], 4, v12")
        k("s_nop 1")
        k("v_cndmask_b32 v13, v13, v14, s[44:45]")
        k("v_cndmask_b32 v14, v56, 8, s[44:45]")
        k(f"v_add_u32 v{d}, v13, v4")
        k(f"v_add_u32 v{d+1}, v{d}, v14")
    k(f"s_add_u32 s43, s42, {XA:#x}")
    k("s_waitcnt vmcnt(0)")
    for i in range(10):
        k(f"buffer_store_dwordx2 {vr(16+4*i,2)}, v{64+2*i}, s[8:11], s43 offen")
        k(f"buffer_store_dwordx2 {vr(18+4*i,2)}, v{65+2*i}, s[8:11], s43 offen")
    for r in range(40):
        k(f"v_lshlrev_b32 v10, 16, v{16+r}")
        k(f"v_and_b32 v11, 0xffff0000, v{16+r}")
        k("v_add_f32 v8, v8, v10")
        k("v_fmac_f32 v9, v10, v10")
        k("v_add_f32 v8, v8, v11")
        k("v_fmac_f32 v9, v11, v11")
    k("v_lshlrev_b32 v4, 14, v6")
    k("v_lshl_add_u32 v4, v5, 3, v4")
    k("s_lshl_b32 s43, s23, 7")
    k(f"s_add_u32 s43, s43, {STA:#x}")
    k("buffer_store_dwordx2 v[8:9], v4, s[8:11], s43 offen")
    k.label(L_end)
    k("s_endpgm")
    return k.text(88, 80), NWG


class Ph:
    def __init__(s, name, big, NB, nsteps, xsrc, wsrc):
        s.name, s.big, s.NB, s.nsteps, s.xsrc, s.wsrc = name, big, NB, nsteps, xsrc, wsrc
        s.MX = 2 if big else 1
        s.NXF = 4 * s.MX
        s.SPS = 2 if big else 4
        s.STEP = (s.NXF + NB) * 1024
        s.XS = nsteps * 1024
        s.WS = (nsteps + 1) * 1024 if big else nsteps * 1024
        s.nst = (nsteps + s.SPS - 1) // s.SPS
        s.tail = nsteps - s.SPS * (s.nst - 1)
        s.nx = 4
        s.nw = NB // 2 if big else NB
        s.n = s.nx + s.nw
        assert s.SPS * s.STEP <= SLOT

PH = {
    "qkv": Ph("qkv", True, 8, 20, XA, WQKV_F),
    "wo": Ph("wo", False, 5, 20, OF, WO_F),
    "gu": Ph("gu", True, 14, 20, XB, WGU_F),
    "down": Ph("down", False, 5, 54, HF, WD_F),
}

S_W = 12
S_RB, S_CB = 13, 14
S_RS, S_CS = 15, 16
S_HD, S_QB = 17, 18
S_LAY = 19
S_SLOT = 20
S_SEAM = 21
S_TS = 22
S_ROLE = 23
S_FAST = 3
TK = CNT + 64*512 + 384
FL = CNT + 128*512 + 384
FORCE_SLOW = int(os.environ.get('FORCE_SLOW', '0'))
RES = 16


def gen_mega():
    k = K("mega")
    L_end = "L_mega_end"

    def ts(i, role=0, wave=0):
        if not INSTR:
            return
        lab = k.newlabel()
        k(f"s_xor_b32 s96, s{S_ROLE}, {role}")
        k(f"s_xor_b32 s97, s{S_W}, {wave}")
        k("s_or_b32 s96, s96, s97")
        k(f"s_cbranch_scc1 {lab}")
        k("s_memtime s[96:97]")
        k("s_memrealtime s[98:99]")
        k("s_waitcnt lgkmcnt(0)")
        k("s_mov_b64 s[100:101], exec")
        k("s_mov_b64 exec, 1")
        k("v_mov_b32 v0, s96")
        k(f"buffer_store_dword v0, off, s[8:11], s{S_TS} offset:{8*i}")
        k("s_nop 1")
        k("v_mov_b32 v0, s98")
        k(f"buffer_store_dword v0, off, s[8:11], s{S_TS} offset:{8*i+4}")
        k("s_mov_b64 exec, s[100:101]")
        k.label(lab)

    def get_coords():
        k(f"v_mov_b32 v9, {SCRATCH + 1024:#x}")
        k("ds_read_b32 v9, v9")
        k("s_waitcnt lgkmcnt(0)")
        k("v_readfirstlane_b32 s28, v9")
        k(f"s_lshr_b32 s{S_FAST}, s28, 8")
        k("s_bfe_u32 s30, s28, 0x30005")
        k(f"s_lshl_b32 s{S_RS}, s30, 2")
        k("s_and_b32 s29, s28, 3")
        k(f"s_add_u32 s{S_RS}, s{S_RS}, s29")
        k(f"s_bfe_u32 s{S_CS}, s28, 0x30002")
        k(f"s_lshl_b32 s{S_RB}, s30, 1")
        k("s_and_b32 s29, s28, 1")
        k(f"s_add_u32 s{S_RB}, s{S_RB}, s29")
        k(f"s_bfe_u32 s{S_CB}, s28, 0x40001")
        k(f"s_mov_b32 s{S_HD}, s{S_RS}")
        k(f"s_mov_b32 s{S_QB}, s{S_CS}")

    def next_slot(dst=S_SLOT):
        k(f"s_add_u32 s{dst}, s{dst}, {SLOT}")
        k(f"s_cmp_eq_u32 s{dst}, {3*SLOT}")
        k(f"s_cselect_b32 s{dst}, 0, s{dst}")

    k("s_cmp_ge_u32 s2, 256")
    k(f"s_cbranch_scc1 {L_end}")
    k("s_load_dwordx2 s[4:5], s[0:1], 72")
    k("s_load_dwordx2 s[6:7], s[0:1], 56")
    k("s_load_dwordx2 s[86:87], s[0:1], 16")
    k("s_load_dwordx4 s[88:91], s[0:1], 32")
    k("s_load_dwordx2 s[92:93], s[0:1], 48")
    k("v_and_b32 v1, 63, v0")
    k("v_lshrrev_b32 v2, 6, v0")
    k("v_lshlrev_b32 v3, 4, v1")
    k(f"v_readfirstlane_b32 s{S_W}, v2")
    k(f"s_and_b32 s{S_RB}, s2, 1")
    k(f"s_lshl_b32 s{S_RB}, s{S_RB}, 3")
    k("s_bfe_u32 s28, s2, 0x30003")
    k(f"s_add_u32 s{S_RB}, s{S_RB}, s28")
    k(f"s_bfe_u32 s{S_CB}, s2, 0x20001")
    k(f"s_lshl_b32 s{S_CB}, s{S_CB}, 2")
    k("s_lshr_b32 s28, s2, 6")
    k(f"s_add_u32 s{S_CB}, s{S_CB}, s28")
    k(f"s_mov_b32 s{S_LAY}, 0")
    k(f"s_mov_b32 s{S_SLOT}, {2*SLOT}")
    k(f"s_mov_b32 s{S_SEAM}, 0")
    k(f"s_lshl_b32 s{S_TS}, s2, 10")
    k(f"s_add_u32 s{S_TS}, s{S_TS}, {TSBUF:#x}")
    k("s_waitcnt lgkmcnt(0)")
    srd(k, 8, 4, WS_SIZE)
    srd(k, 24, 6, 2048 * 1280)
    k("v_mov_b32 v15, 1")
    k(f"s_mov_b32 s{S_ROLE}, 0")
    k(f"s_cmp_lt_u32 s{S_W}, 4")
    k("s_cbranch_scc1 L_comp")
    k(f"s_mov_b32 s{S_ROLE}, 1")

    k(f"s_sub_u32 s{S_W}, s{S_W}, 4")
    k(f"s_setprio {LPRIO}")
    AX = {"qkv": 32, "wo": 48, "gu": 32, "down": 48}
    DUMMY = {"qkv": (10, 0xb0), "gu": (15, 0xff0)}
    def dummy_mask(p, dst):
        c, msk = DUMMY[p.name]
        k(f"s_cmp_eq_u32 s{S_CB}, {c}")
        k(f"s_cselect_b32 s{dst}, {msk:#x}, 0")
    def l_setup_w(p):
        a = AX[p.name] + 4
        rc = S_CB if p.big else S_CS
        k(f"s_mul_i32 s28, s{rc}, {p.NB*p.WS}")
        k(f"s_lshr_b32 s29, s{S_W}, {1 if p.big else 0}")
        k("s_lshl_b32 s29, s29, 10")
        k("s_add_u32 s28, s28, s29")
        k(f"s_add_u32 s28, s28, {p.wsrc:#x}")
        if not p.big:
            for j in range(p.nw):
                k(f"v_add_u32 v{a+j}, s28, v3")
                if j < p.nw - 1:
                    k(f"s_add_u32 s28, s28, {p.WS}")
            return
        dummy_mask(p, 30)
        k(f"s_and_b32 s29, s{S_W}, 1")
        k(f"s_mul_i32 s29, s29, {p.nw}")
        for j in range(p.nw):
            k("s_bitcmp1_b32 s30, s29")
            k("s_cselect_b32 s31, 0, s29")
            k(f"s_mul_i32 s31, s31, {p.WS}")
            k("s_add_u32 s31, s31, s28")
            k(f"v_add_u32 v{a+j}, s31, v3")
            k("s_add_u32 s29, s29, 1")
        if p.name == "qkv":
            k(f"s_cmp_lt_u32 s{S_CB}, 11")
            k("s_cselect_b32 s30, 0x80, 0")
            k("s_cmp_eq_u32 s29, 8")
            k("s_cselect_b32 s30, s30, 0")
            k("v_and_b32 v4, s30, v3")
            k(f"v_sub_u32 v{a+3}, v{a+3}, v4")
    def l_setup_x(p):
        a = AX[p.name]
        rr = S_RB if p.big else S_RS
        k(f"s_mul_i32 s28, s{rr}, {p.NXF*p.XS}")
        if p.big:
            k(f"s_and_b32 s29, s{S_W}, 1")
            k(f"s_mul_i32 s29, s29, {4*p.XS}")
            k("s_add_u32 s28, s28, s29")
            k(f"s_lshr_b32 s29, s{S_W}, 1")
        else:
            k(f"s_mov_b32 s29, s{S_W}")
        k("s_lshl_b32 s29, s29, 10")
        k("s_add_u32 s28, s28, s29")
        k(f"s_add_u32 s28, s28, {p.xsrc:#x}")
        if p.name == "wo":
            k(f"s_add_u32 s28, s28, s{S_LAY}")
        for j in range(4):
            k(f"v_add_u32 v{a+j}, s28, v3")
            if j < 3:
                k(f"s_add_u32 s28, s28, {p.XS}")
    LOFF = {"qkv": 40, "wo": 42, "gu": 44, "down": 42}
    for nm in ("qkv", "wo", "gu"):
        p = PH[nm]
        r = LOFF[nm]
        if p.big:
            k(f"s_lshr_b32 s28, s{S_W}, 1")
            k(f"s_mul_i32 s28, s28, {p.STEP}")
            k(f"s_and_b32 s29, s{S_W}, 1")
            k(f"s_lshl_b32 s30, s29, 12")
            k(f"s_add_u32 s{r}, s28, s30")
            k(f"s_mul_i32 s30, s29, {p.nw*1024}")
            k(f"s_add_u32 s{r+1}, s28, s30")
            k(f"s_add_u32 s{r+1}, s{r+1}, {p.NXF*1024}")
        else:
            k(f"s_mul_i32 s{r}, s{S_W}, {p.STEP}")
            k(f"s_add_u32 s{r+1}, s{r}, 4096")
    def l_issue(p, part, slot, soff):
        a = AX[p.name] + (0 if part == "x" else 4)
        n = p.nx if part == "x" else p.nw
        r = LOFF[p.name] + (0 if part == "x" else 1)
        k(f"s_add_u32 m0, s{slot}, s{r}")
        for j in range(n):
            k("s_nop 0")
            k(f"buffer_load_dwordx4 v{a+j}, s[8:11], {soff} offen {LSC if part == 'x' else ''} lds")
            if j < n - 1:
                k("s_add_u32 m0, m0, 1024")
    STASH = eval(os.environ.get("STASH", "{}"))
    SREG = {}
    r_ = 64
    for nm in ("down", "qkv"):
        for st in STASH.get(nm, []):
            SREG[(nm, st)] = r_
            r_ += 4 * PH[nm].nw
    assert r_ <= 256
    def l_stash_loads(p):
        a = AX[p.name] + 4
        for st in STASH.get(p.name, []):
            k(f"s_mov_b32 s35, {st*p.SPS*1024}")
            for j in range(p.nw):
                k(f"buffer_load_dwordx4 {vr(SREG[(p.name, st)]+4*j,4)}, v{a+j}, s[8:11], s35 offen")
    def l_w(p, st, stash):
        if stash and (p.name, st) in SREG:
            k(f"s_add_u32 s28, s{S_SLOT}, s{LOFF[p.name]+1}")
            k("v_add_u32 v4, s28, v3")
            for j in range(p.nw):
                k(f"ds_write_b128 v4, {vr(SREG[(p.name, st)]+4*j,4)} offset:{1024*j}")
            return 0
        l_issue(p, "w", S_SLOT, "s35")
        return p.nw
    def l_w_first(p, i, stash=False):
        k(f"s_mov_b32 s{32+i}, s{S_SLOT}")
        k(f"s_movk_i32 s35, {i*p.SPS*1024}")
        n = l_w(p, i, stash)
        next_slot()
        return n
    def l_touch_h():
        k(f"s_lshl_b32 s28, s{S_RB}, 2")
        k(f"s_add_u32 s28, s28, s{S_W}")
        k(f"s_mul_i32 s28, s28, {2*55296}")
        k(f"s_add_u32 s28, s28, {HF:#x}")
        k(f"s_mul_i32 s29, s{S_CB}, 3072")
        k("s_add_u32 s30, s28, s29")
        k(f"s_lshl_b32 s29, s{S_CB}, 9")
        k("s_add_u32 s29, s28, s29")
        k(f"s_add_u32 s29, s29, {46*1024}")
        for m in range(2):
            for j in range(3):
                k(f"buffer_load_dwordx4 v[20:23], v3, s[8:11], s30 offen offset:{1024*j} sc1")
            k("s_mov_b32 exec_hi, 0")
            k("buffer_load_dwordx4 v[20:23], v3, s[8:11], s29 offen sc1")
            k("s_mov_b64 exec, -1")
            if m == 0:
                k("s_add_u32 s30, s30, 55296")
                k("s_add_u32 s29, s29, 55296")
    def l_gemm(p, nxt, stash=False, nstash=False, w2late=False):
        w2 = 0
        for i in range(3):
            if i == 2 and w2late:
                w2 = l_w_first(p, 2)
            k(f"s_movk_i32 s35, {i*p.SPS*1024}")
            l_issue(p, "x", 32 + i, "s35")
        if nxt:
            l_setup_w(nxt)
        k(f"s_waitcnt vmcnt({2*p.nx + w2}) lgkmcnt(0)")
        k("s_barrier")
        k(f"s_waitcnt vmcnt({p.nx + w2})")
        k(f"s_movk_i32 s35, {3*p.SPS*1024}")
        cnt = p.nst - 3
        part_tail = p.tail < p.SPS
        nloop = cnt - 1 if part_tail else cnt
        if stash:
            for st in range(3, 3 + nloop):
                k("s_barrier")
                l_issue(p, "x", S_SLOT, "s35")
                n = l_w(p, st, True)
                next_slot()
                k(f"s_add_u32 s35, s35, {p.SPS*1024}")
                k(f"s_waitcnt vmcnt({p.nx + n}) lgkmcnt(0)")
        else:
            L = k.newlabel()
            k(f"s_mov_b32 s36, {nloop}")
            k.label(L)
            k("s_barrier")
            l_issue(p, "x", S_SLOT, "s35")
            l_issue(p, "w", S_SLOT, "s35")
            next_slot()
            k(f"s_add_u32 s35, s35, {p.SPS*1024}")
            k("s_sub_u32 s36, s36, 1")
            k("s_cmp_lg_u32 s36, 0")
            k(f"s_waitcnt vmcnt({p.n})")
            k(f"s_cbranch_scc1 {L}")
        if part_tail:
            l1, l2 = k.newlabel(), k.newlabel()
            k("s_barrier")
            k(f"s_cmp_ge_u32 s{S_W}, {p.tail}")
            k(f"s_cbranch_scc1 {l1}")
            l_issue(p, "x", S_SLOT, "s35")
            l_issue(p, "w", S_SLOT, "s35")
            k(f"s_waitcnt vmcnt({p.n})")
            k(f"s_branch {l2}")
            k.label(l1)
            k("s_waitcnt vmcnt(0)")
            k.label(l2)
            next_slot()
        k("s_barrier")
        n = l_w_first(nxt, 0, nstash) if nxt else 0
        k(f"s_waitcnt vmcnt({n})")
        k("s_barrier")
        if p.name == "gu" and TOUCH & 2:
            l_touch_h()
        if nxt:
            l_w_first(nxt, 1, nstash)

    k("s_getreg_b32 s46, hwreg(HW_REG_XCC_ID)")
    k("s_and_b32 s46, s46, 7")
    k(f"s_cmp_lg_u32 s{S_W}, 3")
    k("s_cbranch_scc1 L_l_notk")
    k("s_lshl_b32 s28, s46, 9")
    k(f"s_add_u32 s28, s28, {TK:#x}")
    k("v_mov_b32 v16, 1")
    k("s_mov_b64 exec, 1")
    k("buffer_atomic_add v16, off, s[8:11], s28 sc0 sc1")
    k("s_mov_b64 exec, -1")
    k.label("L_l_notk")
    l_setup_w(PH["qkv"])
    for i in range(3):
        l_w_first(PH["qkv"], i)
    l_setup_x(PH["qkv"])
    k("s_barrier")
    l_gemm(PH["qkv"], None)
    k(f"s_cmp_lg_u32 s{S_W}, 3")
    k("s_cbranch_scc1 L_l_attn")
    k("v_lshlrev_b32 v12, 9, v1")
    k(f"s_mov_b32 s28, {TK:#x}")
    k("s_mov_b32 s29, 0x40000")
    k("s_mov_b64 exec, 0xff")
    k.label("L_l_tk")
    k("buffer_load_dword v14, v12, s[8:11], s28 offen sc1")
    k("s_waitcnt vmcnt(0)")
    k("s_mov_b32 s30, 0")
    for i in range(8):
        k(f"v_readlane_b32 s31, v14, {i}")
        k("s_add_u32 s30, s30, s31")
    k("s_sub_u32 s29, s29, 1")
    k("s_cbranch_scc1 L_l_tkx")
    k("s_cmp_lg_u32 s30, 256")
    k("s_cbranch_scc1 L_l_tk")
    k.label("L_l_tkx")
    k("v_cmp_ne_u32 vcc, 32, v14")
    k("v_readfirstlane_b32 s30, v16")
    k("s_lshl_b32 s31, s46, 5")
    k("s_add_u32 s30, s30, s31")
    k("s_add_u32 s30, s30, 256")
    k("s_and_b32 s28, s2, 7")
    k("s_lshl_b32 s28, s28, 5")
    k("s_lshr_b32 s29, s2, 3")
    k("s_add_u32 s28, s28, s29")
    if FORCE_SLOW:
        k("s_mov_b32 s28, s2")
        k("s_mov_b64 vcc, 1")
    k("s_cmp_eq_u64 vcc, 0")
    k("s_cselect_b32 s28, s30, s28")
    k("s_mov_b64 exec, -1")
    k("v_mov_b32 v14, s28")
    k(f"v_mov_b32 v12, {SCRATCH + 1024:#x}")
    k("ds_write_b32 v12, v14")
    k("s_waitcnt lgkmcnt(0)")
    k("s_branch L_l_attn")
    k.label("L_l_layer")
    l_setup_x(PH["qkv"])
    k("s_barrier")
    l_gemm(PH["qkv"], None, False, False, W2LATE & 4)
    k("s_branch L_l_attn")
    k.label("L_l_after_attn")
    for i in range(3):
        l_w_first(PH["wo"], i)
    k("s_barrier")
    l_gemm(PH["wo"], PH["gu"])
    l_setup_x(PH["gu"])
    k("s_barrier")
    if not W2LATE & 1:
        l_w_first(PH["gu"], 2)
    k("s_barrier")
    l_gemm(PH["gu"], PH["down"], False, True, W2LATE & 1)
    l_setup_x(PH["down"])
    k("s_barrier")
    if not W2LATE & 2:
        l_w_first(PH["down"], 2, True)
    k("s_barrier")
    l_gemm(PH["down"], PH["qkv"], False, True, W2LATE & 2)
    k(f"s_cmp_lg_u32 s{S_LAY}, 0")
    k("s_cbranch_scc1 L_l_done")
    k(f"s_mov_b32 s{S_LAY}, {LSTR:#x}")
    k(f"s_add_u32 s{S_TS}, s{S_TS}, 320")
    k("s_barrier")
    if not W2LATE & 4:
        l_w_first(PH["qkv"], 2, True)
    k("s_branch L_l_layer")
    k.label("L_l_done")
    k("s_waitcnt vmcnt(0)")
    k("s_endpgm")

    k.label("L_comp")
    k("v_and_b32 v7, 15, v1")
    k("v_lshrrev_b32 v8, 4, v1")
    k("v_lshlrev_b32 v2, 7, v1")

    def small_addr():
        k(f"s_lshl_b32 s28, s{S_RS}, 2")
        k(f"s_add_u32 s28, s28, s{S_W}")
        k("s_mul_i32 s29, s28, 20480")
        k(f"s_lshl_b32 s30, s{S_CS}, 11")
        k("s_add_u32 s30, s30, s29")
        k(f"s_lshl_b32 s31, s{S_CS}, 9")
        k("s_add_u32 s31, s31, s29")
        k("s_add_u32 s31, s31, 16384")
        k("v_lshrrev_b32 v9, 1, v8")
        k("v_lshlrev_b32 v9, 8, v9")
        k("v_lshl_add_u32 v9, v7, 4, v9")
    def res_load():
        small_addr()
        k(f"s_add_u32 s30, s30, {XA:#x}")
        k(f"s_add_u32 s31, s31, {XA:#x}")
        k(f"buffer_load_dwordx4 {vr(RES,4)}, v3, s[8:11], s30 offen")
        k(f"buffer_load_dwordx4 {vr(RES+4,4)}, v3, s[8:11], s30 offen offset:1024")
        k("v_and_b32 v10, 1, v8")
        k("v_lshl_add_u32 v9, v10, 3, v9")
        k(f"buffer_load_dwordx2 {vr(RES+8,2)}, v9, s[8:11], s31 offen")

    SSIG, SSO, SPO = 54, 53, 94
    def seam_pre(seam, idx_setup):
        idx_setup()
        k("s_lshl_b32 s28, s28, 9")
        k(f"s_add_u32 s{SSO}, s{S_SEAM}, {CNT + 4*seam:#x}")
        k(f"s_add_u32 s{SPO}, s28, s{SSO}")
    def seam_post(both_roles=False, filler=None):
        lab, l1, lp = k.newlabel(), k.newlabel(), k.newlabel()
        if both_roles:
            k(f"s_cmp_lg_u32 s{S_ROLE}, 0")
            k(f"s_cbranch_scc1 {lab}")
        k(f"s_cmp_lg_u32 s{S_W}, 0")
        k(f"s_cbranch_scc1 {l1}")
        k(f"s_mov_b64 exec, s[{SSIG}:{SSIG+1}]")
        k(f"buffer_atomic_add v15, v12, s[8:11], s{SSO} offen sc1")
        k("s_mov_b64 exec, -1")
        k.label(l1)
        if filler:
            filler()
        k(f"s_cmp_lg_u32 s{S_W}, 1")
        k(f"s_cbranch_scc1 {lab}")
        k("s_mov_b32 s95, 0x40000")
        k(f"s_add_u32 s66, s{SPO}, 128")
        k(f"s_add_u32 s67, s{SPO}, 256")
        k.label(lp)
        k(f"s_load_dword s63, s[4:5], s{SPO} glc")
        k("s_load_dword s64, s[4:5], s66 glc")
        k("s_load_dword s65, s[4:5], s67 glc")
        k("s_sub_u32 s95, s95, 1")
        k(f"s_cbranch_scc1 {lp}_x")
        k("s_waitcnt lgkmcnt(0)")
        k("s_xor_b32 s63, s63, s60")
        k("s_xor_b32 s64, s64, s61")
        k("s_xor_b32 s65, s65, s62")
        k("s_or_b32 s63, s63, s64")
        k("s_or_b32 s63, s63, s65")
        k(f"s_cbranch_scc1 {lp}")
        k.label(lp + "_x")
        k("s_waitcnt lgkmcnt(0)")
        k.label(lab)
    def lseam_pre(seam, sig_group, sig_member, poll_group):
        k(f"s_lshr_b32 s28, s{S_LAY}, {25 - 15}")
        k(f"s_add_u32 s28, s28, {FL + seam*16*512:#x}")
        sig_group()
        k("s_lshl_b32 s29, s29, 9")
        k(f"s_add_u32 s{SSO}, s28, s29")
        sig_member()
        k("s_lshl_b32 s29, s29, 2")
        k(f"s_add_u32 s{SSO}, s{SSO}, s29")
        poll_group()
        k("s_lshl_b32 s29, s29, 9")
        k(f"s_add_u32 s{SPO}, s28, s29")
        k("v_lshlrev_b32 v13, 2, v1")
    def lseam_post(nprod, filler=None):
        lab, l1, l2, lp = k.newlabel(), k.newlabel(), k.newlabel(), k.newlabel()
        k(f"s_cmp_lg_u32 s{S_W}, 0")
        k(f"s_cbranch_scc1 {l1}")
        k("s_mov_b64 exec, 1")
        k(f"s_cmp_lg_u32 s{S_FAST}, 0")
        k(f"s_cbranch_scc1 {l2}")
        k("buffer_wbl2 sc1")
        k("s_waitcnt vmcnt(0)")
        k(f"buffer_store_dword v15, off, s[8:11], s{SSO} sc0 sc1")
        k("s_mov_b64 exec, -1")
        k(f"s_branch {l1}")
        k.label(l2)
        k(f"buffer_store_dword v15, off, s[8:11], s{SSO}")
        k("s_mov_b64 exec, -1")
        k.label(l1)
        if filler:
            filler()
        k(f"s_cmp_lg_u32 s{S_W}, 1")
        k(f"s_cbranch_scc1 {lab}")
        k("s_mov_b32 s95, 0x40000")
        k(f"s_mov_b64 exec, {(1 << nprod) - 1:#x}")
        k.label(lp)
        k(f"buffer_load_dword v14, v13, s[8:11], s{SPO} offen sc1")
        k("s_waitcnt vmcnt(0)")
        k("v_cmp_ne_u32 vcc, 1, v14")
        k("s_sub_u32 s95, s95, 1")
        k(f"s_cbranch_vccz {lp}_x")
        k(f"s_cbranch_scc0 {lp}")
        k.label(lp + "_x")
        k("s_mov_b64 exec, -1")
        k.label(lab)
    g_qb = lambda: k(f"s_mov_b32 s29, s{S_QB}")
    g_hd = lambda: k(f"s_mov_b32 s29, s{S_HD}")
    g_rb = lambda: k(f"s_mov_b32 s29, s{S_RB}")
    g_cb = lambda: k(f"s_mov_b32 s29, s{S_CB}")
    g_rs2 = lambda: k(f"s_lshr_b32 s29, s{S_RS}, 1")
    def g_sm():
        k(f"s_and_b32 s29, s{S_RS}, 1")
        k("s_lshl_b32 s29, s29, 3")
        k(f"s_add_u32 s29, s29, s{S_CS}")
    def targets(t):
        for i in range(3):
            k(f"s_mov_b32 s{60+i}, {t[i] if i < len(t) else 0}")

    ACC = 32
    def c_layout(p):
        FB = ACC + p.MX * p.NB * 4
        if p.name == "gu":
            XBUF = [FB, FB + 8]; WBUF = [FB + 16, FB + 44]; top = FB + 72
        elif p.name == "qkv":
            XBUF = [FB, FB + 8]; WBUF = [FB + 16, FB + 48]; top = FB + 80
        else:
            XBUF = [FB, FB + 8]; WBUF = [FB + 16, FB + 56]; top = FB + 96
        return FB, XBUF, WBUF, top
    def acc(p, m, j):
        return ACC + (m * p.NB + j) * 4
    def c_units(p):
        FB, XBUF, WBUF, top = c_layout(p)
        U = []
        if p.name == "gu":
            for u in range(4):
                st, h = u >> 1, u & 1
                rd = []
                if h == 0:
                    rd += [(XBUF[st] + 4 * m, 5, st * p.STEP + 1024 * m) for m in range(2)]
                rd += [(WBUF[h] + 4 * j, 6, st * p.STEP + (8 + 7 * h + j) * 1024) for j in range(7)]
                mm = [(acc(p, m, 7 * h + j), WBUF[h] + 4 * j, XBUF[st] + 4 * m) for j in range(7) for m in range(2)]
                U.append((rd, mm))
        elif p.name == "qkv":
            for st in range(2):
                rd = [(XBUF[st] + 4 * m, 5, st * p.STEP + 1024 * m) for m in range(2)]
                rd += [(WBUF[st] + 4 * j, 6, st * p.STEP + (8 + j) * 1024) for j in range(8)]
                mm = [(acc(p, m, j), WBUF[st] + 4 * j, XBUF[st] + 4 * m) for j in range(8) for m in range(2)]
                U.append((rd, mm))
        else:
            for u in range(2):
                rd, mm = [], []
                for s_ in range(2):
                    st = 2 * u + s_
                    rd += [(XBUF[u] + 4 * s_, 5, st * p.STEP)]
                    rd += [(WBUF[u] + 20 * s_ + 4 * j, 6, st * p.STEP + (4 + j) * 1024) for j in range(5)]
                    mm += [(acc(p, 0, j), WBUF[u] + 20 * s_ + 4 * j, XBUF[u] + 4 * s_) for j in range(5)]
                U.append((rd, mm))
        return U
    START = {"wo": 0, "gu": 2, "down": 0, "qkv": 2}
    AXR, AWR = [4, 5, 6], [27, 28, 29]
    def c_addr(p):
        k(f"s_mul_i32 s28, s{S_W}, {p.MX*1024}")
        for i in range(3):
            k(f"v_add_u32 v{AWR[i]}, {i*SLOT:#x}, v3")
            k(f"v_add_u32 v{AXR[i]}, s28, v{AWR[i]}")
    def c_mainloop(p, swap, tag, tail_extra=(), after_b0=None):
        U = c_units(p)
        NUS = len(U)
        def rdi(r, slot, sp=False):
            if sp and r[1] == 5:
                return f"ds_read2st64_b64 {vr(r[0],4)}, v9 offset0:{r[2]//512} offset1:{r[2]//512+1}"
            return f"ds_read_b128 {vr(r[0],4)}, v{(AXR if r[1] == 5 else AWR)[slot]} offset:{r[2]}"
        def special(slot):
            if p.name != "wo":
                return False
            k("v_lshlrev_b32 v9, 3, v1")
            k(f"v_sub_u32 v9, v{AXR[slot]}, v9")
            return True
        extra = list(tail_extra)
        seen = set()
        def run(mm, rd, nex=0, mid=(), z=False):
            rd = list(rd)
            mid = list(mid)
            per = 1 if len(rd) <= len(mm) else 2
            for i, (a, w, x) in enumerate(mm):
                a_, b_ = (w, x) if swap else (x, w)
                c_ = "0" if z and a not in seen else vr(a, 4)
                seen.add(a)
                k(f"{MF} {vr(a,4)}, {vr(a_,4)}, {vr(b_,4)}, {c_}")
                if not rd and mid:
                    k(mid.pop(0))
                for _ in range(per):
                    if rd:
                        k(rd.pop(0))
                for _ in range(nex):
                    if extra:
                        k(extra.pop(0))
            for r in rd + mid:
                k(r)
        def stage(slot, mid=(), z=False):
            for u in range(NUS):
                last = u == NUS - 1
                k("s_waitcnt lgkmcnt(0)")
                if last:
                    k("s_barrier")
                ns = (slot + 1) % 3 if last else slot
                run(U[u][1], [rdi(r, ns) for r in U[(u + 1) % NUS][0]], 0, mid if last else (), z)
        c_addr(p)
        s0 = START[p.name]
        nfull = p.nst - 1
        sp = special(s0)
        npeel = 1 if p.big else 0
        k(f"s_mov_b32 s36, {(nfull - npeel + 2) // 3}")
        k("s_barrier")
        ts(tag + 1)
        for r in U[0][0]:
            k(rdi(r, s0, sp))
        if after_b0:
            after_b0()
        if p.name == "wo":
            for st in range(nfull):
                stage((s0 + st) % 3)
        else:
            L = k.newlabel()
            if npeel:
                stage(s0, (), True)
            p0 = (3 - (nfull - npeel) % 3) % 3
            if p0:
                k(f"s_branch {L}_mid")
            k(".p2align 4")
            k.label(L)
            for pos in range(3):
                if pos == p0 and p0:
                    k.label(L + "_mid")
                stage((s0 + npeel + pos - p0) % 3, ["s_sub_u32 s36, s36, 1", "s_cmp_lg_u32 s36, 0"] if pos == 2 else ())
            k(f"s_cbranch_scc1 {L}")
        sl = (s0 + nfull) % 3
        nt = NUS * p.tail // p.SPS
        nm_ = sum(len(U[u][1]) for u in range(nt))
        nex = (len(extra) + nm_ - 1) // nm_
        for u in range(nt):
            sp = special(sl) if u < nt - 1 else False
            k("s_waitcnt lgkmcnt(0)")
            run(U[u][1], [rdi(r, sl, sp) for r in U[u + 1][0]] if u < nt - 1 else [], nex)
        assert not extra
        k.nop(3)
        ts(tag + 2)

    EXT = 216
    STR = 248
    def ext_reg(p, j):
        return EXT + (2 if p.name == "gu" else 4) * j
    def c_ext_loads(p):
        npl = 2 if p.name == "gu" else 4
        k(f"s_mul_i32 s28, s{S_CB}, {p.NB*p.WS}")
        k(f"s_add_u32 s28, s28, {p.wsrc + p.nsteps*1024:#x}")
        c, msk = DUMMY[p.name]
        k(f"s_cmp_eq_u32 s{S_CB}, {c}")
        k(f"s_cselect_b32 s30, 0, {p.WS}")
        k(f"v_lshlrev_b32 v9, {3 if npl == 2 else 4}, v1")
        for j in range(p.NB):
            if (msk >> j) & 1:
                k(f"s_mul_i32 s29, s30, {j}")
                k("s_add_u32 s29, s29, s28")
            else:
                k(f"s_add_u32 s29, s28, {j*p.WS}")
            if p.name == "qkv" and j == 7:
                k(f"s_cmp_lt_u32 s{S_CB}, 11")
                k("s_cselect_b32 s31, 0x80, 0")
                k("v_and_b32 v10, s31, v9")
                k("v_sub_u32 v9, v9, v10")
            k(f"buffer_load_dwordx{npl} {vr(ext_reg(p,j),npl)}, v9, s[8:11], s29 offen")
    def c_ext_build(p):
        for j in range(p.NB):
            r = ext_reg(p, j)
            if p.name == "qkv":
                k(f"v_pk_add_f32 {vr(r,2)}, {vr(r,2)}, {vr(r+2,2)}")
            k(f"v_add_f32 v10, v{r}, v{r+1}")
            k("v_cvt_pk_bf16_f32 v11, v10, v10")
            k("v_and_b32 v11, 0xffff0000, v11")
            k("v_sub_f32 v11, v10, v11")
            k(f"v_cvt_pk_bf16_f32 v{r}, v10, v11")
            k(f"v_cvt_pk_bf16_f32 v{r+1}, v10, v11")
    def c_zero_acc(p):
        for i in range(0, p.MX * p.NB * 4, 2):
            k(f"v_mov_b64 {vr(ACC+i,2)}, 0")
    def c_stats_loads(stats):
        T = STR
        k("v_lshlrev_b32 v9, 15, v8")
        k("v_lshl_add_u32 v9, v7, 3, v9")
        k(f"s_lshl_b32 s28, s{S_RB}, 2")
        k(f"s_add_u32 s28, s28, s{S_W}")
        k("s_lshl_b32 s28, s28, 8")
        k(f"s_add_u32 s28, s28, {stats:#x}")
        k("s_add_u32 s29, s28, 16384")
        for m in range(2):
            k(f"buffer_load_dwordx2 {vr(T+4*m,2)}, v9, s[8:11], s28 offen offset:{128*m} {LSC}")
            k(f"buffer_load_dwordx2 {vr(T+4*m+2,2)}, v9, s[8:11], s29 offen offset:{128*m} {LSC}")
    def c_stats_valu():
        T = STR
        L = ["s_waitcnt vmcnt(0)"]
        add = [f"v_add_f32 v{T+4*m+i}, v{T+4*m+i}, v{T+4*m+2+i}" for m in range(2) for i in range(2)]
        L += add
        for sw in ("v_permlane32_swap_b32", "v_permlane16_swap_b32"):
            L += [f"v_mov_b32 v{T+4*m+2+i}, v{T+4*m+i}" for m in range(2) for i in range(2)]
            L += ["s_nop 1"]
            L += [f"{sw} v{T+4*m+i}, v{T+4*m+2+i}" for m in range(2) for i in range(2)]
            L += ["s_nop 0"]
            L += add
        for m in range(2):
            t = T + 4 * m
            L += [f"v_mul_f32 v{t}, {f2u(-1.0/640):#x}, v{t}",
                  f"v_mul_f32 v{t+1}, {f2u(1.0/640):#x}, v{t+1}",
                  f"v_cvt_pk_bf16_f32 v{t+2}, v{t}, v{t}",
                  f"v_fma_f32 v{t+1}, -v{t}, v{t}, v{t+1}",
                  f"v_and_b32 v{t+3}, 0xffff0000, v{t+2}",
                  f"v_max_f32 v{t+1}, 0, v{t+1}",
                  f"v_sub_f32 v{t+3}, v{t}, v{t+3}",
                  f"v_add_f32 v{t+1}, {f2u(1e-5):#x}, v{t+1}",
                  f"v_cvt_pk_bf16_f32 v{t+3}, v{t+3}, v{t+3}",
                  f"v_rsq_f32 v{10+m}, v{t+1}"]
        return L
    def ext_mfma(p, j, swap):
        for m in range(2):
            x, r = STR + 4 * m + 2, ext_reg(p, j)
            a_, b_ = (r, x) if swap else (x, r)
            k(f"v_mfma_f32_16x16x16_bf16 {vr(acc(p,m,j),4)}, {vr(a_,2)}, {vr(b_,2)}, {vr(acc(p,m,j),4)}")

    def c_res_to_acc():
        for i in range(10):
            k(f"v_lshlrev_b32 v{ACC+2*i}, 16, v{RES+i}")
            k(f"v_and_b32 v{ACC+2*i+1}, 0xffff0000, v{RES+i}")

    def c_small_pre(xdst, sdst, layadd):
        small_addr()
        k("v_mov_b32 v14, v9")
        k(f"s_mov_b32 s29, {xdst:#x}")
        k("s_add_u32 s30, s30, s29")
        k("s_add_u32 s31, s31, s29")
        k("v_lshlrev_b32 v26, 3, v7")
        k(f"s_lshl_b32 s29, s{S_CS}, 14")
        k("s_lshl_b32 s28, s28, 7")
        k("s_add_u32 s29, s29, s28")
        k(f"s_add_u32 s29, s29, {sdst:#x}")
    def c_small_touch():
        if not TOUCH & 4:
            return
        k("buffer_load_dwordx4 v[200:203], v3, s[8:11], s30 offen sc1")
        k("buffer_load_dwordx4 v[200:203], v3, s[8:11], s30 offen offset:1024 sc1")
        k("buffer_load_dwordx4 v[200:203], v14, s[8:11], s31 offen sc1")
        k("buffer_load_dwordx2 v[200:201], v26, s[8:11], s29 offen sc1")
    def c_small_epilogue():
        T = 56
        for i in range(4):
            k(f"v_cvt_pk_bf16_f32 v{RES+i}, v{ACC+2*i}, v{ACC+2*i+1}")
        k(f"buffer_store_dwordx4 {vr(RES,4)}, v3, s[8:11], s30 offen")
        for i in (8, 9):
            k(f"v_cvt_pk_bf16_f32 v{RES+i}, v{ACC+2*i}, v{ACC+2*i+1}")
            k(f"v_cvt_pk_bf16_f32 v{T+i-8}, v{ACC+2*i}, v{ACC+2*i+1}")
            k(f"v_cvt_pk_bf16_f32 v{T+i-6}, v{ACC+2*i}, v{ACC+2*i+1}")
        for i in range(4, 8):
            k(f"v_cvt_pk_bf16_f32 v{RES+i}, v{ACC+2*i}, v{ACC+2*i+1}")
        k(f"buffer_store_dwordx4 {vr(RES+4,4)}, v3, s[8:11], s30 offen offset:1024")
        k(f"v_permlane16_swap_b32 v{T}, v{T+2}")
        k(f"v_permlane16_swap_b32 v{T+1}, v{T+3}")
        k("s_mov_b32 exec_lo, 0xffff")
        k("s_mov_b32 exec_hi, 0xffff")
        k(f"buffer_store_dwordx4 {vr(T,4)}, v14, s[8:11], s31 offen")
        k("s_mov_b64 exec, -1")
        k(f"v_pk_add_f32 v[10:11], {vr(ACC,2)}, {vr(ACC+2,2)}")
        k(f"v_pk_mul_f32 v[12:13], {vr(ACC,2)}, {vr(ACC,2)}")
        for i in range(2, 20, 2):
            if i >= 4:
                k(f"v_pk_add_f32 v[10:11], v[10:11], {vr(ACC+i,2)}")
            k(f"v_pk_fma_f32 v[12:13], {vr(ACC+i,2)}, {vr(ACC+i,2)}, v[12:13]")
        k("v_add_f32 v10, v10, v11")
        k("v_add_f32 v11, v12, v13")
        for sw in ("v_permlane32_swap_b32", "v_permlane16_swap_b32"):
            k("v_mov_b32 v12, v10")
            k("v_mov_b32 v13, v11")
            k("s_nop 1")
            k(f"{sw} v10, v12")
            k(f"{sw} v11, v13")
            k("s_nop 0")
            k("v_pk_add_f32 v[10:11], v[10:11], v[12:13]")
        k("s_mov_b64 exec, 0xffff")
        k(f"buffer_store_dwordx2 v[10:11], v26, s[8:11], s29 offen")
        k("s_mov_b64 exec, -1")
        k("s_nop 1")

    def sig_rows_big():
        k(f"s_lshr_b32 s28, s{S_RS}, 1")
        k("s_lshl_b32 s28, s28, 13")
        k("v_lshl_add_u32 v12, v1, 9, s28")
        k(f"s_mov_b64 s[{SSIG}:{SSIG+1}], 0xffff")
    def idx_big():
        k(f"s_lshl_b32 s28, s{S_RB}, 4")
        k(f"s_add_u32 s28, s28, s{S_CB}")
    def idx_small():
        k(f"s_lshl_b32 s28, s{S_RS}, 3")
        k(f"s_add_u32 s28, s28, s{S_CS}")

    def scale_pack(a, o, r):
        rr = vr(r & ~1, 2)
        k(f"v_pk_mul_f32 {vr(a,2)}, {vr(a,2)}, {rr} op_sel:[0,{r&1}] op_sel_hi:[1,{r&1}]")
        k(f"v_pk_mul_f32 {vr(a+2,2)}, {vr(a+2,2)}, {rr} op_sel:[0,{r&1}] op_sel_hi:[1,{r&1}]")
        k(f"v_cvt_pk_bf16_f32 v{o}, v{a}, v{a+1}")
        k(f"v_cvt_pk_bf16_f32 v{o+1}, v{a+2}, v{a+3}")
    p = PH["qkv"]
    FB, XBUF, WBUF, top_qkv = c_layout(p)
    c_ext_loads(p)
    k("s_barrier")
    k("s_waitcnt vmcnt(0)")
    c_ext_build(p)
    k("s_branch L_c_layer2")
    k.label("L_c_layer")
    k("s_barrier")
    k.label("L_c_layer2")
    ts(0)
    if POLL2:
        k("s_waitcnt vmcnt(0)")
    c_stats_loads(STA)
    k(f"s_cmp_ge_u32 s{S_CB}, 11")
    k("s_cbranch_scc1 L_c_v")
    k("v_and_b32 v9, 7, v7")
    k("v_lshrrev_b32 v12, 3, v7")
    k("v_lshl_add_u32 v9, v12, 4, v9")
    k("v_lshrrev_b32 v12, 1, v8")
    k(f"v_mul_u32_u24 v12, {UNIT}, v12")
    k("v_and_b32 v13, 1, v8")
    k("v_lshl_add_u32 v12, v13, 9, v12")
    k("v_lshl_add_u32 v12, v9, 4, v12")
    k(f"v_mul_u32_u24 v13, {UNIT}, v8")
    k("v_lshl_add_u32 v13, v7, 4, v13")
    k(f"s_mul_i32 s28, s{S_CB}, {6*UNIT}")
    k(f"s_mul_i32 s29, s{S_RB}, 10240")
    k("s_add_u32 s28, s28, s29")
    k(f"s_add_u32 s28, s28, s{S_LAY}")
    k(f"s_add_u32 s28, s28, {QKVI:#x}")
    k(f"s_lshl_b32 s29, s{S_W}, 10")
    k("s_add_u32 s30, s28, s29")
    k(f"s_and_b32 s29, s{S_W}, 1")
    k("s_lshl_b32 s29, s29, 9")
    k("s_add_u32 s31, s28, s29")
    k(f"s_lshr_b32 s29, s{S_W}, 1")
    k("s_lshl_b32 s29, s29, 8")
    k("s_add_u32 s31, s31, s29")
    k("s_add_u32 s31, s31, 4096")
    k(f"s_add_u32 s29, s31, {4*UNIT}")
    c_mainloop(p, True, 0, c_stats_valu() + ["s_nop 0", f"v_mul_f32 v10, {f2u(SQRTC):#x}, v10", f"v_mul_f32 v11, {f2u(SQRTC):#x}, v11"])
    for j in (0, 1, 2, 3, 6):
        ext_mfma(p, j, True)
    for b in range(3):
        if b == 2:
            for m in range(2):
                scale_pack(acc(p, m, 6), FB + 24 + 2 * m, 10 + m)
            k(f"buffer_store_dwordx4 {vr(FB+24,4)}, v13, s[8:11], s31 offen {SC}")
            k(f"s_cmp_eq_u32 s{S_CB}, 10")
            k("s_cbranch_scc1 L_c_qk_skip")
        for m in range(2):
            o = FB + 8 * b + 4 * m
            scale_pack(acc(p, m, 2 * b), o, 10 + m)
            scale_pack(acc(p, m, 2 * b + 1), o + 2, 10 + m)
            k(f"buffer_store_dwordx4 {vr(o,4)}, v12, s[8:11], s30 offen offset:{128*m} {SC}")
            if b == 0:
                for j in ((4, 5), (7,))[m]:
                    ext_mfma(p, j, True)
        k(f"s_add_u32 s30, s30, {2*UNIT}")
    for m in range(2):
        scale_pack(acc(p, m, 7), FB + 28 + 2 * m, 10 + m)
    k("s_mov_b64 exec, 0xffffffff")
    k(f"buffer_store_dwordx4 {vr(FB+28,4)}, v13, s[8:11], s29 offen {SC}")
    k("s_mov_b64 exec, -1")
    k.label("L_c_qk_skip")
    k("v_lshrrev_b32 v9, 3, v1")
    k("v_and_b32 v10, 7, v1")
    k(f"s_mul_i32 s28, s{S_CB}, 6")
    k("v_add_u32 v14, s28, v9")
    k("v_and_b32 v12, 31, v14")
    k("v_lshl_add_u32 v12, v12, 3, v10")
    k("v_lshlrev_b32 v12, 9, v12")
    k(f"s_lshr_b32 s28, s{S_RB}, 1")
    k("v_cmp_eq_u32 s[30:31], s28, v10")
    k("v_cmp_le_u32 vcc, 32, v14")
    k("s_or_b64 s[30:31], s[30:31], vcc")
    k("v_cmp_gt_u32 vcc, 64, v14")
    k("s_and_b64 s[30:31], s[30:31], vcc")
    k("v_cmp_gt_u32 vcc, 6, v9")
    k(f"s_and_b64 s[{SSIG}:{SSIG+1}], s[30:31], vcc")
    k("s_branch L_c_attn")

    k.label("L_c_v")
    RSV = top_qkv
    VAD = RSV + 8
    k(f"s_mul_i32 s30, s{S_RB}, 10240")
    k(f"s_mul_i32 s29, s{S_W}, 1280")
    k("s_add_u32 s30, s30, s29")
    k(f"s_add_u32 s30, s30, s{S_LAY}")
    k(f"s_add_u32 s30, s30, {QKVI + 32*UNIT + 5120:#x}")
    k(f"s_sub_u32 s29, s{S_CB}, 11")
    k("s_lshl_b32 s29, s29, 7")
    k("v_mul_u32_u24 v9, 320, v8")
    k("v_add_u32 v10, s29, v7")
    for j in range(8):
        k("v_mul_u32_u24 v12, 3277, v10")
        k("v_lshrrev_b32 v12, 16, v12")
        k(f"v_mul_u32_u24 v13, {UNIT-320}, v12")
        k("v_lshl_add_u32 v13, v10, 4, v13")
        k(f"v_add_u32 v{VAD+j}, v13, v9")
        k("v_add_u32 v10, 16, v10")
    k(f"s_lshl_b32 s28, s{S_W}, 7")
    k(f"s_add_u32 s28, s28, {SCRATCH}")
    k("v_lshl_add_u32 v12, v7, 2, s28")
    k("v_lshl_add_u32 v13, v8, 4, s28")
    c_mainloop(p, False, 0, c_stats_valu() + ["s_nop 0", "ds_write_b32 v12, v10", "ds_write_b32 v12, v11 offset:64"])
    k("s_waitcnt lgkmcnt(0)")
    k(f"ds_read_b128 {vr(RSV,4)}, v13")
    k(f"ds_read_b128 {vr(RSV+4,4)}, v13 offset:64")
    for j in range(8):
        ext_mfma(p, j, False)
    k("s_waitcnt lgkmcnt(0)")
    for j in range(8):
        o = FB + 4 * j
        for m in range(2):
            a = acc(p, m, j)
            k(f"v_pk_mul_f32 {vr(a,2)}, {vr(a,2)}, {vr(RSV+4*m,2)}")
            k(f"v_pk_mul_f32 {vr(a+2,2)}, {vr(a+2,2)}, {vr(RSV+4*m+2,2)}")
            k(f"v_cvt_pk_bf16_f32 v{o+2*m}, v{a}, v{a+1}")
            k(f"v_cvt_pk_bf16_f32 v{o+2*m+1}, v{a+2}, v{a+3}")
        k(f"buffer_store_dwordx4 {vr(o,4)}, v{VAD+j}, s[8:11], s30 offen {SC}")
    k(f"s_sub_u32 s28, s{S_CB}, 11")
    k("s_lshl_b32 s30, s28, 7")
    k("s_mul_i32 s31, s30, 3277")
    k("s_lshr_b32 s31, s31, 16")
    k("s_add_u32 s30, s30, 127")
    k("s_mul_i32 s30, s30, 3277")
    k("s_lshr_b32 s30, s30, 16")
    k("s_and_b32 s28, s28, 1")
    k("s_lshl_b32 s28, s28, 7")
    k("s_add_u32 s28, s28, 128")
    k("s_lshl_b32 s29, s31, 12")
    k("s_add_u32 s28, s28, s29")
    k("v_lshl_add_u32 v12, v1, 9, s28")
    k("v_lshrrev_b32 v9, 3, v1")
    k("v_add_u32 v9, s31, v9")
    k(f"v_cmp_ge_u32 s[{SSIG}:{SSIG+1}], s30, v9")

    k.label("L_c_attn")
    M16 = "v_mfma_f32_32x32x16_bf16"
    M8 = "v_mfma_f32_32x32x8_bf16"
    QL = [32, 36]; QHA = [40, 42]; QHB = [44, 46]
    S = [48, 64]; O = [80, 96]; NM = [112, 128]; P = 144
    KL = [152, 156]; KH = 160; V = [164, 172]
    A3, A4, A5, A6, A7, A8 = 26, 27, 28, 29, 30, 31
    VS1, VS2, VA0 = 180, 181, 182
    SUP, SPASS, SSEG, SSTR = 48, 50, 51, 52
    def idx_attn():
        k(f"s_mul_i32 s28, s{S_HD}, 20")
        k("s_add_u32 s29, s28, 19")
        k("s_lshr_b32 s28, s28, 7")
        k("s_lshr_b32 s29, s29, 7")
        k("s_and_b32 s30, s28, s29")
        k("s_or_b32 s31, s28, s29")
        k("s_and_b32 s30, s30, 1")
        k("s_xor_b32 s30, s30, 1")
        k("s_lshl_b32 s30, s30, 4")
        k("s_and_b32 s31, s31, 1")
        k("s_lshl_b32 s31, s31, 4")
        targets([18, "s30", "s31"])
        k(f"s_lshl_b32 s28, s{S_HD}, 3")
        k(f"s_add_u32 s28, s28, s{S_QB}")
    k(f"v_mov_b32 v{A3}, v3")
    k(f"v_and_b32 v{A6}, 31, v1")
    k(f"v_lshrrev_b32 v{A7}, 5, v1")
    k("v_and_b32 v9, 7, v1")
    k(f"v_lshlrev_b32 v{A8}, 4, v9")
    k("v_bfe_u32 v9, v1, 4, 1")
    k(f"v_lshl_add_u32 v{A8}, v9, 7, v{A8}")
    k("v_and_b32 v9, 8, v1")
    k(f"v_add_u32 v{A8}, v{A8}, v9")
    k(f"v_lshl_add_u32 v{A4}, v{A7}, 8, v{A8}")
    k(f"v_cmp_gt_u32 s[30:31], 28, v{A6}")
    k("s_mov_b32 s28, 0x0ff00000")
    k("s_mov_b32 s29, 0x0ff00000")
    k(f"v_cndmask_b32 v9, 8, v{A6}, s[30:31]")
    k(f"v_mul_u32_u24 v{VA0}, 320, v{A7}")
    k(f"v_lshl_add_u32 v{VA0}, v9, 4, v{VA0}")
    k(f"v_add_u32 v{VA0}, 5120, v{VA0}")
    k("v_mov_b32 v9, 128")
    k(f"v_cndmask_b32 v{VA0}, v{VA0}, v9, s[28:29]")
    k("v_mov_b32 v9, 1280")
    k(f"v_cndmask_b32 v{VS1}, v9, 0, s[28:29]")
    k("v_mov_b32 v9, 6400")
    k(f"v_cndmask_b32 v{VS2}, v9, 0, s[28:29]")
    k(f"s_mov_b32 s{SUP}, 0")
    k(f"s_mov_b32 s{SUP+1}, -1")
    k(f"s_mov_b32 s{SPASS}, 0")
    k(f"s_movk_i32 s{SSTR}, 10240")
    ts(3)
    k(f"s_add_u32 s{SSO}, s{S_SEAM}, {CNT:#x}")
    def attn_dep():
        lab = k.newlabel()
        k(f"s_cmp_lg_u32 s{S_LAY}, 0")
        k(f"s_cbranch_scc1 {lab}")
        get_coords()
        res_load()
        k.label(lab)
        seam_pre(0, idx_attn)
        k(f"s_mul_i32 s28, s{S_HD}, {UNIT}")
        k(f"s_add_u32 s28, s28, s{S_LAY}")
        k(f"s_add_u32 s39, s28, {QKVI + 32*UNIT:#x}")
        k("s_add_u32 s38, s39, 4096")
        k(f"s_lshl_b32 s29, s{S_QB}, 1")
        k(f"s_lshr_b32 s30, s{S_W}, 1")
        k("s_add_u32 s29, s29, s30")
        k("s_mul_i32 s29, s29, 10240")
        k("s_add_u32 s28, s28, s29")
        k(f"s_add_u32 s28, s28, {QKVI:#x}")
        k(f"s_and_b32 s30, s{S_W}, 1")
        k("s_lshl_b32 s29, s30, 11")
        k("s_add_u32 s29, s29, s28")
        k("s_lshl_b32 s30, s30, 8")
        k("s_add_u32 s30, s30, s28")
        k("s_add_u32 s30, s30, 4096")
    def zero_o():
        for i in range(0, 32, 2):
            k(f"v_mov_b64 {vr(O[0]+i,2)}, 0")
        for i in (0, 2):
            k(f"v_mov_b64 {vr(P+4+i,2)}, 0")
            k(f"v_mov_b64 {vr(V[1]+4+i,2)}, 0")
    def k0_loads():
        k(f"buffer_load_dwordx4 {vr(KL[0],4)}, v3, s[8:11], s39 offen {LSC}")
        k(f"buffer_load_dwordx2 {vr(KH,2)}, v{A4}, s[8:11], s38 offen {LSC}")
    zero_o()
    k("s_waitcnt vmcnt(0)")
    k("s_barrier")
    ts(4)
    seam_post(filler=attn_dep)
    k("s_barrier")
    ts(8)
    k0_loads()
    for q in range(2):
        k(f"buffer_load_dwordx4 {vr(QL[q],4)}, v3, s[8:11], s29 offen offset:{1024*q} {LSC}")
        k(f"buffer_load_dwordx2 {vr(QHA[q],2)}, v{A8}, s[8:11], s30 offen offset:{512*q} {LSC}")
    k("s_waitcnt vmcnt(0)")
    for q in range(2):
        for i in range(2):
            k(f"v_cndmask_b32 v{QHB[q]+i}, 0, v{QHA[q]+i}, s[{SUP}:{SUP+1}]")
            k(f"v_cndmask_b32 v{QHA[q]+i}, v{QHA[q]+i}, 0, s[{SUP}:{SUP+1}]")
    def rdK(b, t):
        c, tt = divmod(t, 4)
        return f"ds_read_b128 {vr(KL[b],4)}, v{A3} offset:{c*10240 + tt*1024}"
    def rdH(pp, c):
        return f"ds_read_b64 {vr(KH+2*pp,2)}, v{A4} offset:{c*10240 + 4096 + pp*512}"
    def rdV(b):
        return [f"ds_read_b128 {vr(V[b],4)}, v{A5}", f"ds_read_b128 {vr(V[b]+4,4)}, v{A5} offset:640"]
    def smfma(sb, t, q, c):
        qh = QHA[q] if (t & 3) < 2 else QHB[q]
        return [f"{M16} {vr(S[sb],16)}, {vr(KL[t&1],4)}, {vr(QL[q],4)}, {c}",
                f"{M8} {vr(S[sb],16)}, {vr(KH+2*(t&1),2)}, {vr(qh,2)}, {vr(S[sb],16)}"]
    def rowmax_into(dst, sb, first):
        s = S[sb]
        if first:
            k(f"v_max3_f32 v{dst}, v{s}, v{s+1}, v{s+2}")
            rest = list(range(3, 16))
        else:
            rest = list(range(16))
        while len(rest) >= 2:
            k(f"v_max3_f32 v{dst}, v{dst}, v{s+rest[0]}, v{s+rest[1]}")
            rest = rest[2:]
        if rest:
            k(f"v_max_f32 v{dst}, v{dst}, v{s+rest[0]}")
    k("s_nop 1")
    for q in range(2):
        for x in smfma(q, 0, q, "0"):
            k(x)
    k.nop(12)
    rowmax_into(10, 0, True)
    rowmax_into(11, 1, True)
    k.label("L_attn_start")
    k("v_mov_b32 v12, v10")
    k("v_mov_b32 v13, v11")
    k("s_nop 1")
    k("v_permlane32_swap_b32 v10, v12")
    k("v_permlane32_swap_b32 v11, v13")
    k("s_nop 1")
    k("v_max_f32 v10, v10, v12")
    k("v_max_f32 v11, v11, v13")
    k("v_sub_f32 v10, 0, v10")
    k("v_sub_f32 v12, 0, v11")
    k("v_mov_b32 v11, v10")
    k("v_mov_b32 v13, v12")
    for i in range(0, 16, 2):
        k(f"v_mov_b64 {vr(NM[0]+i,2)}, v[10:11]")
    k(f"v_mov_b32 v{A5}, v{VA0}")
    k(f"s_cmp_lg_u32 s{SPASS}, 0")
    for x in smfma(0, 0, 0, vr(NM[0], 16)):
        k(x)
    for i in range(0, 16, 2):
        k(f"v_mov_b64 {vr(NM[1]+i,2)}, v[12:13]")
    k(f"s_cselect_b32 s{SSEG}, 2, 0")
    k("s_cselect_b32 s36, 16, 1")
    k("s_cbranch_scc1 L_attn_nock0")
    k("s_barrier")
    k.label("L_attn_nock0")
    ts(9)
    for x in rdV(0) + [rdK(1, 1), rdH(1, 0)]:
        k(x)
    k(f"v_add_u32 v{A5}, v{VS1}, v{A5}")
    k(f"v_exp_f32 v{S[0]}, v{S[0]}")
    k(f"v_exp_f32 v{S[0]+1}, v{S[0]+1}")
    k(".p2align 6")
    k.label("L_attn_loop")
    for t in range(4):
        for q in range(2):
            a = S[q]
            nt, nq = (t, 1) if q == 0 else (t + 1, 0)
            pt, pq = (t - 1, 1) if q == 0 else (t, 0)
            sm = smfma(nq, nt, nq, vr(NM[nq], 16))
            ex = [f"v_exp_f32 v{a+i}, v{a+i}" for i in range(16)]
            cv = [f"v_cvt_pk_bf16_f32 v{P+i}, v{a+2*i}, v{a+2*i+1}" for i in range(8)]
            nex = [f"v_exp_f32 v{S[nq]+i}, v{S[nq]+i}" for i in range(2)]
            pvb = f"{M16} {vr(O[pq],16)}, {vr(V[pt&1]+4,4)}, {vr(P+4,4)}, {vr(O[pq],16)}"
            pva = f"{M16} {vr(O[q],16)}, {vr(V[t&1],4)}, {vr(P,4)}, {vr(O[q],16)}"
            g1 = ex[2:6] + cv[0:2]
            g2 = ex[6:10] + cv[2:4]
            g3 = ex[10:14] + cv[4:6]
            g4 = ex[14:16] + cv[6:8] + nex
            if q == 0:
                g3[0:0] = ["s_waitcnt lgkmcnt(0)"] + rdV((t + 1) & 1) + [rdK(t & 1, t + 2)] + ([rdH(t & 1, 1)] if t >= 2 else [])
                g4 += [f"v_add_u32 v{A5}, v{VS2 if t == 2 else VS1}, v{A5}"]
            elif t == 3:
                g1[0:0] = ["s_sub_u32 s36, s36, 1"]
                g3[0:0] = ["s_cmp_lg_u32 s36, 0"]
                g3 += [f"v_add_u32 v{x}, s{SSTR}, v{x}" for x in (A3, A4)]
            for x in [sm[0]] + g1 + [sm[1]] + g2 + [pvb] + g3 + [pva] + g4:
                k(x)
    k("s_cbranch_scc1 L_attn_loop")
    k(f"s_cmp_lt_u32 s{SSEG}, 2")
    k("s_cbranch_scc1 L_attn_ck")
    k(f"{M16} {vr(O[1],16)}, {vr(V[1]+4,4)}, {vr(P+4,4)}, {vr(O[1],16)}")
    k("s_waitcnt lgkmcnt(0)")
    ts(10)
    for x in (A3, A4):
        k(f"v_subrev_u32 v{x}, {UNIT}, v{x}")
    k(f"v_bfe_u32 v9, v{A6}, 3, 1")
    k("v_mul_u32_u24 v9, 20480, v9")
    k(f"v_and_b32 v12, 7, v{A6}")
    k(f"v_lshrrev_b32 v13, 4, v{A6}")
    k("v_lshl_add_u32 v12, v13, 3, v12")
    k("v_lshl_add_u32 v14, v12, 4, v9")
    k(f"v_lshl_add_u32 v14, v{A7}, 8, v14")
    k("v_lshl_add_u32 v9, v12, 3, v9")
    k(f"v_mul_u32_u24 v13, 40960, v{A7}")
    k("v_add_u32 v9, v9, v13")
    k(f"s_lshl_b32 s28, s{S_QB}, 2")
    k(f"s_add_u32 s28, s28, s{S_W}")
    k("s_mul_i32 s28, s28, 81920")
    k(f"s_add_u32 s28, s28, s{S_LAY}")
    k(f"s_add_u32 s28, s28, {OF:#x}")
    k(f"s_lshl_b32 s29, s{S_HD}, 9")
    k("s_add_u32 s29, s29, s28")
    k("s_add_u32 s29, s29, 2048")
    for q in range(2):
        k(f"v_cndmask_b32 v{10+q}, v{O[q]+12}, v{O[q]+8}, s[{SUP}:{SUP+1}]")
    k("v_add_f32 v12, v10, v11")
    k(f"v_cmp_ngt_f32 vcc, {f2u(2.0**30):#x}, v12")
    k("v_rcp_f32 v10, v10")
    k("v_rcp_f32 v11, v11")
    k(f"s_lshr_b32 s30, s{S_HD}, 3")
    k(f"s_and_b32 s31, s{S_HD}, 16")
    k("s_add_u32 s30, s30, s31")
    k("s_lshl_b32 s30, s30, 10")
    k(f"s_and_b32 s31, s{S_HD}, 1")
    k("s_lshl_b32 s31, s31, 9")
    k("s_add_u32 s30, s30, s31")
    k(f"s_and_b32 s31, s{S_HD}, 6")
    k("s_lshl_b32 s31, s31, 6")
    k("s_add_u32 s30, s30, s31")
    k("s_add_u32 s30, s30, s28")
    k("s_add_u32 s31, s29, 40960")
    k(f"s_cmp_lg_u32 s{SPASS}, 0")
    k("s_cbranch_scc1 L_attn_out")
    k("s_cbranch_vccnz L_attn_slow")
    k.label("L_attn_out")
    for q in range(2):
        o = S[q]
        for i in range(3):
            scale_pack(O[q] + 4 * i, o + 2 * i, 10 + q)
        k(f"buffer_store_dwordx4 {vr(o,4)}, v14, s[8:11], s{29+2*q} offen {SC}")
    k("s_nop 0")
    for i in range(2):
        k(f"v_permlane32_swap_b32 v{S[0]+4+i}, v{S[1]+4+i}")
    k(f"buffer_store_dwordx2 {vr(S[0]+4,2)}, v9, s[8:11], s30 offen {SC}")
    ts(11)
    k(f"s_lshl_b32 s28, s{S_QB}, 14")
    k(f"s_and_b32 s29, s{S_HD}, 1")
    k("s_lshl_b32 s29, s29, 7")
    k("s_add_u32 s28, s28, s29")
    k("v_lshl_add_u32 v12, v1, 9, s28")
    k(f"s_mov_b64 s[{SSIG}:{SSIG+1}], 0xffffffff")
    targets([16, 16])
    seam_pre(1, idx_small)
    c_res_to_acc()
    k("s_waitcnt vmcnt(0)")
    k("s_barrier")
    ts(12)
    seam_post(filler=lambda: c_ext_loads(PH["gu"]))

    k("s_barrier")
    ts(16)
    if POLL2:
        k("s_waitcnt vmcnt(0)")
    c_small_pre(XB, STB, 0)
    k("s_waitcnt vmcnt(0)")
    c_small_touch()
    c_ext_build(PH["gu"])
    c_mainloop(PH["wo"], True, 16)
    k.nop(5)
    c_small_epilogue()
    ts(19)
    lseam_pre(1, g_rs2, g_sm, g_rb)
    k("s_waitcnt vmcnt(0)")
    k("s_barrier")
    ts(20)
    lseam_post(16)

    p = PH["gu"]
    FB, XBUF, WBUF, top_gu = c_layout(p)
    k("s_barrier")
    ts(24)
    if POLL2:
        k("s_waitcnt vmcnt(0)")
    c_stats_loads(STB)
    k(f"s_lshl_b32 s28, s{S_RB}, 2")
    k(f"s_add_u32 s28, s28, s{S_W}")
    k(f"s_mul_i32 s28, s28, {2*55296}")
    k(f"s_add_u32 s28, s28, {HF:#x}")
    k(f"s_mul_i32 s29, s{S_CB}, 3072")
    k("s_add_u32 s30, s28, s29")
    k("s_add_u32 s31, s30, 55296")
    k(f"s_lshl_b32 s29, s{S_CB}, 9")
    k("s_add_u32 s29, s28, s29")
    k(f"s_add_u32 s29, s29, {46*1024}")
    k("v_and_b32 v9, 1, v8")
    k("v_mul_u32_u24 v9, 55296, v9")
    k("v_lshrrev_b32 v12, 1, v8")
    k("v_lshl_add_u32 v9, v12, 8, v9")
    k("v_lshl_add_u32 v9, v7, 4, v9")
    if TOUCH & 8:
        k("buffer_load_dwordx4 v[244:247], v9, s[8:11], s29 offen sc1")
        for j in range(3):
            for m in range(2):
                k(f"buffer_load_dwordx4 v[244:247], v3, s[8:11], s{30+m} offen offset:{1024*j} sc1")
    c_mainloop(p, True, 24, c_stats_valu() + ["s_nop 0", "v_mul_f32 v10, v10, v10", "v_mul_f32 v11, v11, v11"])
    def glu(m, b, o):
        g_, u_ = acc(p, m, 2 * b), acc(p, m, 2 * b + 1)
        for i in range(4):
            k(f"v_max_f32 v{g_+i}, 0, v{g_+i}")
        for i in (0, 2):
            k(f"v_pk_mul_f32 {vr(g_+i,2)}, {vr(g_+i,2)}, {vr(u_+i,2)}")
        scale_pack(g_, o, 10 + m)
    for j in (0, 1, 2, 3, 12, 13):
        ext_mfma(p, j, True)
    later = [4, 5, 6, 7, 8, 9, 10, 11]
    for j in range(3):
        for m in range(2):
            o = FB + 4 + 8 * j + 4 * m
            for h in range(2):
                glu(m, 2 * j + h, o + 2 * h)
                for _ in range(2):
                    if later:
                        ext_mfma(p, later.pop(0), True)
            k(f"buffer_store_dwordx4 {vr(o,4)}, v3, s[8:11], s{30+m} offen offset:{1024*j}")
        if j == 0:
            for m in range(2):
                glu(m, 6, FB + 2 * m)
            k("s_nop 1")
            k(f"v_permlane16_swap_b32 v{FB}, v{FB+2}")
            k(f"v_permlane16_swap_b32 v{FB+1}, v{FB+3}")
            k(f"buffer_store_dwordx4 {vr(FB,4)}, v9, s[8:11], s29 offen")
            k(f"s_cmp_eq_u32 s{S_CB}, 15")
            k("s_cbranch_scc1 L_c_gu_skip")
    k.label("L_c_gu_skip")
    ts(27)
    c_res_to_acc()
    lseam_pre(2, g_rb, g_cb, g_rs2)
    k("s_waitcnt vmcnt(0)")
    k("s_barrier")
    ts(28)
    lseam_post(16)

    k("s_barrier")
    ts(32)
    if POLL2:
        k("s_waitcnt vmcnt(0)")
    c_mainloop(PH["down"], True, 32, (), lambda: (c_ext_loads(PH["qkv"]), c_small_pre(XA, STA, LSTR)))
    k(f"s_cmp_lg_u32 s{S_LAY}, 0")
    k("s_cbranch_scc1 L_c_final")
    k.nop(3)
    c_small_epilogue()
    ts(35)
    k("s_waitcnt vmcnt(4)")
    c_ext_build(PH["qkv"])
    lseam_pre(3, g_rs2, g_sm, g_rb)
    k("s_waitcnt vmcnt(0)")
    k("s_barrier")
    ts(36)
    lseam_post(16)
    k(f"s_mov_b32 s{S_LAY}, {LSTR:#x}")
    k(f"s_mov_b32 s{S_SEAM}, 20")
    k(f"s_add_u32 s{S_TS}, s{S_TS}, 320")
    k("s_branch L_c_layer")

    k.label("L_c_final")
    k("v_mul_u32_u24 v9, 1280, v7")
    k("v_lshl_add_u32 v9, v8, 3, v9")
    k(f"s_lshl_b32 s28, s{S_RS}, 2")
    k(f"s_add_u32 s28, s28, s{S_W}")
    k(f"s_mul_i32 s28, s28, {16*1280}")
    k(f"s_mul_i32 s29, s{S_CS}, 160")
    k("s_add_u32 s28, s28, s29")
    for i in range(10):
        k(f"v_cvt_pk_bf16_f32 v{RES+i}, v{ACC+2*i}, v{ACC+2*i+1}")
    for j in range(5):
        k(f"buffer_store_dwordx2 {vr(RES+2*j,2)}, v9, s[24:27], s28 offen offset:{32*j}")
    if INSTR:
        ts(35)
        k("s_waitcnt vmcnt(0)")
        ts(36)
    k.label(L_end)
    k("s_endpgm")

    k.label("L_attn_ck")
    k(f"s_cmp_eq_u32 s{SSEG}, 0")
    k("s_cselect_b32 s36, 3, 12")
    k(f"s_add_u32 s{SSEG}, s{SSEG}, 1")
    k("s_barrier")
    k("s_branch L_attn_loop")

    k.label("L_l_attn")
    k(f"s_mov_b32 s{S_SLOT}, 0")
    k("s_barrier")
    k(f"s_cmp_lg_u32 s{S_LAY}, 0")
    k("s_cbranch_scc1 L_l_havec")
    get_coords()
    k.label("L_l_havec")
    k(f"s_mul_i32 s28, s{S_HD}, {UNIT}")
    k(f"s_add_u32 s28, s28, s{S_LAY}")
    k(f"s_lshl_b32 s29, s{S_W}, 10")
    k("s_mov_b32 m0, s29")
    k("s_add_u32 s31, s28, s29")
    k(f"s_add_u32 s31, s31, {QKVI + 32*UNIT:#x}")
    for i in range(4):
        k(f"v_mov_b32 v{8+i}, 0x3f803f80")
    k("ds_write_b128 v3, v[8:11]")
    k("s_waitcnt lgkmcnt(0)")
    k(f"s_cmp_eq_u32 s{S_W}, 0")
    k("s_mov_b32 s36, 8")
    k("s_barrier")
    k("s_cbranch_scc1 L_l_skip0")
    def pieces(n, first=False):
        lab = k.newlabel()
        if not first:
            k(f"s_mov_b32 s36, {n}")
        k.label(lab)
        k(f"buffer_load_dwordx4 v3, s[8:11], s31 offen {LSC} lds")
        if first:
            k.label("L_l_skip0")
        k("s_add_u32 m0, m0, 4096")
        k("s_add_u32 s31, s31, 4096")
        k("s_sub_u32 s36, s36, 1")
        k("s_cmp_lg_u32 s36, 0")
        k(f"s_cbranch_scc1 {lab}")
    pieces(8, True)
    k("s_waitcnt vmcnt(3)")
    k("s_barrier")
    k("s_setprio 3")
    pieces(14)
    k("s_waitcnt vmcnt(9)")
    k("s_barrier")
    pieces(18)
    sb, vb = 56, 64
    k(f"s_lshl_b32 s28, s{S_W}, 8")
    k("s_add_u32 s28, s28, s2")
    k(f"s_cmp_lg_u32 s{S_LAY}, 0")
    k("s_cselect_b32 s28, 1000, s28")
    k("s_cmp_ge_u32 s28, 732")
    k("s_cbranch_scc1 L_attn_noprep")
    k(f"s_mov_b32 s{sb+27}, 0x00020000")
    k("s_and_b32 s37, s28, 31")
    k("s_cmp_ge_u32 s28, 432")
    k("s_cbranch_scc1 L_prep_small")
    k(f"s_and_b32 s{sb}, s28, 7")
    k("s_lshr_b32 s31, s28, 3")
    k("s_cmp_ge_u32 s31, 27")
    k(f"s_cselect_b32 s{sb+24}, s90, s88")
    k(f"s_cselect_b32 s{sb+25}, s91, s89")
    k("s_cselect_b32 s29, 21504, 0")
    k("s_cselect_b32 s30, 27, 0")
    k("s_sub_u32 s30, s31, s30")
    k(f"s_mov_b32 s{sb+26}, {640*3456}")
    k(f"s_movk_i32 s{sb+20}, 3456")
    k("s_lshl_b32 s30, s30, 6")
    k("v_add_u32 v9, s30, v1")
    k(f"v_lshlrev_b32 v{vb}, 1, v9")
    k("v_lshrrev_b32 v10, 4, v9")
    k("v_mov_b32 v11, 111")
    k("v_cmp_eq_u32 vcc, 107, v10")
    k(f"s_add_u32 s35, s29, {WGU_F:#x}")
    k("s_mov_b32 s31, 43008")
    k("v_cndmask_b32 v10, v10, v11, vcc")
    k("s_movk_i32 s38, 80")
    k("s_mov_b32 s39, 1")
    k("s_branch L_prep_go")
    k.label("L_prep_small")
    k(f"s_movk_i32 s{sb+20}, 1280")
    k("s_mov_b32 s39, 0")
    k(f"s_mov_b32 s29, {640*1280}")
    k("s_movk_i32 s30, 432")
    k("s_movk_i32 s38, 80")
    k("s_movk_i32 s31, 20480")
    k(f"s_mov_b32 s35, {WO_F:#x}")
    k("s_cmp_ge_u32 s28, 512")
    k(f"s_cselect_b32 s{sb+24}, s92, s86")
    k(f"s_cselect_b32 s{sb+25}, s93, s87")
    k(f"s_cselect_b32 s{sb+26}, {1728*1280}, s29")
    k("s_cselect_b32 s29, 512, s30")
    k("s_cselect_b32 s38, 216, s38")
    k("s_cselect_b32 s31, 55296, s31")
    k(f"s_cselect_b32 s35, {WD_F:#x}, s35")
    k("s_sub_u32 s28, s28, s29")
    k(f"s_mul_i32 s{sb}, s28, 205")
    k(f"s_lshr_b32 s{sb}, s{sb}, 11")
    k(f"s_mul_i32 s29, s{sb}, 10")
    k("s_sub_u32 s28, s28, s29")
    k("s_lshl_b32 s28, s28, 6")
    k("v_add_u32 v9, s28, v1")
    k(f"v_lshlrev_b32 v{vb}, 1, v9")
    k("v_lshrrev_b32 v10, 4, v9")
    k.label("L_prep_go")
    k("v_mul_u32_u24 v10, s31, v10")
    k("v_add_u32 v10, s35, v10")
    k("v_and_b32 v9, 15, v9")
    k(f"v_lshl_add_u32 v{vb+1}, v9, 4, v10")
    k(f"v_lshl_add_u32 v{vb+2}, v9, 3, v10")
    k(f"s_mul_i32 s{sb+1}, s{sb}, 10")
    k(f"s_mov_b32 s{sb+23}, s{sb+1}")
    k("s_mov_b32 s35, 0")
    k.label("L_prep_rows")
    k("s_cmp_lg_u32 s39, 0")
    k("s_cbranch_scc1 L_prep_rx")
    k("s_cmp_eq_u32 s38, 80")
    k("s_cbranch_scc1 L_prep_rwo")
    prep_rows(k, "wd", sb)
    k("s_branch L_prep_ld")
    k.label("L_prep_rwo")
    prep_rows(k, "wo", sb)
    k("s_branch L_prep_ld")
    k.label("L_prep_rx")
    prep_rows(k, "x", sb)
    k.label("L_prep_ld")
    k("s_cmp_lg_u32 s35, 0")
    k("s_cbranch_scc1 L_prep_ld2")
    prep_loads(k, sb, vb, vb + 16)
    k("s_mov_b32 s35, 1")
    k(f"s_add_u32 s{sb+23}, s{sb+23}, 5")
    k("s_branch L_prep_rows")
    k.label("L_prep_ld2")
    k("s_waitcnt vmcnt(40)")
    prep_loads(k, sb, vb, vb + 56)
    k("s_barrier")
    k("s_waitcnt vmcnt(0)")
    ts(5, 1)
    prep_finish(k, sb, vb, 10, SC, "s38", "s39")
    k("s_lshl_b32 s37, s37, 9")
    k(f"s_add_u32 s37, s37, {CNT + 384:#x}")
    ts(6, 1)
    k("s_waitcnt vmcnt(0)")
    k("s_mov_b64 exec, 1")
    k("buffer_atomic_add v15, off, s[8:11], s37 sc1")
    k("s_mov_b64 exec, -1")
    k("s_branch L_attn_Bgo")
    k.label("L_attn_noprep")
    k("s_waitcnt vmcnt(0)")
    k("s_barrier")
    k.label("L_attn_Bgo")
    ts(13, 1)
    ts(15, 1, 1)
    ts(7, 1, 2)
    k(f"s_cmp_lg_u32 s{S_LAY}, 0")
    k("s_cbranch_scc1 L_attn_prepok")
    if TOUCH & 1:
        l_touch_h()
    k(f"s_cmp_lg_u32 s{S_W}, 3")
    k("s_cbranch_scc1 L_attn_prepok")
    k("v_mov_b32 v13, 23")
    k("v_mov_b32 v12, 22")
    k("v_cmp_lt_u32 vcc, 27, v1")
    k(f"s_mov_b32 s28, {CNT + 384:#x}")
    k("s_mov_b32 s29, 0x10000")
    k("v_cndmask_b32 v13, v13, v12, vcc")
    k("v_lshlrev_b32 v12, 9, v1")
    k("s_mov_b32 exec_hi, 0")
    k.label("L_attn_prepchk")
    k("s_sleep 40")
    k("buffer_load_dword v14, v12, s[8:11], s28 offen sc1")
    k("s_waitcnt vmcnt(0)")
    k("v_cmp_ne_u32 vcc, v13, v14")
    k("s_sub_u32 s29, s29, 1")
    k("s_cbranch_scc1 L_attn_prepx")
    k("s_cbranch_vccnz L_attn_prepchk")
    k.label("L_attn_prepx")
    k("s_mov_b64 exec, -1")
    k.label("L_attn_prepok")
    k("s_waitcnt vmcnt(0)")
    ts(14, 1, 3)
    l_setup_w(PH["wo"])
    l_setup_x(PH["wo"])
    k(f"s_setprio {LPRIO}")
    k("s_barrier")
    k("s_branch L_l_after_attn")

    k.label("L_attn_slow")
    k(f"s_mov_b32 s{SPASS}, 1")
    k("v_mov_b32 v10, 0xff800000")
    k("v_mov_b32 v11, 0xff800000")
    k("s_mov_b32 s36, 0")
    k0_loads()
    k(rdH(1, 0))
    k("s_waitcnt vmcnt(0)")
    k("s_branch L_attn_slow_in")
    k.label("L_attn_slow_loop")
    k(rdH(0, 0))
    k(rdH(1, 0))
    for t in range(4):
        k(rdK(t & 1, t))
        if t == 0:
            k.label("L_attn_slow_in")
        k("s_waitcnt lgkmcnt(0)")
        for q in range(2):
            for x in smfma(q, t, q, "0"):
                k(x)
        k.nop(16)
        rowmax_into(10, 0, False)
        rowmax_into(11, 1, False)
    k(f"v_add_u32 v{A3}, s{SSTR}, v{A3}")
    k(f"v_add_u32 v{A4}, s{SSTR}, v{A4}")
    k("s_add_u32 s36, s36, 1")
    k("s_cmp_lg_u32 s36, 16")
    k("s_cbranch_scc1 L_attn_slow_loop")
    k(f"v_subrev_u32 v{A3}, {UNIT}, v{A3}")
    k(f"v_subrev_u32 v{A4}, {UNIT}, v{A4}")
    k0_loads()
    zero_o()
    k("s_waitcnt vmcnt(0)")
    k("s_branch L_attn_start")
    k.label("L_mega_last")
    k("s_endpgm")
    return k.text(256, 102)


def main(out):
    hdr = open("cdna_kernels/" + NAME + ".s.ref").read().split("\n")
    hdr = [l for l in hdr if l.startswith(";") and "@launch" not in l and "Override launch" not in l and "grid=ceil" not in l]
    prep, nprep = gen_prep()
    mega = gen_mega()
    L = [f"; @launch kernel=prep_kernel grid=({nprep},1,1) block=(192,1,1) lds=0",
         f"; @launch kernel=mega_kernel grid=(256,1,1) block=(512,1,1) lds={UNIT}"]
    txt = "\n".join(hdr + L) + "\n" + '.amdgcn_target "amdgcn-amd-amdhsa--gfx950"\n'
    txt += prep + mega
    open(out, "w").write(txt)


if __name__ == "__main__":
    main(sys.argv[1] if len(sys.argv) > 1 else "cdna_kernels/" + NAME + ".s")
```

```python
import math, struct, sys, os

NAME = "interleave_layers__mha_block__glu_gated_reglu__prompt"
INSTR = os.environ.get("INSTR", "0") == "1"

WQKV_F = 0x0001000
WGU_F  = 0x0300000
WO_F   = 0x0800000
WD_F   = 0x0900000
CNT    = 0x0C00000
LBASE  = 0x1000000
LSTR   = 0x2000000
XA     = LBASE + 0x0000000
STA    = LBASE + 0x0280000
XB     = XA
STB    = STA
QKVI   = LBASE + 0x0600000
OF     = LBASE + 0x1000000
HF     = LBASE + 0x1300000
TSBUF  = 0x8000000
WS_SIZE = 0x10000000
UNIT = 163840
SLOT = 49152
SCRATCH = 156 * 1024
SC = "sc0 sc1"
LSC = os.environ.get("LSC", "sc1")

def f2u(x):
    return struct.unpack("<I", struct.pack("<f", x))[0]

SQRTC = math.sqrt(math.log2(math.e) / math.sqrt(20.0))
MF = "v_mfma_f32_16x16x32_bf16"
ROT = int(os.environ.get("ROT", "0"))
CK2 = int(os.environ.get("CK2", "2"))
PF = int(os.environ.get("PF", "0"))
WARM = int(os.environ.get("WARM", "1"))
LPRIO = int(os.environ.get("LPRIO", "0"))
TOUCH = int(os.environ.get("TOUCH", "19"))
W2LATE = int(os.environ.get("W2LATE", "7"))
TLBW = int(os.environ.get("TLBW", "0"))
HEAD2 = int(os.environ.get("HEAD2", "1"))
PFW = int(os.environ.get("PFW", "0"))
SPF = int(os.environ.get("SPF", "0"))
SPS_ = int(os.environ.get("SPSTR", "128"))
WBL = int(os.environ.get("WBL", "0"))
HSC = os.environ.get("HSC", "")
XSC = os.environ.get("XSC", "")
SPT = eval(os.environ.get("SPT", "{}"))
POLL2 = int(os.environ.get("POLL2", "0"))


class K:
    def __init__(self, name):
        self.name = name
        self.l = []
        self.nlab = 0
    def __call__(self, s):
        for x in s.split("\n"):
            x = x.strip()
            if x.startswith("LABEL "):
                self.l.append(x.split()[1] + ":")
            elif x:
                self.l.append("    " + x)
    def label(self, s):
        self.l.append(s + ":")
    def newlabel(self, p="L"):
        self.nlab += 1
        return f"{p}_{self.name}_{self.nlab}"
    def nop(self, n):
        while n > 0:
            m = min(n, 16)
            self(f"s_nop {m-1}")
            n -= m
    def text(self, vgpr, sgpr=96):
        acc = (vgpr + 3) // 4 * 4
        kn = self.name + "_kernel"
        t = [".text", f".globl {kn}", ".p2align 8", f".type {kn},@function", f"{kn}:"]
        t += self.l
        d = ['.section .rodata,"a"', ".p2align 6", f".amdhsa_kernel {kn}",
             f"  .amdhsa_next_free_vgpr {vgpr}", f"  .amdhsa_next_free_sgpr {sgpr}",
             f"  .amdhsa_accum_offset {acc}", "  .amdhsa_group_segment_fixed_size 0",
             "  .amdhsa_kernarg_size 80", "  .amdhsa_user_sgpr_count 2",
             "  .amdhsa_user_sgpr_kernarg_segment_ptr 1", "  .amdhsa_system_sgpr_workgroup_id_x 1",
             ".end_amdhsa_kernel"]
        return "\n".join(t + d) + "\n"


def vr(b, n):
    return f"v[{b}:{b+n-1}]" if n > 1 else f"v{b}"

def srd(k, d, base, size):
    k(f"s_mov_b32 s{d}, s{base}")
    k(f"s_mov_b32 s{d+1}, s{base+1}")
    k(f"s_mov_b32 s{d+2}, {size:#x}")
    k(f"s_mov_b32 s{d+3}, 0x00020000")


def prep_rows(k, kind, sb):
    t = lambda i: f"s{sb+2+i}"
    for i in range(5):
        P, G4, S_, r0, r1, u, w = t(0), t(1), t(2), t(3), t(4), t(5), t(6)
        k(f"s_add_u32 {P}, s{sb+23}, {i}")
        if kind == "wd":
            k(f"s_min_u32 {P}, {P}, 215")
        k(f"s_and_b32 {G4}, {P}, 3")
        k(f"s_lshl_b32 {G4}, {G4}, 2")
        k(f"s_lshr_b32 {S_}, {P}, 2")
        if kind in ("x", "wd"):
            if kind == "x":
                k(f"s_lshr_b32 {r0}, {S_}, 1")
                k(f"s_and_b32 {r1}, {S_}, 1")
                tw, lim, sub = 80, 16, 2560 - 64
            else:
                k(f"s_mul_i32 {r0}, {S_}, 86")
                k(f"s_lshr_b32 {r0}, {r0}, 8")
                k(f"s_mul_i32 {r1}, {r0}, 3")
                k(f"s_sub_u32 {r1}, {S_}, {r1}")
                tw, lim, sub = 112, 46, 224 * 46 - 96
            k(f"s_mul_i32 {r0}, {r0}, {tw}")
            k(f"s_lshl_b32 {r1}, {r1}, 5")
            k(f"s_add_u32 {r0}, {r0}, {r1}")
            k(f"s_add_u32 {r0}, {r0}, {G4}")
            k(f"s_lshr_b32 {u}, {P}, 1")
            k(f"s_mul_i32 {u}, {u}, {tw}")
            k(f"s_sub_u32 {u}, {u}, {sub}")
            if kind == "wd":
                k(f"s_min_u32 {u}, {u}, 1712")
            k(f"s_and_b32 {w}, {P}, 1")
            k(f"s_lshl_b32 {w}, {w}, 3")
            k(f"s_add_u32 {u}, {u}, {w}")
            k(f"s_cmp_ge_u32 {S_}, {lim}")
            k(f"s_cselect_b32 {r0}, {u}, {r0}")
            k(f"s_cselect_b32 {r1}, 4, 16")
            k(f"s_add_u32 {r1}, {r0}, {r1}")
        else:
            k(f"s_sub_u32 {S_}, {P}, 8")
            k(f"s_lshr_b32 {r0}, {S_}, 1")
            k(f"s_mul_i32 {r0}, {r0}, 20")
            k(f"s_and_b32 {r1}, {P}, 1")
            k(f"s_lshl_b32 {r1}, {r1}, 2")
            k(f"s_add_u32 {r0}, {r0}, {r1}")
            k(f"s_and_b32 {u}, {P}, 15")
            k(f"s_mul_i32 {u}, {u}, 40")
            k(f"s_add_u32 {u}, {u}, 16")
            k(f"s_cmp_ge_u32 {S_}, 64")
            k(f"s_cselect_b32 {r0}, {u}, {r0}")
            k(f"s_cselect_b32 {r1}, 20, 8")
            k(f"s_add_u32 {r1}, {r0}, {r1}")
        k(f"s_mul_i32 s{sb+10+2*i}, {r0}, s{sb+20}")
        k(f"s_mul_i32 s{sb+11+2*i}, {r1}, s{sb+20}")

def prep_loads(k, sb, vb, v0):
    for i in range(5):
        for j in range(8):
            sreg = f"s{sb+10+2*i+(j>>2)}"
            k(f"buffer_load_ushort v{v0+8*i+j}, v{vb}, s[{sb+24}:{sb+27}], {sreg} offen")
            if j not in (3, 7):
                k(f"s_add_u32 {sreg}, {sreg}, s{sb+20}")

def prep_finish(k, sb, vb, NP, sc, npieces_reg, colsum_reg):
    done, nocs = k.newlabel(), k.newlabel()
    k(f"s_lshl_b32 s{sb+2}, s{sb+1}, 8")
    for i in range(NP):
        a = vb + 16 + 8 * i
        o = vb + 8 + 4 * (i & 1)
        if i:
            k(f"s_add_u32 s{sb+3}, s{sb+1}, {i}")
            k(f"s_cmp_ge_u32 s{sb+3}, {npieces_reg}")
            k(f"s_cbranch_scc1 {done}")
        for j in range(4):
            k(f"v_lshl_or_b32 v{o+j}, v{a+2*j+1}, 16, v{a+2*j}")
        k(f"buffer_store_dwordx4 {vr(o,4)}, v{vb+1}, s[8:11], s{sb+2} offen offset:{i*256} {sc}")
    k.label(done)
    k(f"s_cmp_eq_u32 {colsum_reg}, 0")
    k(f"s_cbranch_scc1 {nocs}")
    e = vb + 16
    for r in range(0, 8 * NP, 2):
        k(f"v_lshlrev_b32 v{e+r}, 16, v{e+r}")
        k(f"v_lshlrev_b32 v{e+r+1}, 16, v{e+r+1}")
        if r:
            k(f"v_pk_add_f32 {vr(e,2)}, {vr(e,2)}, {vr(e+r,2)}")
    k(f"v_add_f32 v{e}, v{e}, v{e+1}")
    lg = 2 if NP == 5 else 1
    k(f"s_lshr_b32 s{sb+2}, s{sb}, {lg}")
    k(f"s_lshl_b32 s{sb+2}, s{sb+2}, {6+lg}")
    k(f"s_and_b32 s{sb+3}, s{sb}, {(1<<lg)-1}")
    k(f"s_lshl_b32 s{sb+3}, s{sb+3}, 2")
    k(f"s_add_u32 s{sb+2}, s{sb+2}, s{sb+3}")
    k(f"s_add_u32 s{sb+2}, s{sb+2}, {20*1024}")
    k(f"buffer_store_dword v{e}, v{vb+2}, s[8:11], s{sb+2} offen {sc}")
    k.label(nocs)


def gen_prep():
    k = K("prep")
    NWG = 246
    L_end = "L_prep_end"
    sb, vb = 40, 16
    k(f"s_cmp_ge_u32 s2, {NWG}")
    k(f"s_cbranch_scc1 {L_end}")
    k("s_load_dwordx4 s[24:27], s[0:1], 0")
    k("s_load_dwordx2 s[4:5], s[0:1], 72")
    if TLBW:
        k("s_load_dwordx2 s[80:81], s[0:1], 16")
        k("s_load_dwordx4 s[84:87], s[0:1], 32")
        k("s_load_dwordx4 s[88:91], s[0:1], 48")
    k("v_and_b32 v1, 63, v0")
    k("v_lshrrev_b32 v2, 6, v0")
    k("s_nop 0")
    k("v_readfirstlane_b32 s12, v2")
    if WARM:
        k("s_getpc_b64 s[28:29]")
        k.label("L_prep_pc")
        k("s_add_u32 s28, s28, mega_kernel - L_prep_pc")
        k("s_addc_u32 s29, s29, 0")
        k("s_lshr_b32 s30, s2, 3")
        k("s_mul_i32 s30, s30, 3")
        k("s_add_u32 s30, s30, s12")
        k("s_lshl_b32 s30, s30, 9")
        k("s_min_u32 s30, s30, L_mega_last - mega_kernel - 512")
        k("v_lshl_add_u32 v4, v1, 3, s30")
        k("global_load_dwordx2 v[86:87], v4, s[28:29]")
    k(f"s_mul_i32 s12, s12, {NWG}")
    k("s_add_u32 s12, s12, s2")
    k("s_cmp_ge_u32 s12, 480")
    k("s_cbranch_scc1 L_prep_x")
    k(f"s_and_b32 s{sb}, s12, 15")
    k(f"s_mul_i32 s{sb+1}, s{sb}, 5")
    k(f"s_mov_b32 s{sb+23}, s{sb+1}")
    k("s_lshr_b32 s22, s12, 4")
    k("s_lshl_b32 s22, s22, 6")
    k(f"s_movk_i32 s{sb+20}, 3840")
    k("v_add_u32 v5, s22, v1")
    k(f"v_lshlrev_b32 v{vb}, 1, v5")
    prep_rows(k, "x", sb)
    k("s_waitcnt lgkmcnt(0)")
    srd(k, sb + 24, 26, 640 * 3840)
    srd(k, 8, 4, WS_SIZE)
    prep_loads(k, sb, vb, vb + 16)
    k("v_mul_u32_u24 v6, 3277, v5")
    k("v_lshrrev_b32 v6, 16, v6")
    k("v_mul_u32_u24 v7, 20, v6")
    k("v_sub_u32 v7, v5, v7")
    k("v_mul_u32_u24 v8, 43, v6")
    k("v_lshrrev_b32 v8, 8, v8")
    k("v_mul_u32_u24 v9, 6, v8")
    k("v_sub_u32 v9, v6, v9")
    k("v_and_b32 v10, 6, v9")
    k("v_bfe_u32 v11, v7, 2, 1")
    k("v_add_u32 v10, v10, v11")
    k("v_and_b32 v11, 1, v9")
    k("v_lshlrev_b32 v12, 3, v11")
    k("v_bfe_u32 v11, v7, 3, 1")
    k("v_lshl_add_u32 v12, v11, 2, v12")
    k("v_lshrrev_b32 v14, 2, v9")
    k("v_add_u32 v14, 6, v14")
    k("v_and_b32 v15, 3, v9")
    k("v_lshlrev_b32 v15, 2, v15")
    k("v_cmp_le_u32 s[30:31], 16, v7")
    k("s_nop 1")
    k("v_cndmask_b32 v10, v10, v14, s[30:31]")
    k("v_cndmask_b32 v12, v12, v15, s[30:31]")
    k("v_and_b32 v13, 3, v7")
    k("v_add_u32 v12, v12, v13")
    k("v_lshl_add_u32 v10, v8, 3, v10")
    k("v_lshrrev_b32 v14, 4, v5")
    k("v_add_u32 v14, 8, v14")
    k("v_and_b32 v15, 15, v5")
    k("s_movk_i32 s30, 1280")
    k("v_cmp_le_u32 s[30:31], s30, v5")
    k("s_nop 1")
    k("v_cndmask_b32 v10, v10, v14, s[30:31]")
    k("v_cndmask_b32 v12, v12, v15, s[30:31]")
    k(f"v_mul_u32_u24 v{vb+1}, 21504, v10")
    k(f"v_add_u32 v{vb+1}, {WQKV_F:#x}, v{vb+1}")
    k(f"v_lshl_add_u32 v{vb+1}, v12, 4, v{vb+1}")
    k(f"v_mov_b32 v{vb+2}, v{vb+1}")
    k("s_waitcnt vmcnt(0)")
    prep_finish(k, sb, vb, 5, "", "80", "1")
    k("s_endpgm")

    k.label("L_prep_x")
    k("s_sub_u32 s22, s12, 480")
    k("s_cmp_ge_u32 s22, 256")
    k(f"s_cbranch_scc1 {L_end}")
    k("s_and_b32 s23, s22, 1")
    k("s_lshl_b32 s23, s23, 3")
    k("v_lshrrev_b32 v5, 3, v1")
    k("v_add_u32 v5, s23, v5")
    k("v_and_b32 v6, 7, v1")
    k("v_mul_u32_u24 v3, 1280, v5")
    k("v_lshl_add_u32 v3, v6, 4, v3")
    k("s_lshr_b32 s23, s22, 1")
    k("s_mul_i32 s42, s23, 20480")
    k("s_waitcnt lgkmcnt(0)")
    srd(k, 16, 24, 2048 * 1280)
    srd(k, 8, 4, WS_SIZE)
    for i in range(10):
        k(f"buffer_load_dwordx4 {vr(16+4*i,4)}, v3, s[16:19], s42 offen offset:{128*i}")
    if TLBW:
        k("v_lshlrev_b32 v84, 20, v1")
        k("buffer_load_dword v85, v84, s[8:11], 0 offen")
        k(f"s_mov_b32 s70, {64<<20:#x}")
        k("s_mov_b64 exec, 0xffff")
        k("buffer_load_dword v85, v84, s[8:11], s70 offen")
        k("s_mov_b64 exec, 7")
        for (b_, n_) in ((84, 640*3456), (86, 640*3456), (88, 1728*1280), (90, 2048*1280), (80, 640*1280)):
            srd(k, 72, b_, n_)
            k("buffer_load_dword v85, v84, s[72:75], 0 offen")
        k("s_mov_b64 exec, -1")
    k("v_mov_b32 v8, 0")
    k("v_mov_b32 v9, 0")
    k("v_lshlrev_b32 v10, 3, v1")
    k("s_lshl_b32 s43, s22, 9")
    k(f"s_add_u32 s43, s43, {CNT:#x}")
    k("buffer_store_dwordx2 v[8:9], v10, s[8:11], s43 offen")
    k("v_lshlrev_b32 v4, 4, v5")
    k("v_and_b32 v15, 1, v6")
    k("v_lshrrev_b32 v7, 1, v6")
    k("v_mov_b32 v56, 0x100")
    for i in range(10):
        d = 64 + 2 * i
        k(f"v_add_u32 v10, {4*i}, v7")
        k("v_mul_u32_u24 v11, 52, v10")
        k("v_lshrrev_b32 v11, 8, v11")
        k("v_mul_u32_u24 v12, 5, v11")
        k("v_sub_u32 v12, v10, v12")
        k("v_lshrrev_b32 v13, 1, v12")
        k("v_lshl_add_u32 v13, v11, 1, v13")
        k("v_lshl_add_u32 v13, v13, 1, v15")
        k("v_lshlrev_b32 v13, 9, v13")
        k("v_and_b32 v14, 1, v12")
        k("v_lshl_add_u32 v13, v14, 3, v13")
        k("v_lshl_add_u32 v14, v11, 1, v15")
        k("v_lshlrev_b32 v14, 8, v14")
        k("v_add_u32 v14, 0x4000, v14")
        k("v_cmp_eq_u32 s[44:45], 4, v12")
        k("s_nop 1")
        k("v_cndmask_b32 v13, v13, v14, s[44:45]")
        k("v_cndmask_b32 v14, v56, 8, s[44:45]")
        k(f"v_add_u32 v{d}, v13, v4")
        k(f"v_add_u32 v{d+1}, v{d}, v14")
    k(f"s_add_u32 s43, s42, {XA:#x}")
    k("s_waitcnt vmcnt(0)")
    for i in range(10):
        k(f"buffer_store_dwordx2 {vr(16+4*i,2)}, v{64+2*i}, s[8:11], s43 offen")
        k(f"buffer_store_dwordx2 {vr(18+4*i,2)}, v{65+2*i}, s[8:11], s43 offen")
    for r in range(40):
        k(f"v_lshlrev_b32 v10, 16, v{16+r}")
        k(f"v_and_b32 v11, 0xffff0000, v{16+r}")
        k("v_add_f32 v8, v8, v10")
        k("v_fmac_f32 v9, v10, v10")
        k("v_add_f32 v8, v8, v11")
        k("v_fmac_f32 v9, v11, v11")
    k("v_lshlrev_b32 v4, 14, v6")
    k("v_lshl_add_u32 v4, v5, 3, v4")
    k("s_lshl_b32 s43, s23, 7")
    k(f"s_add_u32 s43, s43, {STA:#x}")
    k("buffer_store_dwordx2 v[8:9], v4, s[8:11], s43 offen")
    k.label(L_end)
    k("s_endpgm")
    return k.text(88, 96), NWG


class Ph:
    def __init__(s, name, big, NB, nsteps, xsrc, wsrc):
        s.name, s.big, s.NB, s.nsteps, s.xsrc, s.wsrc = name, big, NB, nsteps, xsrc, wsrc
        s.MX = 2 if big else 1
        s.NXF = 4 * s.MX
        s.SPS = 2 if big else 4
        s.STEP = (s.NXF + NB) * 1024
        s.XS = nsteps * 1024
        s.WS = (nsteps + 1) * 1024 if big else nsteps * 1024
        s.nst = (nsteps + s.SPS - 1) // s.SPS
        s.skip = s.SPS * s.nst - nsteps
        s.SL = [x * 1024 for x in {"wo": [108, 0, 36, 72], "gu": [0, 44, 88], "down": [88, 48, 124, 0], "qkv": [0, 124, 88, 48]}[name]]
        s.R = len(s.SL)
        s.EARLY = eval(os.environ.get("EARLY", '{"wo": {3: [0], 4: [1]}, "gu": {8: [1], 9: [0, 2]}, "down": {12: [0, 1], 13: [2]}, "qkv": {}}'))[name]
        s.nx = 4
        s.nw = NB // 2 if big else NB
        s.n = s.nx + s.nw
        assert s.SPS * s.STEP <= SLOT

PH = {
    "qkv": Ph("qkv", True, 8, 20, XA, WQKV_F),
    "wo": Ph("wo", False, 5, 20, OF, WO_F),
    "gu": Ph("gu", True, 14, 20, XB, WGU_F),
    "down": Ph("down", False, 5, 54, HF, WD_F),
}

S_W = 12
S_RB, S_CB = 13, 14
S_RS, S_CS = 15, 16
S_HD, S_QB = 17, 18
S_LAY = 19
S_SLOT = 20
S_SEAM = 21
S_TS = 22
S_ROLE = 23
S_FAST = 3
TK = CNT + 64*512 + 384
FL = CNT + 128*512 + 384
FORCE_SLOW = int(os.environ.get('FORCE_SLOW', '0'))
RES = 16


def gen_mega():
    k = K("mega")
    L_end = "L_mega_end"

    def ts(i, role=0, wave=0):
        if not INSTR:
            return
        lab = k.newlabel()
        k(f"s_xor_b32 s96, s{S_ROLE}, {role}")
        k(f"s_xor_b32 s97, s{S_W}, {wave}")
        k("s_or_b32 s96, s96, s97")
        k(f"s_cbranch_scc1 {lab}")
        k("s_memtime s[96:97]")
        k("s_memrealtime s[98:99]")
        k("s_waitcnt lgkmcnt(0)")
        k("s_mov_b64 s[100:101], exec")
        k("s_mov_b64 exec, 1")
        k("v_mov_b32 v0, s96")
        k(f"buffer_store_dword v0, off, s[8:11], s{S_TS} offset:{8*i}")
        k("s_nop 1")
        k("v_mov_b32 v0, s98")
        k(f"buffer_store_dword v0, off, s[8:11], s{S_TS} offset:{8*i+4}")
        k("s_mov_b64 exec, s[100:101]")
        k.label(lab)

    def get_coords():
        k(f"v_mov_b32 v9, {SCRATCH + 1024:#x}")
        k("ds_read_b32 v9, v9")
        k("s_waitcnt lgkmcnt(0)")
        k("v_readfirstlane_b32 s28, v9")
        k(f"s_lshr_b32 s{S_FAST}, s28, 8")
        k("s_bfe_u32 s30, s28, 0x30005")
        k(f"s_lshl_b32 s{S_RS}, s30, 2")
        k("s_and_b32 s29, s28, 3")
        k(f"s_add_u32 s{S_RS}, s{S_RS}, s29")
        k(f"s_bfe_u32 s{S_CS}, s28, 0x30002")
        k(f"s_lshl_b32 s{S_RB}, s30, 1")
        k("s_and_b32 s29, s28, 1")
        k(f"s_add_u32 s{S_RB}, s{S_RB}, s29")
        k(f"s_bfe_u32 s{S_CB}, s28, 0x40001")
        k(f"s_mov_b32 s{S_HD}, s{S_RS}")
        k(f"s_mov_b32 s{S_QB}, s{S_CS}")

    def next_slot(dst=S_SLOT):
        k(f"s_add_u32 s{dst}, s{dst}, {SLOT}")
        k(f"s_cmp_eq_u32 s{dst}, {3*SLOT}")
        k(f"s_cselect_b32 s{dst}, 0, s{dst}")

    k("s_cmp_ge_u32 s2, 256")
    k(f"s_cbranch_scc1 {L_end}")
    k("s_load_dwordx2 s[4:5], s[0:1], 72")
    k("s_load_dwordx2 s[6:7], s[0:1], 56")
    k("s_load_dwordx2 s[86:87], s[0:1], 16")
    k("s_load_dwordx4 s[88:91], s[0:1], 32")
    k("s_load_dwordx2 s[92:93], s[0:1], 48")
    k("v_and_b32 v1, 63, v0")
    k("v_lshrrev_b32 v2, 6, v0")
    k("v_lshlrev_b32 v3, 4, v1")
    k(f"v_readfirstlane_b32 s{S_W}, v2")
    k(f"s_and_b32 s{S_RB}, s2, 1")
    k(f"s_lshl_b32 s{S_RB}, s{S_RB}, 3")
    k("s_bfe_u32 s28, s2, 0x30003")
    k(f"s_add_u32 s{S_RB}, s{S_RB}, s28")
    k(f"s_bfe_u32 s{S_CB}, s2, 0x20001")
    k(f"s_lshl_b32 s{S_CB}, s{S_CB}, 2")
    k("s_lshr_b32 s28, s2, 6")
    k(f"s_add_u32 s{S_CB}, s{S_CB}, s28")
    k(f"s_mov_b32 s{S_LAY}, 0")
    k(f"s_mov_b32 s{S_SEAM}, 0")
    k(f"s_lshl_b32 s{S_TS}, s2, 10")
    k(f"s_add_u32 s{S_TS}, s{S_TS}, {TSBUF:#x}")
    k("s_waitcnt lgkmcnt(0)")
    srd(k, 8, 4, WS_SIZE)
    srd(k, 24, 6, 2048 * 1280)
    k("v_mov_b32 v15, 1")
    k(f"s_mov_b32 s{S_ROLE}, 0")
    k(f"s_cmp_lt_u32 s{S_W}, 4")
    k("s_cbranch_scc1 L_comp")
    k(f"s_mov_b32 s{S_ROLE}, 1")

    k(f"s_sub_u32 s{S_W}, s{S_W}, 4")
    k(f"s_setprio {LPRIO}")
    AX = {"qkv": 32, "wo": 48, "gu": 32, "down": 48}
    DUMMY = {"qkv": (10, 0xb0), "gu": (15, 0xff0)}
    def dummy_mask(p, dst):
        c, msk = DUMMY[p.name]
        k(f"s_cmp_eq_u32 s{S_CB}, {c}")
        k(f"s_cselect_b32 s{dst}, {msk:#x}, 0")
    def l_setup_w(p):
        a = AX[p.name] + 4
        rc = S_CB if p.big else S_CS
        k(f"s_mul_i32 s28, s{rc}, {p.NB*p.WS}")
        k(f"s_lshr_b32 s29, s{S_W}, {1 if p.big else 0}")
        k("s_lshl_b32 s29, s29, 10")
        k("s_add_u32 s28, s28, s29")
        k(f"s_add_u32 s28, s28, {p.wsrc - p.skip*1024:#x}")
        if not p.big:
            for j in range(p.nw):
                k(f"s_add_u32 s29, s28, {j*p.WS - (j&3)*1024}")
                k(f"v_add_u32 v{a+j}, s29, v3")
            return
        dummy_mask(p, 30)
        k(f"s_and_b32 s29, s{S_W}, 1")
        k(f"s_mul_i32 s29, s29, {p.nw}")
        for j in range(p.nw):
            k("s_bitcmp1_b32 s30, s29")
            k("s_cselect_b32 s31, 0, s29")
            k(f"s_mul_i32 s31, s31, {p.WS}")
            k("s_add_u32 s31, s31, s28")
            k(f"s_sub_u32 s31, s31, {(j&3)*1024}")
            k(f"v_add_u32 v{a+j}, s31, v3")
            k("s_add_u32 s29, s29, 1")
        if p.name == "qkv":
            k(f"s_cmp_lt_u32 s{S_CB}, 11")
            k("s_cselect_b32 s30, 0x80, 0")
            k("s_cmp_eq_u32 s29, 8")
            k("s_cselect_b32 s30, s30, 0")
            k("v_and_b32 v4, s30, v3")
            k(f"v_sub_u32 v{a+3}, v{a+3}, v4")
    def l_setup_x(p):
        a = AX[p.name]
        rr = S_RB if p.big else S_RS
        k(f"s_mul_i32 s28, s{rr}, {p.NXF*p.XS}")
        if p.big:
            k(f"s_and_b32 s29, s{S_W}, 1")
            k(f"s_mul_i32 s29, s29, {4*p.XS}")
            k("s_add_u32 s28, s28, s29")
            k(f"s_lshr_b32 s29, s{S_W}, 1")
        else:
            k(f"s_mov_b32 s29, s{S_W}")
        k("s_lshl_b32 s29, s29, 10")
        k("s_add_u32 s28, s28, s29")
        k(f"s_add_u32 s28, s28, {p.xsrc - p.skip*1024:#x}")
        if p.name == "wo":
            k(f"s_add_u32 s28, s28, s{S_LAY}")
        for j in range(4):
            k(f"v_add_u32 v{a+j}, s28, v3")
            if j < 3:
                k(f"s_add_u32 s28, s28, {p.XS - 1024}")
    LOFF = {"qkv": 40, "wo": 42, "gu": 44, "down": 42}
    for nm in ("qkv", "wo", "gu"):
        p = PH[nm]
        r = LOFF[nm]
        if p.big:
            k(f"s_lshr_b32 s28, s{S_W}, 1")
            k(f"s_mul_i32 s28, s28, {p.STEP}")
            k(f"s_and_b32 s29, s{S_W}, 1")
            k(f"s_lshl_b32 s30, s29, 12")
            k(f"s_add_u32 s{r}, s28, s30")
            k(f"s_mul_i32 s30, s29, {p.nw*1024}")
            k(f"s_add_u32 s{r+1}, s28, s30")
            k(f"s_add_u32 s{r+1}, s{r+1}, {p.NXF*1024}")
        else:
            k(f"s_mul_i32 s{r}, s{S_W}, {p.STEP}")
            k(f"s_add_u32 s{r+1}, s{r}, 4096")
    class Trk:
        def __init__(t): t.ops = []
        def has(t, g): return any(x == g for x, n in t.ops)
        def allowed(t, tags):
            last = max(i for i, (g, n) in enumerate(t.ops) if g in tags)
            return sum(n for g, n in t.ops[last+1:])
    def l_issue(p, part, st, trk):
        a = AX[p.name] + (0 if part == "x" else 4)
        n = p.nx if part == "x" else p.nw
        r = LOFF[p.name] + (0 if part == "x" else 1)
        lds = p.SL[st % p.R]
        lab = None
        if st == 0 and p.skip:
            lab = k.newlabel()
            k(f"s_cmp_lt_u32 s{S_W}, {p.skip}")
            k(f"s_cbranch_scc1 {lab}")
        for j in range(n):
            if j % 4 == 0:
                k(f"s_add_u32 m0, s{r}, {lds + j*1024}")
                k(f"s_mov_b32 s35, {st*p.SPS*1024}")
            k(f"buffer_load_dwordx4 v{a+j}, s[8:11], s35 offen offset:{(j&3)*1024} {LSC if part == 'x' else ''} lds")
        if lab:
            k.label(lab)
        trk.ops.append(((p.name, part, st), 0 if lab else n))
    def l_touch_h():
        k(f"s_lshl_b32 s28, s{S_RB}, 2")
        k(f"s_add_u32 s28, s28, s{S_W}")
        k(f"s_mul_i32 s28, s28, {2*55296}")
        k(f"s_add_u32 s28, s28, {HF:#x}")
        k(f"s_mul_i32 s29, s{S_CB}, 3072")
        k("s_add_u32 s30, s28, s29")
        k(f"s_lshl_b32 s29, s{S_CB}, 9")
        k("s_add_u32 s29, s28, s29")
        k(f"s_add_u32 s29, s29, {46*1024}")
        k(f"s_cmp_eq_u32 s{S_CB}, 15")
        k("s_cselect_b32 s31, 0, 1024")
        k("v_add_u32 v24, s31, v3")
        k("v_add_u32 v25, s31, v24")
        for m in range(2):
            for j in range(3):
                k(f"buffer_load_dwordx4 v[20:23], v{3 if j == 0 else 23+j}, s[8:11], s30 offen sc1")
            k("s_mov_b32 exec_hi, 0")
            k("buffer_load_dwordx4 v[20:23], v3, s[8:11], s29 offen sc1")
            k("s_mov_b64 exec, -1")
            if m == 0:
                k("s_add_u32 s30, s30, 55296")
                k("s_add_u32 s29, s29, 55296")
    def l_touch_x():
        k(f"s_lshl_b32 s28, s{S_RS}, 2")
        k(f"s_add_u32 s28, s28, s{S_W}")
        k("s_mul_i32 s29, s28, 20480")
        k(f"s_add_u32 s29, s29, {XA:#x}")
        k(f"s_lshl_b32 s30, s{S_CS}, 11")
        k("s_add_u32 s30, s30, s29")
        k(f"s_lshl_b32 s31, s{S_CS}, 9")
        k("s_add_u32 s31, s31, s29")
        k("s_add_u32 s31, s31, 16384")
        k("buffer_load_dwordx4 v[20:23], v3, s[8:11], s30 offen sc1")
        k("buffer_load_dwordx4 v[20:23], v3, s[8:11], s30 offen offset:1024 sc1")
        k("s_mov_b32 exec_hi, 0")
        k("buffer_load_dwordx4 v[20:23], v3, s[8:11], s31 offen sc1")
        k(f"s_lshl_b32 s29, s{S_CS}, 14")
        k("s_lshl_b32 s28, s28, 7")
        k("s_add_u32 s29, s29, s28")
        k(f"s_add_u32 s29, s29, {STA:#x}")
        k("s_mov_b64 exec, 1")
        k("buffer_load_dwordx4 v[20:23], v3, s[8:11], s29 offen sc1")
        k("s_mov_b64 exec, -1")
    def l_gemm(p, nxt, trk):
        def need(st):
            return trk.allowed({(p.name, "x", st), (p.name, "w", st)})
        def fill(st):
            for part in ("w", "x"):
                if not trk.has((p.name, part, st)):
                    l_issue(p, part, st, trk)
        fill(0)
        fill(1)
        for st in range(p.nst):
            k(f"s_waitcnt vmcnt({need(st)})")
            k("s_barrier")
            if st == 0:
                for i in range(2, p.R):
                    fill(i)
                if nxt:
                    l_setup_w(nxt)
                if p.name == "down" and TOUCH & 16:
                    lab = k.newlabel()
                    k(f"s_cmp_lg_u32 s{S_LAY}, 0")
                    k(f"s_cbranch_scc1 {lab}")
                    l_touch_x()
                    k.label(lab)
            elif st - 1 + p.R < p.nst:
                fill(st - 1 + p.R)
            if st in SPT.get(p.name, []):
                i_ = SPT[p.name].index(st)
                base, size = (WD_F, 40*55296) if p.name == "gu" else (WQKV_F, 128*21504)
                k(f"s_lshl_b32 s28, s{S_CS}, 2")
                k(f"s_and_b32 s29, s{S_RS}, 3")
                k("s_add_u32 s28, s28, s29")
                k("s_lshl_b32 s28, s28, 2")
                k(f"s_add_u32 s28, s28, s{S_W}")
                k("s_lshl_b32 s28, s28, 13")
                k(f"s_add_u32 s28, s28, {i_ << 20}")
                k(f"s_min_u32 s28, s28, {size - 8192}")
                k(f"s_add_u32 s28, s28, {base:#x}")
                k("v_lshlrev_b32 v24, 7, v1")
                k("buffer_load_dword v20, v24, s[8:11], s28 offen")
                trk.ops.append(("t", 1))
            if p.name == "gu" and st == p.nst - 1 and TOUCH & 2:
                l_touch_h()
                trk.ops.append(("t", 8))
            if p.name == "down" and st == min(p.EARLY):
                assert st == p.nst - 2
                lab = k.newlabel()
                k(f"s_cmp_eq_u32 s{S_LAY}, 0")
                k(f"s_cbranch_scc1 {lab}")
                k("s_waitcnt vmcnt(0)")
                k("s_barrier")
                k("s_endpgm")
                k.label(lab)
            for i in p.EARLY.get(st, []):
                l_issue(nxt, "w", i, trk)
        return trk

    k("s_getreg_b32 s46, hwreg(HW_REG_XCC_ID)")
    k("s_and_b32 s46, s46, 7")
    k(f"s_cmp_lg_u32 s{S_W}, 3")
    k("s_cbranch_scc1 L_l_notk")
    k("s_lshl_b32 s28, s46, 9")
    k(f"s_add_u32 s28, s28, {TK:#x}")
    k("v_mov_b32 v16, 1")
    k("s_mov_b64 exec, 1")
    k("buffer_atomic_add v16, off, s[8:11], s28 sc0 sc1")
    k("s_mov_b64 exec, -1")
    k.label("L_l_notk")
    l_setup_w(PH["qkv"])
    l_setup_x(PH["qkv"])
    k("s_barrier")
    l_gemm(PH["qkv"], None, Trk())
    k(f"s_cmp_lg_u32 s{S_W}, 3")
    k("s_cbranch_scc1 L_l_attn")
    k("v_lshlrev_b32 v12, 9, v1")
    k(f"s_mov_b32 s28, {TK:#x}")
    k("s_mov_b32 s29, 0x40000")
    k("s_mov_b64 exec, 0xff")
    k.label("L_l_tk")
    k("buffer_load_dword v14, v12, s[8:11], s28 offen sc1")
    k("s_waitcnt vmcnt(0)")
    k("s_mov_b32 s30, 0")
    for i in range(8):
        k(f"v_readlane_b32 s31, v14, {i}")
        k("s_add_u32 s30, s30, s31")
    k("s_sub_u32 s29, s29, 1")
    k("s_cbranch_scc1 L_l_tkx")
    k("s_cmp_lg_u32 s30, 256")
    k("s_cbranch_scc1 L_l_tk")
    k.label("L_l_tkx")
    k("v_cmp_ne_u32 vcc, 32, v14")
    k("v_readfirstlane_b32 s30, v16")
    k("s_lshl_b32 s31, s46, 5")
    k("s_add_u32 s30, s30, s31")
    k("s_add_u32 s30, s30, 256")
    k("s_and_b32 s28, s2, 7")
    k("s_lshl_b32 s28, s28, 5")
    k("s_lshr_b32 s29, s2, 3")
    k("s_add_u32 s28, s28, s29")
    if FORCE_SLOW:
        k("s_mov_b32 s28, s2")
        k("s_mov_b64 vcc, 1")
    k("s_cmp_eq_u64 vcc, 0")
    k("s_cselect_b32 s28, s30, s28")
    k("s_mov_b64 exec, -1")
    k("v_mov_b32 v14, s28")
    k(f"v_mov_b32 v12, {SCRATCH + 1024:#x}")
    k("ds_write_b32 v12, v14")
    k("s_waitcnt lgkmcnt(0)")
    k("s_branch L_l_attn")
    k.label("L_l_after_attn")
    t = Trk()
    for i in range(4):
        l_issue(PH["wo"], "w", i, t)
    k("s_barrier")
    for (nm, nx) in (("wo", "gu"), ("gu", "down"), ("down", "qkv")):
        t = l_gemm(PH[nm], PH[nx], t)
        if nm == "down":
            k(f"s_mov_b32 s{S_LAY}, {LSTR:#x}")
            k(f"s_add_u32 s{S_TS}, s{S_TS}, 320")
        l_setup_x(PH[nx])
        k("s_barrier")
        k("s_barrier")
    l_gemm(PH["qkv"], None, t)
    k("s_branch L_l_attn")
    k.label("L_l_done")
    k("s_waitcnt vmcnt(0)")
    k("s_endpgm")

    k.label("L_comp")
    k("v_and_b32 v7, 15, v1")
    k("v_lshrrev_b32 v8, 4, v1")
    k("v_lshlrev_b32 v2, 7, v1")

    def small_addr():
        k(f"s_lshl_b32 s28, s{S_RS}, 2")
        k(f"s_add_u32 s28, s28, s{S_W}")
        k("s_mul_i32 s29, s28, 20480")
        k(f"s_lshl_b32 s30, s{S_CS}, 11")
        k("s_add_u32 s30, s30, s29")
        k(f"s_lshl_b32 s31, s{S_CS}, 9")
        k("s_add_u32 s31, s31, s29")
        k("s_add_u32 s31, s31, 16384")
        k("v_lshrrev_b32 v9, 1, v8")
        k("v_lshlrev_b32 v9, 8, v9")
        k("v_lshl_add_u32 v9, v7, 4, v9")
    def res_load():
        small_addr()
        k(f"s_add_u32 s30, s30, {XA:#x}")
        k(f"s_add_u32 s31, s31, {XA:#x}")
        k(f"buffer_load_dwordx4 {vr(RES,4)}, v3, s[8:11], s30 offen")
        k(f"buffer_load_dwordx4 {vr(RES+4,4)}, v3, s[8:11], s30 offen offset:1024")
        k("v_and_b32 v10, 1, v8")
        k("v_lshl_add_u32 v9, v10, 3, v9")
        k(f"buffer_load_dwordx2 {vr(RES+8,2)}, v9, s[8:11], s31 offen")

    SSIG, SSO, SPO = 54, 53, 94
    def seam_pre(seam, idx_setup):
        idx_setup()
        k("s_lshl_b32 s28, s28, 9")
        k(f"s_add_u32 s{SSO}, s{S_SEAM}, {CNT + 4*seam:#x}")
        k(f"s_add_u32 s{SPO}, s28, s{SSO}")
    def seam_post(both_roles=False, filler=None):
        lab, l1, lp = k.newlabel(), k.newlabel(), k.newlabel()
        if both_roles:
            k(f"s_cmp_lg_u32 s{S_ROLE}, 0")
            k(f"s_cbranch_scc1 {lab}")
        k(f"s_cmp_lg_u32 s{S_W}, 0")
        k(f"s_cbranch_scc1 {l1}")
        k(f"s_mov_b64 exec, s[{SSIG}:{SSIG+1}]")
        k(f"buffer_atomic_add v15, v12, s[8:11], s{SSO} offen sc1")
        k("s_mov_b64 exec, -1")
        k.label(l1)
        if filler:
            filler()
        k(f"s_cmp_lg_u32 s{S_W}, 1")
        k(f"s_cbranch_scc1 {lab}")
        k("s_mov_b32 s95, 0x40000")
        k(f"s_add_u32 s66, s{SPO}, 128")
        k(f"s_add_u32 s67, s{SPO}, 256")
        k.label(lp)
        k(f"s_load_dword s63, s[4:5], s{SPO} glc")
        k("s_load_dword s64, s[4:5], s66 glc")
        k("s_load_dword s65, s[4:5], s67 glc")
        k("s_sub_u32 s95, s95, 1")
        k(f"s_cbranch_scc1 {lp}_x")
        k("s_waitcnt lgkmcnt(0)")
        k("s_xor_b32 s63, s63, s60")
        k("s_xor_b32 s64, s64, s61")
        k("s_xor_b32 s65, s65, s62")
        k("s_or_b32 s63, s63, s64")
        k("s_or_b32 s63, s63, s65")
        k(f"s_cbranch_scc1 {lp}")
        k.label(lp + "_x")
        k("s_waitcnt lgkmcnt(0)")
        k.label(lab)
    def lseam_pre(seam, sig_group, sig_member, poll_group):
        k(f"s_lshr_b32 s28, s{S_LAY}, {25 - 15}")
        k(f"s_add_u32 s28, s28, {FL + seam*16*512:#x}")
        sig_group()
        k("s_lshl_b32 s29, s29, 9")
        k(f"s_add_u32 s{SSO}, s28, s29")
        sig_member()
        k("s_lshl_b32 s29, s29, 2")
        k(f"s_add_u32 s{SSO}, s{SSO}, s29")
        poll_group()
        k("s_lshl_b32 s29, s29, 9")
        k(f"s_add_u32 s{SPO}, s28, s29")
        k("v_lshlrev_b32 v13, 2, v1")
    def lseam_post(nprod, filler=None):
        lab, l1, l2, lp = k.newlabel(), k.newlabel(), k.newlabel(), k.newlabel()
        k(f"s_cmp_lg_u32 s{S_W}, 0")
        k(f"s_cbranch_scc1 {l1}")
        k("s_mov_b64 exec, 1")
        k(f"s_cmp_lg_u32 s{S_FAST}, 0")
        k(f"s_cbranch_scc1 {l2}")
        k("buffer_wbl2 sc1")
        k("s_waitcnt vmcnt(0)")
        k(f"buffer_store_dword v15, off, s[8:11], s{SSO} sc0 sc1")
        k("s_mov_b64 exec, -1")
        k(f"s_branch {l1}")
        k.label(l2)
        k(f"buffer_store_dword v15, off, s[8:11], s{SSO}")
        k("s_mov_b64 exec, -1")
        k.label(l1)
        if filler:
            filler()
        k(f"s_cmp_lg_u32 s{S_W}, 1")
        k(f"s_cbranch_scc1 {lab}")
        k("s_mov_b32 s95, 0x40000")
        k(f"s_mov_b64 exec, {(1 << nprod) - 1:#x}")
        k.label(lp)
        k(f"buffer_load_dword v14, v13, s[8:11], s{SPO} offen sc1")
        k("s_waitcnt vmcnt(0)")
        k("v_cmp_ne_u32 vcc, 1, v14")
        k("s_sub_u32 s95, s95, 1")
        k(f"s_cbranch_vccz {lp}_x")
        k(f"s_cbranch_scc0 {lp}")
        k.label(lp + "_x")
        k("s_mov_b64 exec, -1")
        k.label(lab)
    g_qb = lambda: k(f"s_mov_b32 s29, s{S_QB}")
    g_hd = lambda: k(f"s_mov_b32 s29, s{S_HD}")
    g_rb = lambda: k(f"s_mov_b32 s29, s{S_RB}")
    g_cb = lambda: k(f"s_mov_b32 s29, s{S_CB}")
    g_rs2 = lambda: k(f"s_lshr_b32 s29, s{S_RS}, 1")
    def g_sm():
        k(f"s_and_b32 s29, s{S_RS}, 1")
        k("s_lshl_b32 s29, s29, 3")
        k(f"s_add_u32 s29, s29, s{S_CS}")
    def targets(t):
        for i in range(3):
            k(f"s_mov_b32 s{60+i}, {t[i] if i < len(t) else 0}")

    ACC = 32
    def c_layout(p):
        FB = ACC + p.MX * p.NB * 4
        if p.name == "gu":
            XBUF = [FB, FB + 8]; WBUF = [FB + 16, FB + 44]; top = FB + 72
        elif p.name == "qkv":
            XBUF = [FB, FB + 8]; WBUF = [FB + 16, FB + 48]; top = FB + 80
        else:
            XBUF = [FB, FB + 8]; WBUF = [FB + 16, FB + 56]; top = FB + 96
        return FB, XBUF, WBUF, top
    def acc(p, m, j):
        return ACC + (m * p.NB + j) * 4
    def c_units(p):
        FB, XBUF, WBUF, top = c_layout(p)
        U = []
        if p.name == "gu":
            for u in range(4):
                st, h = u >> 1, u & 1
                rd = []
                if h == 0:
                    rd += [(XBUF[st] + 4 * m, 5, st * p.STEP + 1024 * m) for m in range(2)]
                rd += [(WBUF[h] + 4 * j, 6, st * p.STEP + (8 + 7 * h + j) * 1024) for j in range(7)]
                mm = [(acc(p, m, 7 * h + j), WBUF[h] + 4 * j, XBUF[st] + 4 * m) for j in range(7) for m in range(2)]
                U.append((rd, mm))
        elif p.name == "qkv":
            for st in range(2):
                rd = [(XBUF[st] + 4 * m, 5, st * p.STEP + 1024 * m) for m in range(2)]
                rd += [(WBUF[st] + 4 * j, 6, st * p.STEP + (8 + j) * 1024) for j in range(8)]
                mm = [(acc(p, m, j), WBUF[st] + 4 * j, XBUF[st] + 4 * m) for j in range(8) for m in range(2)]
                U.append((rd, mm))
        else:
            for u in range(2):
                rd, mm = [], []
                for s_ in range(2):
                    st = 2 * u + s_
                    rd += [(XBUF[u] + 4 * s_, 5, st * p.STEP)]
                    rd += [(WBUF[u] + 20 * s_ + 4 * j, 6, st * p.STEP + (4 + j) * 1024) for j in range(5)]
                    mm += [(acc(p, 0, j), WBUF[u] + 20 * s_ + 4 * j, XBUF[u] + 4 * s_) for j in range(5)]
                U.append((rd, mm))
        return U
    AXR, AWR = [4, 5, 6, 30], [27, 28, 29, 31]
    def c_addr(p):
        k(f"s_mul_i32 s28, s{S_W}, {p.MX*1024}")
        for i in range(p.R):
            k(f"v_add_u32 v{AWR[i]}, {p.SL[i]:#x}, v3")
            k(f"v_add_u32 v{AXR[i]}, s28, v{AWR[i]}")
    def c_mainloop(p, swap, tag, tail_extra=(), after_b0=None):
        U = c_units(p)
        NUS = len(U)
        def rdi(r, slot, sp=False):
            if sp and r[1] == 5:
                return f"ds_read2st64_b64 {vr(r[0],4)}, v9 offset0:{r[2]//512} offset1:{r[2]//512+1}"
            return f"ds_read_b128 {vr(r[0],4)}, v{(AXR if r[1] == 5 else AWR)[slot]} offset:{r[2]}"
        def special(slot):
            if p.name != "wo":
                return False
            k("v_lshlrev_b32 v9, 3, v1")
            k(f"v_sub_u32 v9, v{AXR[slot]}, v9")
            return True
        extra = list(tail_extra)
        seen = set()
        def run(mm, rd, nex=0, mid=(), z=False):
            rd = list(rd)
            mid = list(mid)
            per = 1 if len(rd) <= len(mm) else 2
            for i, (a, w, x) in enumerate(mm):
                a_, b_ = (w, x) if swap else (x, w)
                c_ = "0" if z and a not in seen else vr(a, 4)
                seen.add(a)
                k(f"{MF} {vr(a,4)}, {vr(a_,4)}, {vr(b_,4)}, {c_}")
                if not rd and mid:
                    k(mid.pop(0))
                for _ in range(per):
                    if rd:
                        k(rd.pop(0))
                for _ in range(nex):
                    if extra:
                        k(extra.pop(0))
            for r in rd + mid:
                k(r)
        R = p.R
        def stage(slot, mid=(), z=False, nex=0, entry=None):
            for u in range(NUS):
                last = u == NUS - 1
                if entry and u == entry[0]:
                    k.label(entry[1])
                k("s_waitcnt lgkmcnt(0)")
                if last:
                    k("s_barrier")
                ns = (slot + 1) % R if last else slot
                run(U[u][1], [rdi(r, ns) for r in U[(u + 1) % NUS][0]], nex, mid if last else (), z)
        c_addr(p)
        nfull = p.nst - 1
        sp = special(0)
        npeel = 1 if p.big else 0
        u0 = NUS * p.skip // p.SPS
        k(f"s_mov_b32 s36, {(nfull - npeel + R - 1) // R}")
        k("s_barrier")
        ts(tag + 1)
        for r in U[u0][0]:
            k(rdi(r, 0, sp))
        if after_b0:
            after_b0()
        if p.name == "wo":
            for st in range(nfull):
                stage(st % R, nex=1 if st else 0)
        else:
            L = k.newlabel()
            if npeel:
                stage(0, (), True)
            p0 = (R - (nfull - npeel) % R) % R
            if p0 or u0:
                k(f"s_branch {L}_mid")
            k(".p2align 4")
            k.label(L)
            for pos in range(R):
                stage((npeel + pos - p0) % R, ["s_sub_u32 s36, s36, 1", "s_cmp_lg_u32 s36, 0"] if pos == R - 1 else (),
                      entry=(u0, L + "_mid") if pos == p0 and (p0 or u0) else None)
            k(f"s_cbranch_scc1 {L}")
        sl = nfull % R
        nt = NUS
        nm_ = sum(len(U[u][1]) for u in range(nt))
        nex = (len(extra) + nm_ - 1) // nm_
        for u in range(nt):
            sp = special(sl) if u < nt - 1 else False
            k("s_waitcnt lgkmcnt(0)")
            run(U[u][1], [rdi(r, sl, sp) for r in U[u + 1][0]] if u < nt - 1 else [], nex)
        assert not extra
        k.nop(3)
        ts(tag + 2)

    EXT = 216
    STR = 248
    def ext_reg(p, j):
        return EXT + (2 if p.name == "gu" else 4) * j
    def c_ext_loads(p):
        npl = 2 if p.name == "gu" else 4
        k(f"s_mul_i32 s28, s{S_CB}, {p.NB*p.WS}")
        k(f"s_add_u32 s28, s28, {p.wsrc + p.nsteps*1024:#x}")
        c, msk = DUMMY[p.name]
        k(f"s_cmp_eq_u32 s{S_CB}, {c}")
        k(f"s_cselect_b32 s30, 0, {p.WS}")
        k(f"v_lshlrev_b32 v9, {3 if npl == 2 else 4}, v1")
        for j in range(p.NB):
            if (msk >> j) & 1:
                k(f"s_mul_i32 s29, s30, {j}")
                k("s_add_u32 s29, s29, s28")
            else:
                k(f"s_add_u32 s29, s28, {j*p.WS}")
            if p.name == "qkv" and j == 7:
                k(f"s_cmp_lt_u32 s{S_CB}, 11")
                k("s_cselect_b32 s31, 0x80, 0")
                k("v_and_b32 v10, s31, v9")
                k("v_sub_u32 v9, v9, v10")
            k(f"buffer_load_dwordx{npl} {vr(ext_reg(p,j),npl)}, v9, s[8:11], s29 offen")
    def c_ext_build(p, k=k):
        for j in range(p.NB):
            r = ext_reg(p, j)
            if p.name == "qkv":
                k(f"v_pk_add_f32 {vr(r,2)}, {vr(r,2)}, {vr(r+2,2)}")
            k(f"v_add_f32 v10, v{r}, v{r+1}")
            k("v_cvt_pk_bf16_f32 v11, v10, v10")
            k("v_and_b32 v11, 0xffff0000, v11")
            k("v_sub_f32 v11, v10, v11")
            k(f"v_cvt_pk_bf16_f32 v{r}, v10, v11")
            k(f"v_cvt_pk_bf16_f32 v{r+1}, v10, v11")
    def c_zero_acc(p):
        for i in range(0, p.MX * p.NB * 4, 2):
            k(f"v_mov_b64 {vr(ACC+i,2)}, 0")
    def c_stats_loads(stats):
        T = STR
        k("v_lshlrev_b32 v9, 15, v8")
        k("v_lshl_add_u32 v9, v7, 3, v9")
        k(f"s_lshl_b32 s28, s{S_RB}, 2")
        k(f"s_add_u32 s28, s28, s{S_W}")
        k("s_lshl_b32 s28, s28, 8")
        k(f"s_add_u32 s28, s28, {stats:#x}")
        k("s_add_u32 s29, s28, 16384")
        for m in range(2):
            k(f"buffer_load_dwordx2 {vr(T+4*m,2)}, v9, s[8:11], s28 offen offset:{128*m} {LSC}")
            k(f"buffer_load_dwordx2 {vr(T+4*m+2,2)}, v9, s[8:11], s29 offen offset:{128*m} {LSC}")
    def c_stats_valu():
        T = STR
        L = ["s_waitcnt vmcnt(0)"]
        add = [f"v_add_f32 v{T+4*m+i}, v{T+4*m+i}, v{T+4*m+2+i}" for m in range(2) for i in range(2)]
        L += add
        for sw in ("v_permlane32_swap_b32", "v_permlane16_swap_b32"):
            L += [f"v_mov_b32 v{T+4*m+2+i}, v{T+4*m+i}" for m in range(2) for i in range(2)]
            L += ["s_nop 1"]
            L += [f"{sw} v{T+4*m+i}, v{T+4*m+2+i}" for m in range(2) for i in range(2)]
            L += ["s_nop 0"]
            L += add
        for m in range(2):
            t = T + 4 * m
            L += [f"v_mul_f32 v{t}, {f2u(-1.0/640):#x}, v{t}",
                  f"v_mul_f32 v{t+1}, {f2u(1.0/640):#x}, v{t+1}",
                  f"v_cvt_pk_bf16_f32 v{t+2}, v{t}, v{t}",
                  f"v_fma_f32 v{t+1}, -v{t}, v{t}, v{t+1}",
                  f"v_and_b32 v{t+3}, 0xffff0000, v{t+2}",
                  f"v_max_f32 v{t+1}, 0, v{t+1}",
                  f"v_sub_f32 v{t+3}, v{t}, v{t+3}",
                  f"v_add_f32 v{t+1}, {f2u(1e-5):#x}, v{t+1}",
                  f"v_cvt_pk_bf16_f32 v{t+3}, v{t+3}, v{t+3}",
                  f"v_rsq_f32 v{10+m}, v{t+1}"]
        return L
    def ext_mfma(p, j, swap):
        for m in range(2):
            x, r = STR + 4 * m + 2, ext_reg(p, j)
            a_, b_ = (r, x) if swap else (x, r)
            k(f"v_mfma_f32_16x16x16_bf16 {vr(acc(p,m,j),4)}, {vr(a_,2)}, {vr(b_,2)}, {vr(acc(p,m,j),4)}")

    def c_res_to_acc():
        for i in range(10):
            k(f"v_lshlrev_b32 v{ACC+2*i}, 16, v{RES+i}")
            k(f"v_and_b32 v{ACC+2*i+1}, 0xffff0000, v{RES+i}")

    def c_small_pre(xdst, sdst, layadd):
        small_addr()
        k("v_mov_b32 v14, v9")
        k(f"s_mov_b32 s29, {xdst:#x}")
        k("s_add_u32 s30, s30, s29")
        k("s_add_u32 s31, s31, s29")
        k("v_lshlrev_b32 v26, 3, v7")
        k(f"s_lshl_b32 s29, s{S_CS}, 14")
        k("s_lshl_b32 s28, s28, 7")
        k("s_add_u32 s29, s29, s28")
        k(f"s_add_u32 s29, s29, {sdst:#x}")
    def c_small_touch():
        if not TOUCH & 4:
            return
        k("buffer_load_dwordx4 v[200:203], v3, s[8:11], s30 offen sc1")
        k("buffer_load_dwordx4 v[200:203], v3, s[8:11], s30 offen offset:1024 sc1")
        k("buffer_load_dwordx4 v[200:203], v14, s[8:11], s31 offen sc1")
        k("buffer_load_dwordx2 v[200:201], v26, s[8:11], s29 offen sc1")
    def c_small_epilogue():
        T = 56
        for i in range(4):
            k(f"v_cvt_pk_bf16_f32 v{RES+i}, v{ACC+2*i}, v{ACC+2*i+1}")
        k(f"buffer_store_dwordx4 {vr(RES,4)}, v3, s[8:11], s30 offen {XSC}")
        for i in (8, 9):
            k(f"v_cvt_pk_bf16_f32 v{RES+i}, v{ACC+2*i}, v{ACC+2*i+1}")
            k(f"v_cvt_pk_bf16_f32 v{T+i-8}, v{ACC+2*i}, v{ACC+2*i+1}")
            k(f"v_cvt_pk_bf16_f32 v{T+i-6}, v{ACC+2*i}, v{ACC+2*i+1}")
        for i in range(4, 8):
            k(f"v_cvt_pk_bf16_f32 v{RES+i}, v{ACC+2*i}, v{ACC+2*i+1}")
        k(f"buffer_store_dwordx4 {vr(RES+4,4)}, v3, s[8:11], s30 offen offset:1024 {XSC}")
        k(f"v_permlane16_swap_b32 v{T}, v{T+2}")
        k(f"v_permlane16_swap_b32 v{T+1}, v{T+3}")
        k("s_mov_b32 exec_lo, 0xffff")
        k("s_mov_b32 exec_hi, 0xffff")
        k(f"buffer_store_dwordx4 {vr(T,4)}, v14, s[8:11], s31 offen {XSC}")
        k("s_mov_b64 exec, -1")
        k(f"v_pk_add_f32 v[10:11], {vr(ACC,2)}, {vr(ACC+2,2)}")
        k(f"v_pk_mul_f32 v[12:13], {vr(ACC,2)}, {vr(ACC,2)}")
        for i in range(2, 20, 2):
            if i >= 4:
                k(f"v_pk_add_f32 v[10:11], v[10:11], {vr(ACC+i,2)}")
            k(f"v_pk_fma_f32 v[12:13], {vr(ACC+i,2)}, {vr(ACC+i,2)}, v[12:13]")
        k("v_add_f32 v10, v10, v11")
        k("v_add_f32 v11, v12, v13")
        for sw in ("v_permlane32_swap_b32", "v_permlane16_swap_b32"):
            k("v_mov_b32 v12, v10")
            k("v_mov_b32 v13, v11")
            k("s_nop 1")
            k(f"{sw} v10, v12")
            k(f"{sw} v11, v13")
            k("s_nop 0")
            k("v_pk_add_f32 v[10:11], v[10:11], v[12:13]")
        k("s_mov_b64 exec, 0xffff")
        k(f"buffer_store_dwordx2 v[10:11], v26, s[8:11], s29 offen {XSC}")
        k("s_mov_b64 exec, -1")
        k("s_nop 1")

    def sig_rows_big():
        k(f"s_lshr_b32 s28, s{S_RS}, 1")
        k("s_lshl_b32 s28, s28, 13")
        k("v_lshl_add_u32 v12, v1, 9, s28")
        k(f"s_mov_b64 s[{SSIG}:{SSIG+1}], 0xffff")
    def idx_big():
        k(f"s_lshl_b32 s28, s{S_RB}, 4")
        k(f"s_add_u32 s28, s28, s{S_CB}")
    def idx_small():
        k(f"s_lshl_b32 s28, s{S_RS}, 3")
        k(f"s_add_u32 s28, s28, s{S_CS}")

    def scale_pack(a, o, r):
        rr = vr(r & ~1, 2)
        k(f"v_pk_mul_f32 {vr(a,2)}, {vr(a,2)}, {rr} op_sel:[0,{r&1}] op_sel_hi:[1,{r&1}]")
        k(f"v_pk_mul_f32 {vr(a+2,2)}, {vr(a+2,2)}, {rr} op_sel:[0,{r&1}] op_sel_hi:[1,{r&1}]")
        k(f"v_cvt_pk_bf16_f32 v{o}, v{a}, v{a+1}")
        k(f"v_cvt_pk_bf16_f32 v{o+1}, v{a+2}, v{a+3}")
    p = PH["qkv"]
    FB, XBUF, WBUF, top_qkv = c_layout(p)
    c_ext_loads(p)
    k("s_barrier")
    k("s_waitcnt vmcnt(0)")
    c_ext_build(p)
    k("s_branch L_c_layer2")
    k.label("L_c_layer")
    k("s_barrier")
    k.label("L_c_layer2")
    ts(0)
    if POLL2:
        k("s_waitcnt vmcnt(0)")
    c_stats_loads(STA)
    k(f"s_cmp_ge_u32 s{S_CB}, 11")
    k("s_cbranch_scc1 L_c_v")
    k("v_and_b32 v9, 7, v7")
    k("v_lshrrev_b32 v12, 3, v7")
    k("v_lshl_add_u32 v9, v12, 4, v9")
    k("v_lshrrev_b32 v12, 1, v8")
    k(f"v_mul_u32_u24 v12, {UNIT}, v12")
    k("v_and_b32 v13, 1, v8")
    k("v_lshl_add_u32 v12, v13, 9, v12")
    k("v_lshl_add_u32 v12, v9, 4, v12")
    k(f"v_mul_u32_u24 v13, {UNIT}, v8")
    k("v_lshl_add_u32 v13, v7, 4, v13")
    k(f"s_mul_i32 s28, s{S_CB}, {6*UNIT}")
    k(f"s_mul_i32 s29, s{S_RB}, 10240")
    k("s_add_u32 s28, s28, s29")
    k(f"s_add_u32 s28, s28, s{S_LAY}")
    k(f"s_add_u32 s28, s28, {QKVI:#x}")
    k(f"s_lshl_b32 s29, s{S_W}, 10")
    k("s_add_u32 s30, s28, s29")
    k(f"s_and_b32 s29, s{S_W}, 1")
    k("s_lshl_b32 s29, s29, 9")
    k("s_add_u32 s31, s28, s29")
    k(f"s_lshr_b32 s29, s{S_W}, 1")
    k("s_lshl_b32 s29, s29, 8")
    k("s_add_u32 s31, s31, s29")
    k("s_add_u32 s31, s31, 4096")
    k(f"s_add_u32 s29, s31, {4*UNIT}")
    c_mainloop(p, True, 0, c_stats_valu() + ["s_nop 0", f"v_mul_f32 v10, {f2u(SQRTC):#x}, v10", f"v_mul_f32 v11, {f2u(SQRTC):#x}, v11"])
    for j in (0, 1, 2, 3, 6):
        ext_mfma(p, j, True)
    for b in range(3):
        if b == 2:
            for m in range(2):
                scale_pack(acc(p, m, 6), FB + 24 + 2 * m, 10 + m)
            k(f"buffer_store_dwordx4 {vr(FB+24,4)}, v13, s[8:11], s31 offen {SC}")
            k(f"s_cmp_eq_u32 s{S_CB}, 10")
            k("s_cbranch_scc1 L_c_qk_skip")
        for m in range(2):
            o = FB + 8 * b + 4 * m
            scale_pack(acc(p, m, 2 * b), o, 10 + m)
            scale_pack(acc(p, m, 2 * b + 1), o + 2, 10 + m)
            k(f"buffer_store_dwordx4 {vr(o,4)}, v12, s[8:11], s30 offen offset:{128*m} {SC}")
            if b == 0:
                for j in ((4, 5), (7,))[m]:
                    ext_mfma(p, j, True)
        k(f"s_add_u32 s30, s30, {2*UNIT}")
    for m in range(2):
        scale_pack(acc(p, m, 7), FB + 28 + 2 * m, 10 + m)
    k("s_mov_b64 exec, 0xffffffff")
    k(f"buffer_store_dwordx4 {vr(FB+28,4)}, v13, s[8:11], s29 offen {SC}")
    k("s_mov_b64 exec, -1")
    k.label("L_c_qk_skip")
    k("v_lshrrev_b32 v9, 3, v1")
    k("v_and_b32 v10, 7, v1")
    k(f"s_mul_i32 s28, s{S_CB}, 6")
    k("v_add_u32 v14, s28, v9")
    k("v_and_b32 v12, 31, v14")
    k("v_lshl_add_u32 v12, v12, 3, v10")
    k("v_lshlrev_b32 v12, 9, v12")
    k(f"s_lshr_b32 s28, s{S_RB}, 1")
    k("v_cmp_eq_u32 s[30:31], s28, v10")
    k("v_cmp_le_u32 vcc, 32, v14")
    k("s_or_b64 s[30:31], s[30:31], vcc")
    k("v_cmp_gt_u32 vcc, 64, v14")
    k("s_and_b64 s[30:31], s[30:31], vcc")
    k("v_cmp_gt_u32 vcc, 6, v9")
    k(f"s_and_b64 s[{SSIG}:{SSIG+1}], s[30:31], vcc")
    k("s_branch L_c_attn")

    k.label("L_c_v")
    RSV = top_qkv
    VAD = RSV + 8
    k(f"s_mul_i32 s30, s{S_RB}, 10240")
    k(f"s_mul_i32 s29, s{S_W}, 1280")
    k("s_add_u32 s30, s30, s29")
    k(f"s_add_u32 s30, s30, s{S_LAY}")
    k(f"s_add_u32 s30, s30, {QKVI + 32*UNIT + 5120:#x}")
    k(f"s_sub_u32 s29, s{S_CB}, 11")
    k("s_lshl_b32 s29, s29, 7")
    k("v_mul_u32_u24 v9, 320, v8")
    k("v_add_u32 v10, s29, v7")
    for j in range(8):
        k("v_mul_u32_u24 v12, 3277, v10")
        k("v_lshrrev_b32 v12, 16, v12")
        k(f"v_mul_u32_u24 v13, {UNIT-320}, v12")
        k("v_lshl_add_u32 v13, v10, 4, v13")
        k(f"v_add_u32 v{VAD+j}, v13, v9")
        k("v_add_u32 v10, 16, v10")
    k(f"s_lshl_b32 s28, s{S_W}, 7")
    k(f"s_add_u32 s28, s28, {SCRATCH}")
    k("v_lshl_add_u32 v12, v7, 2, s28")
    k("v_lshl_add_u32 v13, v8, 4, s28")
    c_mainloop(p, False, 0, c_stats_valu() + ["s_nop 0", "ds_write_b32 v12, v10", "ds_write_b32 v12, v11 offset:64"])
    k("s_waitcnt lgkmcnt(0)")
    k(f"ds_read_b128 {vr(RSV,4)}, v13")
    k(f"ds_read_b128 {vr(RSV+4,4)}, v13 offset:64")
    for j in range(8):
        ext_mfma(p, j, False)
    k("s_waitcnt lgkmcnt(0)")
    for j in range(8):
        o = FB + 4 * j
        for m in range(2):
            a = acc(p, m, j)
            k(f"v_pk_mul_f32 {vr(a,2)}, {vr(a,2)}, {vr(RSV+4*m,2)}")
            k(f"v_pk_mul_f32 {vr(a+2,2)}, {vr(a+2,2)}, {vr(RSV+4*m+2,2)}")
            k(f"v_cvt_pk_bf16_f32 v{o+2*m}, v{a}, v{a+1}")
            k(f"v_cvt_pk_bf16_f32 v{o+2*m+1}, v{a+2}, v{a+3}")
        k(f"buffer_store_dwordx4 {vr(o,4)}, v{VAD+j}, s[8:11], s30 offen {SC}")
    k(f"s_sub_u32 s28, s{S_CB}, 11")
    k("s_lshl_b32 s30, s28, 7")
    k("s_mul_i32 s31, s30, 3277")
    k("s_lshr_b32 s31, s31, 16")
    k("s_add_u32 s30, s30, 127")
    k("s_mul_i32 s30, s30, 3277")
    k("s_lshr_b32 s30, s30, 16")
    k("s_and_b32 s28, s28, 1")
    k("s_lshl_b32 s28, s28, 7")
    k("s_add_u32 s28, s28, 128")
    k("s_lshl_b32 s29, s31, 12")
    k("s_add_u32 s28, s28, s29")
    k("v_lshl_add_u32 v12, v1, 9, s28")
    k("v_lshrrev_b32 v9, 3, v1")
    k("v_add_u32 v9, s31, v9")
    k(f"v_cmp_ge_u32 s[{SSIG}:{SSIG+1}], s30, v9")

    k.label("L_c_attn")
    M16 = "v_mfma_f32_32x32x16_bf16"
    M8 = "v_mfma_f32_32x32x8_bf16"
    QL = [32, 36]; QHA = [40, 42]; QHB = [44, 46]
    S = [48, 64]; O = [80, 96]; NM = [112, 128]; P = 144
    KL = [152, 156]; KH = 160; V = [164, 172]
    A3, A4, A5, A6, A7, A8 = 26, 27, 28, 29, 30, 31
    VS1, VS2, VA0 = 180, 181, 182
    SUP, SPASS, SSEG, SSTR = 48, 50, 51, 52
    def idx_attn():
        k(f"s_mul_i32 s28, s{S_HD}, 20")
        k("s_add_u32 s29, s28, 19")
        k("s_lshr_b32 s28, s28, 7")
        k("s_lshr_b32 s29, s29, 7")
        k("s_and_b32 s30, s28, s29")
        k("s_or_b32 s31, s28, s29")
        k("s_and_b32 s30, s30, 1")
        k("s_xor_b32 s30, s30, 1")
        k("s_lshl_b32 s30, s30, 4")
        k("s_and_b32 s31, s31, 1")
        k("s_lshl_b32 s31, s31, 4")
        targets([18, "s30", "s31"])
        k(f"s_lshl_b32 s28, s{S_HD}, 3")
        k(f"s_add_u32 s28, s28, s{S_QB}")
    k(f"v_mov_b32 v{A3}, v3")
    k(f"v_and_b32 v{A6}, 31, v1")
    k(f"v_lshrrev_b32 v{A7}, 5, v1")
    k("v_and_b32 v9, 7, v1")
    k(f"v_lshlrev_b32 v{A8}, 4, v9")
    k("v_bfe_u32 v9, v1, 4, 1")
    k(f"v_lshl_add_u32 v{A8}, v9, 7, v{A8}")
    k("v_and_b32 v9, 8, v1")
    k(f"v_add_u32 v{A8}, v{A8}, v9")
    k(f"v_lshl_add_u32 v{A4}, v{A7}, 8, v{A8}")
    k(f"v_cmp_gt_u32 s[30:31], 28, v{A6}")
    k("s_mov_b32 s28, 0xfff00000")
    k("s_mov_b32 s29, 0xfff00000")
    k(f"v_mul_u32_u24 v9, 192, v{A7}")
    k("v_sub_u32 v9, 192, v9")
    k("v_mov_b32 v10, 144")
    k("v_cndmask_b32 v9, v9, v10, s[30:31]")
    k("s_mov_b32 s30, 0x01100000")
    k("s_mov_b32 s31, 0x01100000")
    k("v_mov_b32 v10, 128")
    k("v_cndmask_b32 v9, v9, v10, s[30:31]")
    k(f"v_mul_u32_u24 v{VA0}, 320, v{A7}")
    k(f"v_lshl_add_u32 v{VA0}, v{A6}, 4, v{VA0}")
    k(f"v_add_u32 v{VA0}, 5120, v{VA0}")
    k(f"v_cndmask_b32 v{VA0}, v{VA0}, v9, s[28:29]")
    k("v_mov_b32 v9, 1280")
    k(f"v_cndmask_b32 v{VS1}, v9, 0, s[28:29]")
    k("v_mov_b32 v9, 6400")
    k(f"v_cndmask_b32 v{VS2}, v9, 0, s[28:29]")
    k(f"s_mov_b32 s{SUP}, 0")
    k(f"s_mov_b32 s{SUP+1}, -1")
    k(f"s_mov_b32 s{SPASS}, 0")
    k(f"s_movk_i32 s{SSTR}, 10240")
    ts(3)
    k(f"s_add_u32 s{SSO}, s{S_SEAM}, {CNT:#x}")
    def attn_dep():
        lab = k.newlabel()
        k(f"s_cmp_lg_u32 s{S_LAY}, 0")
        k(f"s_cbranch_scc1 {lab}")
        get_coords()
        res_load()
        k.label(lab)
        seam_pre(0, idx_attn)
        k(f"s_mul_i32 s28, s{S_HD}, {UNIT}")
        k(f"s_add_u32 s28, s28, s{S_LAY}")
        k(f"s_add_u32 s39, s28, {QKVI + 32*UNIT:#x}")
        k("s_add_u32 s38, s39, 4096")
        k(f"s_lshl_b32 s29, s{S_QB}, 1")
        k(f"s_lshr_b32 s30, s{S_W}, 1")
        k("s_add_u32 s29, s29, s30")
        k("s_mul_i32 s29, s29, 10240")
        k("s_add_u32 s28, s28, s29")
        k(f"s_add_u32 s28, s28, {QKVI:#x}")
        k(f"s_and_b32 s30, s{S_W}, 1")
        k("s_lshl_b32 s29, s30, 11")
        k("s_add_u32 s29, s29, s28")
        k("s_lshl_b32 s30, s30, 8")
        k("s_add_u32 s30, s30, s28")
        k("s_add_u32 s30, s30, 4096")
    def zero_o():
        for i in range(0, 32, 2):
            k(f"v_mov_b64 {vr(O[0]+i,2)}, 0")
        for i in (0, 2):
            k(f"v_mov_b64 {vr(P+4+i,2)}, 0")
            k(f"v_mov_b64 {vr(V[1]+4+i,2)}, 0")
    def k0_loads():
        k(f"buffer_load_dwordx4 {vr(KL[0],4)}, v3, s[8:11], s39 offen {LSC}")
        k(f"buffer_load_dwordx2 {vr(KH,2)}, v{A4}, s[8:11], s38 offen {LSC}")
    zero_o()
    k("s_waitcnt vmcnt(0)")
    k("s_barrier")
    ts(4)
    seam_post(filler=attn_dep)
    k("s_barrier")
    ts(8)
    k0_loads()
    for q in range(2):
        k(f"buffer_load_dwordx4 {vr(QL[q],4)}, v3, s[8:11], s29 offen offset:{1024*q} {LSC}")
        k(f"buffer_load_dwordx2 {vr(QHA[q],2)}, v{A8}, s[8:11], s30 offen offset:{512*q} {LSC}")
    k("s_waitcnt vmcnt(0)")
    for q in range(2):
        for i in range(2):
            k(f"v_cndmask_b32 v{QHB[q]+i}, 0, v{QHA[q]+i}, s[{SUP}:{SUP+1}]")
            k(f"v_cndmask_b32 v{QHA[q]+i}, v{QHA[q]+i}, 0, s[{SUP}:{SUP+1}]")
    def rdK(b, t):
        c, tt = divmod(t, 4)
        return f"ds_read_b128 {vr(KL[b],4)}, v{A3} offset:{c*10240 + tt*1024}"
    def rdH(pp, c):
        return f"ds_read_b64 {vr(KH+2*pp,2)}, v{A4} offset:{c*10240 + 4096 + pp*512}"
    def rdV(b):
        return [f"ds_read_b128 {vr(V[b],4)}, v{A5}", f"ds_read_b128 {vr(V[b]+4,4)}, v{A5} offset:640"]
    def smfma(sb, t, q, c):
        qh = QHA[q] if (t & 3) < 2 else QHB[q]
        return [f"{M16} {vr(S[sb],16)}, {vr(KL[t&1],4)}, {vr(QL[q],4)}, {c}",
                f"{M8} {vr(S[sb],16)}, {vr(KH+2*(t&1),2)}, {vr(qh,2)}, {vr(S[sb],16)}"]
    def rowmax_into(dst, sb, first):
        s = S[sb]
        if first:
            k(f"v_max3_f32 v{dst}, v{s}, v{s+1}, v{s+2}")
            rest = list(range(3, 16))
        else:
            rest = list(range(16))
        while len(rest) >= 2:
            k(f"v_max3_f32 v{dst}, v{dst}, v{s+rest[0]}, v{s+rest[1]}")
            rest = rest[2:]
        if rest:
            k(f"v_max_f32 v{dst}, v{dst}, v{s+rest[0]}")
    k("s_nop 1")
    for q in range(2):
        for x in smfma(q, 0, q, "0"):
            k(x)
    k.nop(12)
    rowmax_into(10, 0, True)
    rowmax_into(11, 1, True)
    k.label("L_attn_start")
    k("v_mov_b32 v12, v10")
    k("v_mov_b32 v13, v11")
    k("s_nop 1")
    k("v_permlane32_swap_b32 v10, v12")
    k("v_permlane32_swap_b32 v11, v13")
    k("s_nop 1")
    k("v_max_f32 v10, v10, v12")
    k("v_max_f32 v11, v11, v13")
    k("v_sub_f32 v10, 0, v10")
    k("v_sub_f32 v12, 0, v11")
    k("v_mov_b32 v11, v10")
    k("v_mov_b32 v13, v12")
    for i in range(0, 16, 2):
        k(f"v_mov_b64 {vr(NM[0]+i,2)}, v[10:11]")
    k(f"v_mov_b32 v{A5}, v{VA0}")
    k(f"s_cmp_lg_u32 s{SPASS}, 0")
    for x in smfma(0, 0, 0, vr(NM[0], 16)):
        k(x)
    for i in range(0, 16, 2):
        k(f"v_mov_b64 {vr(NM[1]+i,2)}, v[12:13]")
    k(f"s_cselect_b32 s{SSEG}, 2, 0")
    k("s_cselect_b32 s36, 16, 1")
    k("s_cbranch_scc1 L_attn_nock0")
    k("s_barrier")
    k.label("L_attn_nock0")
    ts(9)
    for x in rdV(0) + [rdK(1, 1), rdH(1, 0)]:
        k(x)
    k(f"v_add_u32 v{A5}, v{VS1}, v{A5}")
    k(f"v_exp_f32 v{S[0]}, v{S[0]}")
    k(f"v_exp_f32 v{S[0]+1}, v{S[0]+1}")
    k(".p2align 6")
    k.label("L_attn_loop")
    for t in range(4):
        for q in range(2):
            a = S[q]
            nt, nq = (t, 1) if q == 0 else (t + 1, 0)
            pt, pq = (t - 1, 1) if q == 0 else (t, 0)
            sm = smfma(nq, nt, nq, vr(NM[nq], 16))
            ex = [f"v_exp_f32 v{a+i}, v{a+i}" for i in range(16)]
            cv = [f"v_cvt_pk_bf16_f32 v{P+i}, v{a+2*i}, v{a+2*i+1}" for i in range(8)]
            nex = [f"v_exp_f32 v{S[nq]+i}, v{S[nq]+i}" for i in range(2)]
            pvb = f"{M16} {vr(O[pq],16)}, {vr(V[pt&1]+4,4)}, {vr(P+4,4)}, {vr(O[pq],16)}"
            pva = f"{M16} {vr(O[q],16)}, {vr(V[t&1],4)}, {vr(P,4)}, {vr(O[q],16)}"
            g1 = ex[2:6] + cv[0:2]
            g2 = ex[6:10] + cv[2:4]
            g3 = ex[10:14] + cv[4:6]
            g4 = ex[14:16] + cv[6:8] + nex
            if q == 0:
                g3[0:0] = ["s_waitcnt lgkmcnt(0)"] + rdV((t + 1) & 1) + [rdK(t & 1, t + 2)] + ([rdH(t & 1, 1)] if t >= 2 else [])
                g4 += [f"v_add_u32 v{A5}, v{VS2 if t == 2 else VS1}, v{A5}"]
            elif t == 3:
                g1[0:0] = ["s_sub_u32 s36, s36, 1"]
                g3[0:0] = ["s_cmp_lg_u32 s36, 0"]
                g3 += [f"v_add_u32 v{x}, s{SSTR}, v{x}" for x in (A3, A4)]
            for x in [sm[0]] + g1 + [sm[1]] + g2 + [pvb] + g3 + [pva] + g4:
                k(x)
    k("s_cbranch_scc1 L_attn_loop")
    k(f"s_cmp_lt_u32 s{SSEG}, 2")
    k("s_cbranch_scc1 L_attn_ck")
    k(f"{M16} {vr(O[1],16)}, {vr(V[1]+4,4)}, {vr(P+4,4)}, {vr(O[1],16)}")
    k("s_waitcnt lgkmcnt(0)")
    ts(10)
    k(f"s_xor_b32 s28, s{S_W}, 2")
    k(f"s_or_b32 s28, s28, s{S_LAY}")
    k("s_cbranch_scc1 L_attn_nopc")
    k("v_lshlrev_b32 v184, 9, v1")
    k(f"s_mov_b32 s28, {CNT + 384:#x}")
    k("s_mov_b32 exec_hi, 0")
    k("buffer_load_dword v185, v184, s[8:11], s28 offen sc1")
    k("s_mov_b64 exec, -1")
    k.label("L_attn_nopc")
    for x in (A3, A4):
        k(f"v_subrev_u32 v{x}, {UNIT}, v{x}")
    k(f"v_bfe_u32 v9, v{A6}, 3, 1")
    k("v_mul_u32_u24 v9, 20480, v9")
    k(f"v_and_b32 v12, 7, v{A6}")
    k(f"v_lshrrev_b32 v13, 4, v{A6}")
    k("v_lshl_add_u32 v12, v13, 3, v12")
    k("v_lshl_add_u32 v14, v12, 4, v9")
    k(f"v_lshl_add_u32 v14, v{A7}, 8, v14")
    k("v_lshl_add_u32 v9, v12, 3, v9")
    k(f"v_mul_u32_u24 v13, 40960, v{A7}")
    k("v_add_u32 v9, v9, v13")
    k(f"s_lshl_b32 s28, s{S_QB}, 2")
    k(f"s_add_u32 s28, s28, s{S_W}")
    k("s_mul_i32 s28, s28, 81920")
    k(f"s_add_u32 s28, s28, s{S_LAY}")
    k(f"s_add_u32 s28, s28, {OF:#x}")
    k(f"s_lshl_b32 s29, s{S_HD}, 9")
    k("s_add_u32 s29, s29, s28")
    k("s_add_u32 s29, s29, 2048")
    for q in range(2):
        k(f"v_cndmask_b32 v{10+q}, v{O[q]+12}, v{O[q]+8}, s[{SUP}:{SUP+1}]")
    k("v_add_f32 v12, v10, v11")
    k(f"v_cmp_ngt_f32 vcc, {f2u(2.0**30):#x}, v12")
    k("v_rcp_f32 v10, v10")
    k("v_rcp_f32 v11, v11")
    k(f"s_lshr_b32 s30, s{S_HD}, 3")
    k(f"s_and_b32 s31, s{S_HD}, 16")
    k("s_add_u32 s30, s30, s31")
    k("s_lshl_b32 s30, s30, 10")
    k(f"s_and_b32 s31, s{S_HD}, 1")
    k("s_lshl_b32 s31, s31, 9")
    k("s_add_u32 s30, s30, s31")
    k(f"s_and_b32 s31, s{S_HD}, 6")
    k("s_lshl_b32 s31, s31, 6")
    k("s_add_u32 s30, s30, s31")
    k("s_add_u32 s30, s30, s28")
    k("s_add_u32 s31, s29, 40960")
    k(f"s_cmp_lg_u32 s{SPASS}, 0")
    k("s_cbranch_scc1 L_attn_out")
    k("s_cbranch_vccnz L_attn_slow")
    k.label("L_attn_out")
    for q in range(2):
        o = S[q]
        for i in range(3):
            scale_pack(O[q] + 4 * i, o + 2 * i, 10 + q)
        k(f"buffer_store_dwordx4 {vr(o,4)}, v14, s[8:11], s{29+2*q} offen {SC}")
    k("s_nop 0")
    for i in range(2):
        k(f"v_permlane32_swap_b32 v{S[0]+4+i}, v{S[1]+4+i}")
    k(f"buffer_store_dwordx2 {vr(S[0]+4,2)}, v9, s[8:11], s30 offen {SC}")
    ts(11)
    k(f"s_lshl_b32 s28, s{S_QB}, 14")
    k(f"s_and_b32 s29, s{S_HD}, 1")
    k("s_lshl_b32 s29, s29, 7")
    k("s_add_u32 s28, s28, s29")
    k("v_lshl_add_u32 v12, v1, 9, s28")
    k(f"s_mov_b64 s[{SSIG}:{SSIG+1}], 0xffffffff")
    targets([16, 16])
    seam_pre(1, idx_small)
    c_res_to_acc()
    k("s_waitcnt vmcnt(0)")
    k(f"s_xor_b32 s28, s{S_W}, 2")
    k(f"s_or_b32 s28, s28, s{S_LAY}")
    k("s_cbranch_scc1 L_attn_pcok")
    k("v_lshlrev_b32 v184, 9, v1")
    k("v_mov_b32 v186, 23")
    k("v_mov_b32 v187, 22")
    k("v_cmp_lt_u32 vcc, 27, v1")
    k(f"s_mov_b32 s28, {CNT + 384:#x}")
    k("s_mov_b32 s29, 0x40000")
    k("v_cndmask_b32 v186, v186, v187, vcc")
    k("s_mov_b32 exec_hi, 0")
    k.label("L_attn_pchk")
    k("v_cmp_ne_u32 vcc, v186, v185")
    k("s_sub_u32 s29, s29, 1")
    k("s_cbranch_scc1 L_attn_pcx")
    k("s_cbranch_vccz L_attn_pcx")
    k("s_sleep 8")
    k("buffer_load_dword v185, v184, s[8:11], s28 offen sc1")
    k("s_waitcnt vmcnt(0)")
    k("s_branch L_attn_pchk")
    k.label("L_attn_pcx")
    k("s_mov_b64 exec, -1")
    k.label("L_attn_pcok")
    k("s_barrier")
    ts(12)
    seam_post(filler=lambda: c_ext_loads(PH["gu"]))

    k("s_barrier")
    ts(16)
    if POLL2:
        k("s_waitcnt vmcnt(0)")
    c_small_pre(XB, STB, 0)
    eb = ["s_waitcnt vmcnt(0)"]
    c_ext_build(PH["gu"], eb.append)
    c_mainloop(PH["wo"], True, 16, eb)
    k.nop(5)
    c_small_epilogue()
    ts(19)
    lseam_pre(1, g_rs2, g_sm, g_rb)
    k("s_waitcnt vmcnt(0)")
    k("s_barrier")
    ts(20)
    lseam_post(16)

    p = PH["gu"]
    FB, XBUF, WBUF, top_gu = c_layout(p)
    k("s_barrier")
    ts(24)
    if POLL2:
        k("s_waitcnt vmcnt(0)")
    c_stats_loads(STB)
    k(f"s_lshl_b32 s28, s{S_RB}, 2")
    k(f"s_add_u32 s28, s28, s{S_W}")
    k(f"s_mul_i32 s28, s28, {2*55296}")
    k(f"s_add_u32 s28, s28, {HF:#x}")
    k(f"s_mul_i32 s29, s{S_CB}, 3072")
    k("s_add_u32 s30, s28, s29")
    k("s_add_u32 s31, s30, 55296")
    k(f"s_lshl_b32 s29, s{S_CB}, 9")
    k("s_add_u32 s29, s28, s29")
    k(f"s_add_u32 s29, s29, {46*1024}")
    k("v_and_b32 v9, 1, v8")
    k("v_mul_u32_u24 v9, 55296, v9")
    k("v_lshrrev_b32 v12, 1, v8")
    k("v_lshl_add_u32 v9, v12, 8, v9")
    k("v_lshl_add_u32 v9, v7, 4, v9")
    if TOUCH & 8:
        k("buffer_load_dwordx4 v[244:247], v9, s[8:11], s29 offen sc1")
        for j in range(3):
            for m in range(2):
                k(f"buffer_load_dwordx4 v[244:247], v3, s[8:11], s{30+m} offen offset:{1024*j} sc1")
    c_mainloop(p, True, 24, c_stats_valu() + ["s_nop 0", "v_mul_f32 v10, v10, v10", "v_mul_f32 v11, v11, v11"])
    def glu(m, b, o):
        g_, u_ = acc(p, m, 2 * b), acc(p, m, 2 * b + 1)
        for i in range(4):
            k(f"v_max_f32 v{g_+i}, 0, v{g_+i}")
        for i in (0, 2):
            k(f"v_pk_mul_f32 {vr(g_+i,2)}, {vr(g_+i,2)}, {vr(u_+i,2)}")
        scale_pack(g_, o, 10 + m)
    for j in (0, 1, 2, 3, 12, 13):
        ext_mfma(p, j, True)
    later = [4, 5, 6, 7, 8, 9, 10, 11]
    for j in range(3):
        for m in range(2):
            o = FB + 4 + 8 * j + 4 * m
            for h in range(2):
                glu(m, 2 * j + h, o + 2 * h)
                for _ in range(2):
                    if later:
                        ext_mfma(p, later.pop(0), True)
            k(f"buffer_store_dwordx4 {vr(o,4)}, v3, s[8:11], s{30+m} offen offset:{1024*j} {HSC}")
        if j == 0:
            for m in range(2):
                glu(m, 6, FB + 2 * m)
            k("s_nop 1")
            k(f"v_permlane16_swap_b32 v{FB}, v{FB+2}")
            k(f"v_permlane16_swap_b32 v{FB+1}, v{FB+3}")
            k(f"buffer_store_dwordx4 {vr(FB,4)}, v9, s[8:11], s29 offen {HSC}")
            k(f"s_cmp_eq_u32 s{S_CB}, 15")
            k("s_cbranch_scc1 L_c_gu_skip")
    k.label("L_c_gu_skip")
    ts(27)
    c_res_to_acc()
    lseam_pre(2, g_rb, g_cb, g_rs2)
    k("s_waitcnt vmcnt(0)")
    k("s_barrier")
    ts(28)
    lseam_post(16)

    k("s_barrier")
    ts(32)
    if POLL2:
        k("s_waitcnt vmcnt(0)")
    def down_b0():
        lab = k.newlabel()
        k(f"s_cmp_lg_u32 s{S_LAY}, 0")
        k(f"s_cbranch_scc1 {lab}")
        c_ext_loads(PH["qkv"])
        c_small_pre(XA, STA, LSTR)
        k.label(lab)
    c_mainloop(PH["down"], True, 32, (), down_b0)
    k(f"s_cmp_lg_u32 s{S_LAY}, 0")
    k("s_cbranch_scc1 L_c_final")
    k.nop(3)
    c_small_epilogue()
    ts(35)
    k("s_waitcnt vmcnt(4)")
    c_ext_build(PH["qkv"])
    lseam_pre(3, g_rs2, g_sm, g_rb)
    k("s_waitcnt vmcnt(0)")
    k("s_barrier")
    ts(36)
    lseam_post(16)
    k(f"s_mov_b32 s{S_LAY}, {LSTR:#x}")
    k(f"s_mov_b32 s{S_SEAM}, 20")
    k(f"s_add_u32 s{S_TS}, s{S_TS}, 320")
    k("s_branch L_c_layer")

    k.label("L_c_final")
    k("v_mul_u32_u24 v9, 1280, v7")
    k("v_and_b32 v10, 1, v8")
    k("v_lshl_add_u32 v9, v10, 5, v9")
    k("v_lshrrev_b32 v10, 1, v8")
    k("v_lshl_add_u32 v9, v10, 4, v9")
    k(f"s_lshl_b32 s28, s{S_RS}, 2")
    k(f"s_add_u32 s28, s28, s{S_W}")
    k(f"s_mul_i32 s28, s28, {16*1280}")
    k(f"s_mul_i32 s29, s{S_CS}, 160")
    k("s_add_u32 s28, s28, s29")
    for i in range(10):
        k(f"v_cvt_pk_bf16_f32 v{56+i}, v{ACC+2*i}, v{ACC+2*i+1}")
    k("v_mov_b32 v66, v64")
    k("v_mov_b32 v67, v65")
    for j in range(3):
        for i in range(2):
            k(f"v_permlane16_swap_b32 v{56+4*j+i}, v{58+4*j+i}")
        if j == 2:
            k("s_mov_b32 exec_lo, 0xffff")
            k("s_mov_b32 exec_hi, 0xffff")
        k(f"buffer_store_dwordx4 {vr(56+4*j,4)}, v9, s[24:27], s28 offen offset:{64*j}")
    if INSTR:
        ts(35)
        k("s_waitcnt vmcnt(0)")
        ts(36)
    k.label(L_end)
    k("s_endpgm")

    k.label("L_attn_ck")
    k(f"s_cmp_eq_u32 s{SSEG}, 0")
    k("s_cselect_b32 s36, 3, 12")
    k(f"s_add_u32 s{SSEG}, s{SSEG}, 1")
    k("s_barrier")
    k("s_branch L_attn_loop")

    k.label("L_l_attn")
    k("s_barrier")
    k(f"s_cmp_lg_u32 s{S_LAY}, 0")
    k("s_cbranch_scc1 L_l_havec")
    get_coords()
    k.label("L_l_havec")
    k(f"s_mul_i32 s28, s{S_HD}, {UNIT}")
    k(f"s_add_u32 s28, s28, s{S_LAY}")
    k(f"s_lshl_b32 s29, s{S_W}, 10")
    k("s_mov_b32 m0, s29")
    k("s_add_u32 s31, s28, s29")
    k(f"s_add_u32 s31, s31, {QKVI + 32*UNIT:#x}")
    k("s_mov_b32 s28, 0x100")
    k("s_mov_b32 s29, 0x10000")
    k("v_mov_b32 v8, 0x3f803f80")
    k("v_cndmask_b32 v8, 0, v8, s[28:29]")
    for i in range(1, 4):
        k(f"v_mov_b32 v{8+i}, v8")
    k("ds_write_b128 v3, v[8:11]")
    k("s_waitcnt lgkmcnt(0)")
    k(f"s_cmp_eq_u32 s{S_W}, 0")
    k("s_mov_b32 s36, 8")
    k("s_barrier")
    k("s_cbranch_scc1 L_l_skip0")
    def pieces(n, first=False):
        lab = k.newlabel()
        if not first:
            k(f"s_mov_b32 s36, {n}")
        k.label(lab)
        k(f"buffer_load_dwordx4 v3, s[8:11], s31 offen {LSC} lds")
        if first:
            k.label("L_l_skip0")
        k("s_add_u32 m0, m0, 4096")
        k("s_add_u32 s31, s31, 4096")
        k("s_sub_u32 s36, s36, 1")
        k("s_cmp_lg_u32 s36, 0")
        k(f"s_cbranch_scc1 {lab}")
    pieces(8, True)
    k("s_waitcnt vmcnt(3)")
    k("s_barrier")
    k("s_setprio 3")
    pieces(14)
    k("s_waitcnt vmcnt(9)")
    k("s_barrier")
    pieces(18)
    sb, vb = 56, 64
    k(f"s_lshl_b32 s28, s{S_W}, 8")
    k("s_add_u32 s28, s28, s2")
    k(f"s_cmp_lg_u32 s{S_LAY}, 0")
    k("s_cselect_b32 s28, 1000, s28")
    k("s_cmp_ge_u32 s28, 732")
    k("s_cbranch_scc1 L_attn_noprep")
    k(f"s_mov_b32 s{sb+27}, 0x00020000")
    k("s_and_b32 s37, s28, 31")
    k("s_cmp_ge_u32 s28, 432")
    k("s_cbranch_scc1 L_prep_small")
    k(f"s_and_b32 s{sb}, s28, 7")
    k("s_lshr_b32 s31, s28, 3")
    k("s_cmp_ge_u32 s31, 27")
    k(f"s_cselect_b32 s{sb+24}, s90, s88")
    k(f"s_cselect_b32 s{sb+25}, s91, s89")
    k("s_cselect_b32 s29, 21504, 0")
    k("s_cselect_b32 s30, 27, 0")
    k("s_sub_u32 s30, s31, s30")
    k(f"s_mov_b32 s{sb+26}, {640*3456}")
    k(f"s_movk_i32 s{sb+20}, 3456")
    k("s_lshl_b32 s30, s30, 6")
    k("v_add_u32 v9, s30, v1")
    k(f"v_lshlrev_b32 v{vb}, 1, v9")
    k("v_lshrrev_b32 v10, 4, v9")
    k("v_mov_b32 v11, 111")
    k("v_cmp_eq_u32 vcc, 107, v10")
    k(f"s_add_u32 s35, s29, {WGU_F:#x}")
    k("s_mov_b32 s31, 43008")
    k("v_cndmask_b32 v10, v10, v11, vcc")
    k("s_movk_i32 s38, 80")
    k("s_mov_b32 s39, 1")
    k("s_branch L_prep_go")
    k.label("L_prep_small")
    k(f"s_movk_i32 s{sb+20}, 1280")
    k("s_mov_b32 s39, 0")
    k(f"s_mov_b32 s29, {640*1280}")
    k("s_movk_i32 s30, 432")
    k("s_movk_i32 s38, 80")
    k("s_movk_i32 s31, 20480")
    k(f"s_mov_b32 s35, {WO_F:#x}")
    k("s_cmp_ge_u32 s28, 512")
    k(f"s_cselect_b32 s{sb+24}, s92, s86")
    k(f"s_cselect_b32 s{sb+25}, s93, s87")
    k(f"s_cselect_b32 s{sb+26}, {1728*1280}, s29")
    k("s_cselect_b32 s29, 512, s30")
    k("s_cselect_b32 s38, 216, s38")
    k("s_cselect_b32 s31, 55296, s31")
    k(f"s_cselect_b32 s35, {WD_F:#x}, s35")
    k("s_sub_u32 s28, s28, s29")
    k(f"s_mul_i32 s{sb}, s28, 205")
    k(f"s_lshr_b32 s{sb}, s{sb}, 11")
    k(f"s_mul_i32 s29, s{sb}, 10")
    k("s_sub_u32 s28, s28, s29")
    k("s_lshl_b32 s28, s28, 6")
    k("v_add_u32 v9, s28, v1")
    k(f"v_lshlrev_b32 v{vb}, 1, v9")
    k("v_lshrrev_b32 v10, 4, v9")
    k.label("L_prep_go")
    k("v_mul_u32_u24 v10, s31, v10")
    k("v_add_u32 v10, s35, v10")
    k("v_and_b32 v9, 15, v9")
    k(f"v_lshl_add_u32 v{vb+1}, v9, 4, v10")
    k(f"v_lshl_add_u32 v{vb+2}, v9, 3, v10")
    k(f"s_mul_i32 s{sb+1}, s{sb}, 10")
    k(f"s_mov_b32 s{sb+23}, s{sb+1}")
    k("s_mov_b32 s35, 0")
    k.label("L_prep_rows")
    k("s_cmp_lg_u32 s39, 0")
    k("s_cbranch_scc1 L_prep_rx")
    k("s_cmp_eq_u32 s38, 80")
    k("s_cbranch_scc1 L_prep_rwo")
    prep_rows(k, "wd", sb)
    k("s_branch L_prep_ld")
    k.label("L_prep_rwo")
    prep_rows(k, "wo", sb)
    k("s_branch L_prep_ld")
    k.label("L_prep_rx")
    prep_rows(k, "x", sb)
    k.label("L_prep_ld")
    k("s_cmp_lg_u32 s35, 0")
    k("s_cbranch_scc1 L_prep_ld2")
    prep_loads(k, sb, vb, vb + 16)
    k("s_mov_b32 s35, 1")
    k(f"s_add_u32 s{sb+23}, s{sb+23}, 5")
    k("s_branch L_prep_rows")
    k.label("L_prep_ld2")
    k("s_waitcnt vmcnt(40)")
    prep_loads(k, sb, vb, vb + 56)
    k("s_barrier")
    k("s_waitcnt vmcnt(0)")
    ts(5, 1)
    prep_finish(k, sb, vb, 10, SC, "s38", "s39")
    k("s_lshl_b32 s37, s37, 9")
    k(f"s_add_u32 s37, s37, {CNT + 384:#x}")
    ts(6, 1)
    k("s_waitcnt vmcnt(0)")
    k("s_mov_b64 exec, 1")
    k("buffer_atomic_add v15, off, s[8:11], s37 sc1")
    k("s_mov_b64 exec, -1")
    k("s_branch L_attn_Bgo")
    k.label("L_attn_noprep")
    k("s_waitcnt vmcnt(0)")
    k("s_barrier")
    k.label("L_attn_Bgo")
    ts(13, 1)
    ts(15, 1, 1)
    ts(7, 1, 2)
    k(f"s_cmp_lg_u32 s{S_LAY}, 0")
    k("s_cbranch_scc1 L_attn_prepok")
    if TOUCH & 1:
        l_touch_h()
    k.label("L_attn_prepok")
    if PFW:
        k(f"s_cmp_lg_u32 s{S_W}, 3")
        k("s_cbranch_scc1 L_attn_nopf")
        if PFW == 1:
            k(f"s_cmp_eq_u32 s{S_LAY}, 0")
            k("s_cbranch_scc1 L_attn_nopf")
        k(f"s_lshl_b32 s28, s{S_CS}, 2")
        k(f"s_and_b32 s29, s{S_RS}, 3")
        k("s_add_u32 s28, s28, s29")
        k("s_mul_i32 s29, s28, 25600")
        k(f"s_add_u32 s29, s29, {WO_F:#x}")
        k("s_mov_b32 s36, 25")
        k.label("L_pf_wo")
        k("buffer_load_dwordx4 v[20:23], v3, s[8:11], s29 offen")
        k("s_add_u32 s29, s29, 1024")
        k("s_sub_u32 s36, s36, 1")
        k("s_cmp_lg_u32 s36, 0")
        k("s_cbranch_scc1 L_pf_wo")
        k("s_min_u32 s28, s28, 29")
        k(f"s_mul_i32 s29, s28, {7*21504}")
        k(f"s_add_u32 s29, s29, {WGU_F:#x}")
        k("s_mov_b32 s36, 7")
        k.label("L_pf_gu")
        for st in eval(os.environ.get("PFST", "[0, 1, 2]")):
            k(f"s_add_u32 s30, s29, {st*2048}")
            k("buffer_load_dwordx4 v[20:23], v3, s[8:11], s30 offen")
            k("buffer_load_dwordx4 v[20:23], v3, s[8:11], s30 offen offset:1024")
        k("s_add_u32 s29, s29, 21504")
        k("s_sub_u32 s36, s36, 1")
        k("s_cmp_lg_u32 s36, 0")
        k("s_cbranch_scc1 L_pf_gu")
        k.label("L_attn_nopf")
    if TOUCH & 16:
        l_touch_x()
    ts(14, 1, 3)
    l_setup_w(PH["wo"])
    l_setup_x(PH["wo"])
    k(f"s_setprio {LPRIO}")
    k("s_barrier")
    k("s_branch L_l_after_attn")

    k.label("L_attn_slow")
    k(f"s_mov_b32 s{SPASS}, 1")
    k("v_mov_b32 v10, 0xff800000")
    k("v_mov_b32 v11, 0xff800000")
    k("s_mov_b32 s36, 0")
    k0_loads()
    k(rdH(1, 0))
    k("s_waitcnt vmcnt(0)")
    k("s_branch L_attn_slow_in")
    k.label("L_attn_slow_loop")
    k(rdH(0, 0))
    k(rdH(1, 0))
    for t in range(4):
        k(rdK(t & 1, t))
        if t == 0:
            k.label("L_attn_slow_in")
        k("s_waitcnt lgkmcnt(0)")
        for q in range(2):
            for x in smfma(q, t, q, "0"):
                k(x)
        k.nop(16)
        rowmax_into(10, 0, False)
        rowmax_into(11, 1, False)
    k(f"v_add_u32 v{A3}, s{SSTR}, v{A3}")
    k(f"v_add_u32 v{A4}, s{SSTR}, v{A4}")
    k("s_add_u32 s36, s36, 1")
    k("s_cmp_lg_u32 s36, 16")
    k("s_cbranch_scc1 L_attn_slow_loop")
    k(f"v_subrev_u32 v{A3}, {UNIT}, v{A3}")
    k(f"v_subrev_u32 v{A4}, {UNIT}, v{A4}")
    k0_loads()
    zero_o()
    k("s_waitcnt vmcnt(0)")
    k("s_branch L_attn_start")
    k.label("L_mega_last")
    k("s_endpgm")
    return k.text(256, 102)


def main(out):
    hdr = open("cdna_kernels/" + NAME + ".s.ref").read().split("\n")
    hdr = [l for l in hdr if l.startswith(";") and "@launch" not in l and "Override launch" not in l and "grid=ceil" not in l]
    prep, nprep = gen_prep()
    mega = gen_mega()
    L = [f"; @launch kernel=prep_kernel grid=({nprep},1,1) block=(192,1,1) lds=0",
         f"; @launch kernel=mega_kernel grid=(256,1,1) block=(512,1,1) lds={UNIT}"]
    txt = "\n".join(hdr + L) + "\n" + '.amdgcn_target "amdgcn-amd-amdhsa--gfx950"\n'
    txt += prep + mega
    open(out, "w").write(txt)


if __name__ == "__main__":
    main(sys.argv[1] if len(sys.argv) > 1 else "cdna_kernels/" + NAME + ".s")
```

```python
import math, struct, sys, os

NAME = "interleave_layers__mha_block__glu_gated_reglu__prompt"
INSTR = os.environ.get("INSTR", "0") == "1"

WQKV_F = 0x0001000
WGU_F  = 0x0300000
WO_F   = 0x0800000
WD_F   = 0x0900000
CNT    = 0x0C00000
LBASE  = 0x1000000
LSTR   = 0x2000000
XA     = LBASE + 0x0000000
STA    = LBASE + 0x0280000
XB     = XA
STB    = STA
QKVI   = LBASE + 0x0600000
OF     = LBASE + 0x1000000
HF     = LBASE + 0x1300000
TSBUF  = 0x8000000
WS_SIZE = 0x10000000
UNIT = 163840
SLOT = 49152
SCRATCH = 156 * 1024
SC = "sc0 sc1"
LSC = os.environ.get("LSC", "sc1")

def f2u(x):
    return struct.unpack("<I", struct.pack("<f", x))[0]

SQRTC = math.sqrt(math.log2(math.e) / math.sqrt(20.0))
MF = "v_mfma_f32_16x16x32_bf16"
ROT = int(os.environ.get("ROT", "0"))
CK2 = int(os.environ.get("CK2", "2"))
PF = int(os.environ.get("PF", "0"))
WARM = int(os.environ.get("WARM", "1"))
LPRIO = int(os.environ.get("LPRIO", "0"))
TOUCH = int(os.environ.get("TOUCH", "19"))
W2LATE = int(os.environ.get("W2LATE", "7"))
TLBW = int(os.environ.get("TLBW", "0"))
HEAD2 = int(os.environ.get("HEAD2", "1"))
PFW = int(os.environ.get("PFW", "0"))
SPF = int(os.environ.get("SPF", "0"))
SPS_ = int(os.environ.get("SPSTR", "128"))
WBL = int(os.environ.get("WBL", "0"))
HSC = os.environ.get("HSC", "")
XSC = os.environ.get("XSC", "")
SPT = eval(os.environ.get("SPT", "{}"))
SELFW = int(os.environ.get("SELFW", "0"))
KV5 = int(os.environ.get("KV5", "1"))
WOPRE = int(os.environ.get("WOPRE", "4"))
NT0 = int(os.environ.get("NT0", "1"))
NT1 = int(os.environ.get("NT1", "1"))
TGAP = int(os.environ.get("TGAP", "1"))
POLL2 = int(os.environ.get("POLL2", "0"))


class K:
    def __init__(self, name):
        self.name = name
        self.l = []
        self.nlab = 0
    def __call__(self, s):
        for x in s.split("\n"):
            x = x.strip()
            if x.startswith("LABEL "):
                self.l.append(x.split()[1] + ":")
            elif x:
                self.l.append("    " + x)
    def label(self, s):
        self.l.append(s + ":")
    def newlabel(self, p="L"):
        self.nlab += 1
        return f"{p}_{self.name}_{self.nlab}"
    def nop(self, n):
        while n > 0:
            m = min(n, 16)
            self(f"s_nop {m-1}")
            n -= m
    def text(self, vgpr, sgpr=96):
        acc = (vgpr + 3) // 4 * 4
        kn = self.name + "_kernel"
        t = [".text", f".globl {kn}", ".p2align 8", f".type {kn},@function", f"{kn}:"]
        t += self.l
        d = ['.section .rodata,"a"', ".p2align 6", f".amdhsa_kernel {kn}",
             f"  .amdhsa_next_free_vgpr {vgpr}", f"  .amdhsa_next_free_sgpr {sgpr}",
             f"  .amdhsa_accum_offset {acc}", "  .amdhsa_group_segment_fixed_size 0",
             "  .amdhsa_kernarg_size 80", "  .amdhsa_user_sgpr_count 2",
             "  .amdhsa_user_sgpr_kernarg_segment_ptr 1", "  .amdhsa_system_sgpr_workgroup_id_x 1",
             ".end_amdhsa_kernel"]
        return "\n".join(t + d) + "\n"


def vr(b, n):
    return f"v[{b}:{b+n-1}]" if n > 1 else f"v{b}"

def srd(k, d, base, size):
    k(f"s_mov_b32 s{d}, s{base}")
    k(f"s_mov_b32 s{d+1}, s{base+1}")
    k(f"s_mov_b32 s{d+2}, {size:#x}")
    k(f"s_mov_b32 s{d+3}, 0x00020000")


def prep_rows(k, kind, sb):
    t = lambda i: f"s{sb+2+i}"
    for i in range(5):
        P, G4, S_, r0, r1, u, w = t(0), t(1), t(2), t(3), t(4), t(5), t(6)
        k(f"s_add_u32 {P}, s{sb+23}, {i}")
        if kind == "wd":
            k(f"s_min_u32 {P}, {P}, 215")
        k(f"s_and_b32 {G4}, {P}, 3")
        k(f"s_lshl_b32 {G4}, {G4}, 2")
        k(f"s_lshr_b32 {S_}, {P}, 2")
        if kind in ("x", "wd"):
            if kind == "x":
                k(f"s_lshr_b32 {r0}, {S_}, 1")
                k(f"s_and_b32 {r1}, {S_}, 1")
                tw, lim, sub = 80, 16, 2560 - 64
            else:
                k(f"s_mul_i32 {r0}, {S_}, 86")
                k(f"s_lshr_b32 {r0}, {r0}, 8")
                k(f"s_mul_i32 {r1}, {r0}, 3")
                k(f"s_sub_u32 {r1}, {S_}, {r1}")
                tw, lim, sub = 112, 46, 224 * 46 - 96
            k(f"s_mul_i32 {r0}, {r0}, {tw}")
            k(f"s_lshl_b32 {r1}, {r1}, 5")
            k(f"s_add_u32 {r0}, {r0}, {r1}")
            k(f"s_add_u32 {r0}, {r0}, {G4}")
            k(f"s_lshr_b32 {u}, {P}, 1")
            k(f"s_mul_i32 {u}, {u}, {tw}")
            k(f"s_sub_u32 {u}, {u}, {sub}")
            if kind == "wd":
                k(f"s_min_u32 {u}, {u}, 1712")
            k(f"s_and_b32 {w}, {P}, 1")
            k(f"s_lshl_b32 {w}, {w}, 3")
            k(f"s_add_u32 {u}, {u}, {w}")
            k(f"s_cmp_ge_u32 {S_}, {lim}")
            k(f"s_cselect_b32 {r0}, {u}, {r0}")
            k(f"s_cselect_b32 {r1}, 4, 16")
            k(f"s_add_u32 {r1}, {r0}, {r1}")
        else:
            k(f"s_sub_u32 {S_}, {P}, 8")
            k(f"s_lshr_b32 {r0}, {S_}, 1")
            k(f"s_mul_i32 {r0}, {r0}, 20")
            k(f"s_and_b32 {r1}, {P}, 1")
            k(f"s_lshl_b32 {r1}, {r1}, 2")
            k(f"s_add_u32 {r0}, {r0}, {r1}")
            k(f"s_and_b32 {u}, {P}, 15")
            k(f"s_mul_i32 {u}, {u}, 40")
            k(f"s_add_u32 {u}, {u}, 16")
            k(f"s_cmp_ge_u32 {S_}, 64")
            k(f"s_cselect_b32 {r0}, {u}, {r0}")
            k(f"s_cselect_b32 {r1}, 20, 8")
            k(f"s_add_u32 {r1}, {r0}, {r1}")
        k(f"s_mul_i32 s{sb+10+2*i}, {r0}, s{sb+20}")
        k(f"s_mul_i32 s{sb+11+2*i}, {r1}, s{sb+20}")

def prep_loads(k, sb, vb, v0):
    for i in range(5):
        for j in range(8):
            sreg = f"s{sb+10+2*i+(j>>2)}"
            k(f"buffer_load_ushort v{v0+8*i+j}, v{vb}, s[{sb+24}:{sb+27}], {sreg} offen")
            if j not in (3, 7):
                k(f"s_add_u32 {sreg}, {sreg}, s{sb+20}")

def prep_finish(k, sb, vb, NP, sc, npieces_reg, colsum_reg):
    done, nocs = k.newlabel(), k.newlabel()
    k(f"s_lshl_b32 s{sb+2}, s{sb+1}, 8")
    for i in range(NP):
        a = vb + 16 + 8 * i
        o = vb + 8 + 4 * (i & 1)
        if i:
            k(f"s_add_u32 s{sb+3}, s{sb+1}, {i}")
            k(f"s_cmp_ge_u32 s{sb+3}, {npieces_reg}")
            k(f"s_cbranch_scc1 {done}")
        for j in range(4):
            k(f"v_lshl_or_b32 v{o+j}, v{a+2*j+1}, 16, v{a+2*j}")
        k(f"buffer_store_dwordx4 {vr(o,4)}, v{vb+1}, s[8:11], s{sb+2} offen offset:{i*256} {sc}")
    k.label(done)
    k(f"s_cmp_eq_u32 {colsum_reg}, 0")
    k(f"s_cbranch_scc1 {nocs}")
    e = vb + 16
    for r in range(0, 8 * NP, 2):
        k(f"v_lshlrev_b32 v{e+r}, 16, v{e+r}")
        k(f"v_lshlrev_b32 v{e+r+1}, 16, v{e+r+1}")
        if r:
            k(f"v_pk_add_f32 {vr(e,2)}, {vr(e,2)}, {vr(e+r,2)}")
    k(f"v_add_f32 v{e}, v{e}, v{e+1}")
    lg = 2 if NP == 5 else 1
    k(f"s_lshr_b32 s{sb+2}, s{sb}, {lg}")
    k(f"s_lshl_b32 s{sb+2}, s{sb+2}, {6+lg}")
    k(f"s_and_b32 s{sb+3}, s{sb}, {(1<<lg)-1}")
    k(f"s_lshl_b32 s{sb+3}, s{sb+3}, 2")
    k(f"s_add_u32 s{sb+2}, s{sb+2}, s{sb+3}")
    k(f"s_add_u32 s{sb+2}, s{sb+2}, {20*1024}")
    k(f"buffer_store_dword v{e}, v{vb+2}, s[8:11], s{sb+2} offen {sc}")
    k.label(nocs)


def gen_prep():
    k = K("prep")
    NWG = 246
    L_end = "L_prep_end"
    sb, vb = 40, 16
    if SELFW:
        k("s_getpc_b64 s[32:33]")
        k("v_and_b32 v1, 63, v0")
        k("v_lshlrev_b32 v4, 7, v1")
        k("global_load_dword v85, v4, s[32:33]")
    k(f"s_cmp_ge_u32 s2, {NWG}")
    k(f"s_cbranch_scc1 {L_end}")
    k("s_load_dwordx4 s[24:27], s[0:1], 0")
    k("s_load_dwordx2 s[4:5], s[0:1], 72")
    if TLBW:
        k("s_load_dwordx2 s[80:81], s[0:1], 16")
        k("s_load_dwordx4 s[84:87], s[0:1], 32")
        k("s_load_dwordx4 s[88:91], s[0:1], 48")
    k("v_and_b32 v1, 63, v0")
    k("v_lshrrev_b32 v2, 6, v0")
    k("s_nop 0")
    k("v_readfirstlane_b32 s12, v2")
    if WARM:
        k("s_getpc_b64 s[28:29]")
        k.label("L_prep_pc")
        k("s_add_u32 s28, s28, mega_kernel - L_prep_pc")
        k("s_addc_u32 s29, s29, 0")
        k("s_lshr_b32 s30, s2, 3")
        k("s_mul_i32 s30, s30, 3")
        k("s_add_u32 s30, s30, s12")
        k("s_lshl_b32 s30, s30, 9")
        k("s_min_u32 s30, s30, L_mega_last - mega_kernel - 512")
        k("v_lshl_add_u32 v4, v1, 3, s30")
        k("global_load_dwordx2 v[86:87], v4, s[28:29]")
    k(f"s_mul_i32 s12, s12, {NWG}")
    k("s_add_u32 s12, s12, s2")
    k("s_cmp_ge_u32 s12, 480")
    k("s_cbranch_scc1 L_prep_x")
    k(f"s_and_b32 s{sb}, s12, 15")
    k(f"s_mul_i32 s{sb+1}, s{sb}, 5")
    k(f"s_mov_b32 s{sb+23}, s{sb+1}")
    k("s_lshr_b32 s22, s12, 4")
    k("s_lshl_b32 s22, s22, 6")
    k(f"s_movk_i32 s{sb+20}, 3840")
    k("v_add_u32 v5, s22, v1")
    k(f"v_lshlrev_b32 v{vb}, 1, v5")
    prep_rows(k, "x", sb)
    k("s_waitcnt lgkmcnt(0)")
    srd(k, sb + 24, 26, 640 * 3840)
    srd(k, 8, 4, WS_SIZE)
    prep_loads(k, sb, vb, vb + 16)
    k("v_mul_u32_u24 v6, 3277, v5")
    k("v_lshrrev_b32 v6, 16, v6")
    k("v_mul_u32_u24 v7, 20, v6")
    k("v_sub_u32 v7, v5, v7")
    k("v_mul_u32_u24 v8, 43, v6")
    k("v_lshrrev_b32 v8, 8, v8")
    k("v_mul_u32_u24 v9, 6, v8")
    k("v_sub_u32 v9, v6, v9")
    k("v_and_b32 v10, 6, v9")
    k("v_bfe_u32 v11, v7, 2, 1")
    k("v_add_u32 v10, v10, v11")
    k("v_and_b32 v11, 1, v9")
    k("v_lshlrev_b32 v12, 3, v11")
    k("v_bfe_u32 v11, v7, 3, 1")
    k("v_lshl_add_u32 v12, v11, 2, v12")
    k("v_lshrrev_b32 v14, 2, v9")
    k("v_add_u32 v14, 6, v14")
    k("v_and_b32 v15, 3, v9")
    k("v_lshlrev_b32 v15, 2, v15")
    k("v_cmp_le_u32 s[30:31], 16, v7")
    k("s_nop 1")
    k("v_cndmask_b32 v10, v10, v14, s[30:31]")
    k("v_cndmask_b32 v12, v12, v15, s[30:31]")
    k("v_and_b32 v13, 3, v7")
    k("v_add_u32 v12, v12, v13")
    k("v_lshl_add_u32 v10, v8, 3, v10")
    k("v_lshrrev_b32 v14, 4, v5")
    k("v_add_u32 v14, 8, v14")
    k("v_and_b32 v15, 15, v5")
    k("s_movk_i32 s30, 1280")
    k("v_cmp_le_u32 s[30:31], s30, v5")
    k("s_nop 1")
    k("v_cndmask_b32 v10, v10, v14, s[30:31]")
    k("v_cndmask_b32 v12, v12, v15, s[30:31]")
    k(f"v_mul_u32_u24 v{vb+1}, 21504, v10")
    k(f"v_add_u32 v{vb+1}, {WQKV_F:#x}, v{vb+1}")
    k(f"v_lshl_add_u32 v{vb+1}, v12, 4, v{vb+1}")
    k(f"v_mov_b32 v{vb+2}, v{vb+1}")
    k("s_waitcnt vmcnt(0)")
    prep_finish(k, sb, vb, 5, "", "80", "1")
    k("s_endpgm")

    k.label("L_prep_x")
    k("s_sub_u32 s22, s12, 480")
    k("s_cmp_ge_u32 s22, 256")
    k(f"s_cbranch_scc1 {L_end}")
    k("s_and_b32 s23, s22, 1")
    k("s_lshl_b32 s23, s23, 3")
    k("v_lshrrev_b32 v5, 3, v1")
    k("v_add_u32 v5, s23, v5")
    k("v_and_b32 v6, 7, v1")
    k("v_mul_u32_u24 v3, 1280, v5")
    k("v_lshl_add_u32 v3, v6, 4, v3")
    k("s_lshr_b32 s23, s22, 1")
    k("s_mul_i32 s42, s23, 20480")
    k("s_waitcnt lgkmcnt(0)")
    srd(k, 16, 24, 2048 * 1280)
    srd(k, 8, 4, WS_SIZE)
    for i in range(10):
        k(f"buffer_load_dwordx4 {vr(16+4*i,4)}, v3, s[16:19], s42 offen offset:{128*i}")
    if TLBW:
        k("v_lshlrev_b32 v84, 20, v1")
        k("buffer_load_dword v85, v84, s[8:11], 0 offen")
        k(f"s_mov_b32 s70, {64<<20:#x}")
        k("s_mov_b64 exec, 0xffff")
        k("buffer_load_dword v85, v84, s[8:11], s70 offen")
        k("s_mov_b64 exec, 7")
        for (b_, n_) in ((84, 640*3456), (86, 640*3456), (88, 1728*1280), (90, 2048*1280), (80, 640*1280)):
            srd(k, 72, b_, n_)
            k("buffer_load_dword v85, v84, s[72:75], 0 offen")
        k("s_mov_b64 exec, -1")
    k("v_mov_b32 v8, 0")
    k("v_mov_b32 v9, 0")
    k("v_lshlrev_b32 v10, 3, v1")
    k("s_lshl_b32 s43, s22, 9")
    k(f"s_add_u32 s43, s43, {CNT:#x}")
    k("buffer_store_dwordx2 v[8:9], v10, s[8:11], s43 offen")
    k("v_lshlrev_b32 v4, 4, v5")
    k("v_and_b32 v15, 1, v6")
    k("v_lshrrev_b32 v7, 1, v6")
    k("v_mov_b32 v56, 0x100")
    for i in range(10):
        d = 64 + 2 * i
        k(f"v_add_u32 v10, {4*i}, v7")
        k("v_mul_u32_u24 v11, 52, v10")
        k("v_lshrrev_b32 v11, 8, v11")
        k("v_mul_u32_u24 v12, 5, v11")
        k("v_sub_u32 v12, v10, v12")
        k("v_lshrrev_b32 v13, 1, v12")
        k("v_lshl_add_u32 v13, v11, 1, v13")
        k("v_lshl_add_u32 v13, v13, 1, v15")
        k("v_lshlrev_b32 v13, 9, v13")
        k("v_and_b32 v14, 1, v12")
        k("v_lshl_add_u32 v13, v14, 3, v13")
        k("v_lshl_add_u32 v14, v11, 1, v15")
        k("v_lshlrev_b32 v14, 8, v14")
        k("v_add_u32 v14, 0x4000, v14")
        k("v_cmp_eq_u32 s[44:45], 4, v12")
        k("s_nop 1")
        k("v_cndmask_b32 v13, v13, v14, s[44:45]")
        k("v_cndmask_b32 v14, v56, 8, s[44:45]")
        k(f"v_add_u32 v{d}, v13, v4")
        k(f"v_add_u32 v{d+1}, v{d}, v14")
    k(f"s_add_u32 s43, s42, {XA:#x}")
    k("s_waitcnt vmcnt(0)")
    for i in range(10):
        k(f"buffer_store_dwordx2 {vr(16+4*i,2)}, v{64+2*i}, s[8:11], s43 offen")
        k(f"buffer_store_dwordx2 {vr(18+4*i,2)}, v{65+2*i}, s[8:11], s43 offen")
    k("v_mov_b64 v[12:13], 0")
    for r in range(40):
        k(f"v_lshlrev_b32 v10, 16, v{16+r}")
        k(f"v_and_b32 v11, 0xffff0000, v{16+r}")
        k("v_pk_add_f32 v[8:9], v[8:9], v[10:11]")
        k("v_pk_fma_f32 v[12:13], v[10:11], v[10:11], v[12:13]")
    k("v_add_f32 v8, v8, v9")
    k("v_add_f32 v9, v12, v13")
    k("v_lshlrev_b32 v4, 14, v6")
    k("v_lshl_add_u32 v4, v5, 3, v4")
    k("s_lshl_b32 s43, s23, 7")
    k(f"s_add_u32 s43, s43, {STA:#x}")
    k("buffer_store_dwordx2 v[8:9], v4, s[8:11], s43 offen")
    k.label(L_end)
    k("s_endpgm")
    return k.text(88, 96), NWG


class Ph:
    def __init__(s, name, big, NB, nsteps, xsrc, wsrc):
        s.name, s.big, s.NB, s.nsteps, s.xsrc, s.wsrc = name, big, NB, nsteps, xsrc, wsrc
        s.MX = 2 if big else 1
        s.NXF = 4 * s.MX
        s.SPS = 2 if big else 4
        s.STEP = (s.NXF + NB) * 1024
        s.XS = nsteps * 1024
        s.WS = (nsteps + 1) * 1024 if big else nsteps * 1024
        s.nst = (nsteps + s.SPS - 1) // s.SPS
        s.skip = s.SPS * s.nst - nsteps
        s.SL = [x * 1024 for x in {"wo": [108, 0, 36, 72], "gu": [0, 44, 88], "down": [88, 48, 124, 0], "qkv": [0, 124, 88, 48]}[name]]
        s.R = len(s.SL)
        s.EARLY = eval(os.environ.get("EARLY", '{"wo": {3: [0], 4: [1]}, "gu": {8: [1], 9: [0, 2]}, "down": {12: [0, 1], 13: [2]}, "qkv": {}}'))[name]
        s.nx = 4
        s.nw = NB // 2 if big else NB
        s.n = s.nx + s.nw
        assert s.SPS * s.STEP <= SLOT

PH = {
    "qkv": Ph("qkv", True, 8, 20, XA, WQKV_F),
    "wo": Ph("wo", False, 5, 20, OF, WO_F),
    "gu": Ph("gu", True, 14, 20, XB, WGU_F),
    "down": Ph("down", False, 5, 54, HF, WD_F),
}

S_W = 12
S_RB, S_CB = 13, 14
S_RS, S_CS = 15, 16
S_HD, S_QB = 17, 18
S_LAY = 19
S_SLOT = 20
S_SEAM = 21
S_TS = 22
S_ROLE = 23
S_FAST = 3
TK = CNT + 64*512 + 384
FL = CNT + 128*512 + 384
FORCE_SLOW = int(os.environ.get('FORCE_SLOW', '0'))
RES = 16


def gen_mega():
    k = K("mega")
    L_end = "L_mega_end"

    def ts(i, role=0, wave=0):
        if not INSTR:
            return
        lab = k.newlabel()
        k(f"s_xor_b32 s96, s{S_ROLE}, {role}")
        k(f"s_xor_b32 s97, s{S_W}, {wave}")
        k("s_or_b32 s96, s96, s97")
        k(f"s_cbranch_scc1 {lab}")
        k("s_memtime s[96:97]")
        k("s_memrealtime s[98:99]")
        k("s_waitcnt lgkmcnt(0)")
        k("s_mov_b64 s[100:101], exec")
        k("s_mov_b64 exec, 1")
        k("v_mov_b32 v0, s96")
        k(f"buffer_store_dword v0, off, s[8:11], s{S_TS} offset:{8*i}")
        k("s_nop 1")
        k("v_mov_b32 v0, s98")
        k(f"buffer_store_dword v0, off, s[8:11], s{S_TS} offset:{8*i+4}")
        k("s_mov_b64 exec, s[100:101]")
        k.label(lab)

    def get_coords():
        k(f"v_mov_b32 v9, {SCRATCH + 1024:#x}")
        k("ds_read_b32 v9, v9")
        k("s_waitcnt lgkmcnt(0)")
        k("v_readfirstlane_b32 s28, v9")
        k(f"s_lshr_b32 s{S_FAST}, s28, 8")
        k("s_bfe_u32 s30, s28, 0x30005")
        k(f"s_lshl_b32 s{S_RS}, s30, 2")
        k("s_and_b32 s29, s28, 3")
        k(f"s_add_u32 s{S_RS}, s{S_RS}, s29")
        k(f"s_bfe_u32 s{S_CS}, s28, 0x30002")
        k(f"s_lshl_b32 s{S_RB}, s30, 1")
        k("s_and_b32 s29, s28, 1")
        k(f"s_add_u32 s{S_RB}, s{S_RB}, s29")
        k(f"s_bfe_u32 s{S_CB}, s28, 0x40001")
        k(f"s_mov_b32 s{S_HD}, s{S_RS}")
        k(f"s_mov_b32 s{S_QB}, s{S_CS}")

    def next_slot(dst=S_SLOT):
        k(f"s_add_u32 s{dst}, s{dst}, {SLOT}")
        k(f"s_cmp_eq_u32 s{dst}, {3*SLOT}")
        k(f"s_cselect_b32 s{dst}, 0, s{dst}")

    k("s_cmp_ge_u32 s2, 256")
    k(f"s_cbranch_scc1 {L_end}")
    k("s_getpc_b64 s[30:31]")
    k("s_lshr_b32 s28, s2, 3")
    k("s_mul_i32 s28, s28, 1536")
    k("v_lshl_add_u32 v4, v0, 7, s28")
    k("v_min_u32 v4, L_mega_last - mega_kernel - 128, v4")
    k("v_cmp_gt_u32 vcc, 12, v0")
    k("s_and_saveexec_b64 s[28:29], vcc")
    k("s_cbranch_execz L_nocode")
    k("global_load_dword v16, v4, s[30:31]")
    k.label("L_nocode")
    k("s_mov_b64 exec, s[28:29]")
    k("s_load_dwordx2 s[4:5], s[0:1], 72")
    k("s_load_dwordx2 s[6:7], s[0:1], 56")
    k("s_load_dwordx2 s[86:87], s[0:1], 16")
    k("s_load_dwordx4 s[88:91], s[0:1], 32")
    k("s_load_dwordx2 s[92:93], s[0:1], 48")
    k("s_load_dwordx4 s[32:35], s[0:1], 0")
    k("s_load_dwordx2 s[36:37], s[0:1], 64")
    k("v_and_b32 v1, 63, v0")
    k("v_lshrrev_b32 v2, 6, v0")
    k("v_lshlrev_b32 v3, 4, v1")
    k(f"v_readfirstlane_b32 s{S_W}, v2")
    k(f"s_and_b32 s{S_RB}, s2, 1")
    k(f"s_lshl_b32 s{S_RB}, s{S_RB}, 3")
    k("s_bfe_u32 s28, s2, 0x30003")
    k(f"s_add_u32 s{S_RB}, s{S_RB}, s28")
    k(f"s_bfe_u32 s{S_CB}, s2, 0x20001")
    k(f"s_lshl_b32 s{S_CB}, s{S_CB}, 2")
    k("s_lshr_b32 s28, s2, 6")
    k(f"s_add_u32 s{S_CB}, s{S_CB}, s28")
    k(f"s_mov_b32 s{S_LAY}, 0")
    k(f"s_mov_b32 s{S_SEAM}, 0")
    k(f"s_lshl_b32 s{S_TS}, s2, 10")
    k(f"s_add_u32 s{S_TS}, s{S_TS}, {TSBUF:#x}")
    k("s_waitcnt lgkmcnt(0)")
    srd(k, 8, 4, WS_SIZE)
    srd(k, 24, 6, 2048 * 1280)
    srd(k, 68, 32, 2048 * 1280)
    srd(k, 72, 34, 640 * 3840)
    srd(k, 76, 36, 256)
    k("s_mov_b64 s[32:33], s[34:35]")
    k(f"s_mul_i32 s47, s{S_CB}, 240")
    k(f"s_lshl_b32 s28, s{S_CB}, 8")
    k("s_sub_u32 s28, s28, 256")
    k(f"s_cmp_ge_u32 s{S_CB}, 11")
    k("s_cselect_b32 s47, s28, s47")
    k("v_mov_b32 v15, 1")
    k(f"s_mov_b32 s{S_ROLE}, 0")
    k(f"s_cmp_lt_u32 s{S_W}, 4")
    k("s_cbranch_scc1 L_comp")
    k(f"s_mov_b32 s{S_ROLE}, 1")

    k(f"s_sub_u32 s{S_W}, s{S_W}, 4")
    k(f"s_setprio {LPRIO}")
    AX = {"qkv": 32, "wo": 48, "gu": 32, "down": 48}
    DUMMY = {"qkv": (10, 0xb0), "gu": (15, 0xff0)}
    def dummy_mask(p, dst):
        c, msk = DUMMY[p.name]
        k(f"s_cmp_eq_u32 s{S_CB}, {c}")
        k(f"s_cselect_b32 s{dst}, {msk:#x}, 0")
    def l_setup_w(p):
        a = AX[p.name] + 4
        rc = S_CB if p.big else S_CS
        k(f"s_mul_i32 s28, s{rc}, {p.NB*p.WS}")
        k(f"s_lshr_b32 s29, s{S_W}, {1 if p.big else 0}")
        k("s_lshl_b32 s29, s29, 10")
        k("s_add_u32 s28, s28, s29")
        k(f"s_add_u32 s28, s28, {p.wsrc - p.skip*1024:#x}")
        if not p.big:
            for j in range(p.nw):
                k(f"s_add_u32 s29, s28, {j*p.WS - (j&3)*1024}")
                k(f"v_add_u32 v{a+j}, s29, v3")
            return
        dummy_mask(p, 30)
        k(f"s_and_b32 s29, s{S_W}, 1")
        k(f"s_mul_i32 s29, s29, {p.nw}")
        for j in range(p.nw):
            k("s_bitcmp1_b32 s30, s29")
            k("s_cselect_b32 s31, 0, s29")
            k(f"s_mul_i32 s31, s31, {p.WS}")
            k("s_add_u32 s31, s31, s28")
            k(f"s_sub_u32 s31, s31, {(j&3)*1024}")
            k(f"v_add_u32 v{a+j}, s31, v3")
            k("s_add_u32 s29, s29, 1")
        if p.name == "qkv":
            k(f"s_cmp_lt_u32 s{S_CB}, 11")
            k("s_cselect_b32 s30, 0x80, 0")
            k("s_cmp_eq_u32 s29, 8")
            k("s_cselect_b32 s30, s30, 0")
            k("v_and_b32 v4, s30, v3")
            k(f"v_sub_u32 v{a+3}, v{a+3}, v4")
    def l_setup_x(p):
        a = AX[p.name]
        rr = S_RB if p.big else S_RS
        k(f"s_mul_i32 s28, s{rr}, {p.NXF*p.XS}")
        if p.big:
            k(f"s_and_b32 s29, s{S_W}, 1")
            k(f"s_mul_i32 s29, s29, {4*p.XS}")
            k("s_add_u32 s28, s28, s29")
            k(f"s_lshr_b32 s29, s{S_W}, 1")
        else:
            k(f"s_mov_b32 s29, s{S_W}")
        k("s_lshl_b32 s29, s29, 10")
        k("s_add_u32 s28, s28, s29")
        k(f"s_add_u32 s28, s28, {p.xsrc - p.skip*1024:#x}")
        if p.name == "wo":
            k(f"s_add_u32 s28, s28, s{S_LAY}")
        for j in range(4):
            k(f"v_add_u32 v{a+j}, s28, v3")
            if j < 3:
                k(f"s_add_u32 s28, s28, {p.XS - 1024}")
    LOFF = {"qkv": 40, "wo": 42, "gu": 44, "down": 42}
    for nm in ("qkv", "wo", "gu"):
        p = PH[nm]
        r = LOFF[nm]
        if p.big:
            k(f"s_lshr_b32 s28, s{S_W}, 1")
            k(f"s_mul_i32 s28, s28, {p.STEP}")
            k(f"s_and_b32 s29, s{S_W}, 1")
            k(f"s_lshl_b32 s30, s29, 12")
            k(f"s_add_u32 s{r}, s28, s30")
            k(f"s_mul_i32 s30, s29, {p.nw*1024}")
            k(f"s_add_u32 s{r+1}, s28, s30")
            k(f"s_add_u32 s{r+1}, s{r+1}, {p.NXF*1024}")
        else:
            k(f"s_mul_i32 s{r}, s{S_W}, {p.STEP}")
            k(f"s_add_u32 s{r+1}, s{r}, 4096")
    class Trk:
        def __init__(t): t.ops = []
        def has(t, g): return any(x == g for x, n in t.ops)
        def allowed(t, tags):
            last = max(i for i, (g, n) in enumerate(t.ops) if g in tags)
            return sum(n for g, n in t.ops[last+1:])
    def l_issue(p, part, st, trk):
        a = AX[p.name] + (0 if part == "x" else 4)
        n = p.nx if part == "x" else p.nw
        r = LOFF[p.name] + (0 if part == "x" else 1)
        lds = p.SL[st % p.R]
        lab = None
        if st == 0 and p.skip:
            lab = k.newlabel()
            k(f"s_cmp_lt_u32 s{S_W}, {p.skip}")
            k(f"s_cbranch_scc1 {lab}")
        for j in range(n):
            if j % 4 == 0:
                k(f"s_add_u32 m0, s{r}, {lds + j*1024}")
                k(f"s_mov_b32 s35, {st*p.SPS*1024}")
            k(f"buffer_load_dwordx4 v{a+j}, s[8:11], s35 offen offset:{(j&3)*1024} {LSC if part == 'x' else ''} lds")
        if lab:
            k.label(lab)
        trk.ops.append(((p.name, part, st), 0 if lab else n))
    def l_touch_h():
        k(f"s_lshl_b32 s28, s{S_RB}, 2")
        k(f"s_add_u32 s28, s28, s{S_W}")
        k(f"s_mul_i32 s28, s28, {2*55296}")
        k(f"s_add_u32 s28, s28, {HF:#x}")
        k(f"s_mul_i32 s29, s{S_CB}, 3072")
        k("s_add_u32 s30, s28, s29")
        k(f"s_lshl_b32 s29, s{S_CB}, 9")
        k("s_add_u32 s29, s28, s29")
        k(f"s_add_u32 s29, s29, {46*1024}")
        k(f"s_cmp_eq_u32 s{S_CB}, 15")
        k("s_cselect_b32 s31, 0, 1024")
        k("v_add_u32 v24, s31, v3")
        k("v_add_u32 v25, s31, v24")
        for m in range(2):
            for j in range(3):
                k(f"buffer_load_dwordx4 v[20:23], v{3 if j == 0 else 23+j}, s[8:11], s30 offen sc1")
            k("s_mov_b32 exec_hi, 0")
            k("buffer_load_dwordx4 v[20:23], v3, s[8:11], s29 offen sc1")
            k("s_mov_b64 exec, -1")
            if m == 0:
                k("s_add_u32 s30, s30, 55296")
                k("s_add_u32 s29, s29, 55296")
    def l_touch_x():
        k(f"s_lshl_b32 s28, s{S_RS}, 2")
        k(f"s_add_u32 s28, s28, s{S_W}")
        k("s_mul_i32 s29, s28, 20480")
        k(f"s_add_u32 s29, s29, {XA:#x}")
        k(f"s_lshl_b32 s30, s{S_CS}, 11")
        k("s_add_u32 s30, s30, s29")
        k(f"s_lshl_b32 s31, s{S_CS}, 9")
        k("s_add_u32 s31, s31, s29")
        k("s_add_u32 s31, s31, 16384")
        k("buffer_load_dwordx4 v[20:23], v3, s[8:11], s30 offen sc1")
        k("buffer_load_dwordx4 v[20:23], v3, s[8:11], s30 offen offset:1024 sc1")
        k("s_mov_b32 exec_hi, 0")
        k("buffer_load_dwordx4 v[20:23], v3, s[8:11], s31 offen sc1")
        k(f"s_lshl_b32 s29, s{S_CS}, 14")
        k("s_lshl_b32 s28, s28, 7")
        k("s_add_u32 s29, s29, s28")
        k(f"s_add_u32 s29, s29, {STA:#x}")
        k("s_mov_b64 exec, 1")
        k("buffer_load_dwordx4 v[20:23], v3, s[8:11], s29 offen sc1")
        k("s_mov_b64 exec, -1")
    def l_gemm(p, nxt, trk):
        def need(st):
            return trk.allowed({(p.name, "x", st), (p.name, "w", st)})
        def fill(st):
            for part in ("w", "x"):
                if not trk.has((p.name, part, st)):
                    l_issue(p, part, st, trk)
        fill(0)
        fill(1)
        for st in range(p.nst):
            k(f"s_waitcnt vmcnt({need(st)})")
            k("s_barrier")
            if st == 0:
                for i in range(2, p.R):
                    fill(i)
                if nxt:
                    l_setup_w(nxt)
                if p.name == "down" and TOUCH & 16:
                    lab = k.newlabel()
                    k(f"s_cmp_lg_u32 s{S_LAY}, 0")
                    k(f"s_cbranch_scc1 {lab}")
                    l_touch_x()
                    k.label(lab)
            elif st - 1 + p.R < p.nst:
                fill(st - 1 + p.R)
            if st in SPT.get(p.name, []):
                i_ = SPT[p.name].index(st)
                base, size = (WD_F, 40*55296) if p.name == "gu" else (WQKV_F, 128*21504)
                k(f"s_lshl_b32 s28, s{S_CS}, 2")
                k(f"s_and_b32 s29, s{S_RS}, 3")
                k("s_add_u32 s28, s28, s29")
                k("s_lshl_b32 s28, s28, 2")
                k(f"s_add_u32 s28, s28, s{S_W}")
                k("s_lshl_b32 s28, s28, 13")
                k(f"s_add_u32 s28, s28, {i_ << 20}")
                k(f"s_min_u32 s28, s28, {size - 8192}")
                k(f"s_add_u32 s28, s28, {base:#x}")
                k("v_lshlrev_b32 v24, 7, v1")
                k("buffer_load_dword v20, v24, s[8:11], s28 offen")
                trk.ops.append(("t", 1))
            if p.name == "gu" and st == p.nst - 1 and TOUCH & 2:
                l_touch_h()
                trk.ops.append(("t", 8))
            if p.name == "down" and st == min(p.EARLY):
                assert st == p.nst - 2
                lab = k.newlabel()
                k(f"s_cmp_eq_u32 s{S_LAY}, 0")
                k(f"s_cbranch_scc1 {lab}")
                k("s_waitcnt vmcnt(0)")
                k("s_barrier")
                k("s_endpgm")
                k.label(lab)
            for i in p.EARLY.get(st, []):
                l_issue(nxt, "w", i, trk)
        return trk

    k("v_lshrrev_b32 v8, 3, v1")
    k("v_and_b32 v9, 7, v1")
    k("v_lshrrev_b32 v10, 4, v1")
    k("v_xor_b32 v9, v9, v10")
    k("v_mul_u32_u24 v8, 1280, v8")
    k(f"s_lshl_b32 s28, s{S_RB}, 2")
    k(f"s_add_u32 s28, s28, s{S_W}")
    k(f"s_mul_i32 s28, s28, {32*1280}")
    for j in range(4):
        k(f"v_xor_b32 v11, {4*(j&1)}, v9")
        k("v_lshl_add_u32 v11, v11, 4, v8")
        k(f"s_add_u32 s29, s28, {j*(8*1280-1024)}")
        k(f"v_add_u32 v{32+j}, s29, v11")
    k("v_and_b32 v9, 15, v1")
    k("v_lshlrev_b32 v11, 1, v10")
    k("v_xor_b32 v9, v9, v11")
    k("v_mul_u32_u24 v8, 3840, v10")
    k(f"s_mul_i32 s28, s{S_W}, {16*3840}")
    k("s_add_u32 s28, s28, s47")
    for j in range(4):
        k(f"v_xor_b32 v11, {8*(j>>1)}, v9")
        k("v_lshl_add_u32 v11, v11, 4, v8")
        k(f"s_add_u32 s29, s28, {j*(4*3840-1024)}")
        k(f"v_add_u32 v{36+j}, s29, v11")
    k(f"s_lshl_b32 s30, s{S_W}, 12")
    def raw_issue(st):
        k(f"s_add_u32 m0, s30, {(st%4)*32768 + 16384}")
        k(f"s_mov_b32 s35, {st*64*3840}")
        for j in range(4):
            k(f"buffer_load_dwordx4 v{36+j}, s[72:75], s35 offen offset:{1024*j} lds")
        k(f"s_add_u32 m0, s30, {(st%4)*32768}")
        k(f"s_movk_i32 s35, {st*128}")
        for j in range(4):
            k(f"buffer_load_dwordx4 v{32+j}, s[68:71], s35 offen offset:{1024*j} lds")
    raw_issue(0)
    raw_issue(1)
    issued = 2
    for st in range(10):
        k(f"s_waitcnt vmcnt({8*(issued-1-st)})")
        k("s_barrier")
        hi = 4 if st == 0 else min(10, st + 4)
        while issued < hi:
            raw_issue(issued)
            issued += 1
    k("s_barrier")
    k("s_branch L_l_attn")
    k.label("L_l_after_attn")
    t = Trk()
    for i in range(WOPRE):
        l_issue(PH["wo"], "w", i, t)
    k("s_barrier")
    for (nm, nx) in (("wo", "gu"), ("gu", "down"), ("down", "qkv")):
        t = l_gemm(PH[nm], PH[nx], t)
        if nm == "down":
            k(f"s_mov_b32 s{S_LAY}, {LSTR:#x}")
            k(f"s_add_u32 s{S_TS}, s{S_TS}, 320")
        l_setup_x(PH[nx])
        k("s_barrier")
        k("s_barrier")
    l_gemm(PH["qkv"], None, t)
    k("s_branch L_l_attn")
    k.label("L_l_done")
    k("s_waitcnt vmcnt(0)")
    k("s_endpgm")

    k.label("L_comp")
    k("v_and_b32 v7, 15, v1")
    k("v_lshrrev_b32 v8, 4, v1")
    k("v_lshlrev_b32 v2, 7, v1")

    def small_addr():
        k(f"s_lshl_b32 s28, s{S_RS}, 2")
        k(f"s_add_u32 s28, s28, s{S_W}")
        k("s_mul_i32 s29, s28, 20480")
        k(f"s_lshl_b32 s30, s{S_CS}, 11")
        k("s_add_u32 s30, s30, s29")
        k(f"s_lshl_b32 s31, s{S_CS}, 9")
        k("s_add_u32 s31, s31, s29")
        k("s_add_u32 s31, s31, 16384")
        k("v_lshrrev_b32 v9, 1, v8")
        k("v_lshlrev_b32 v9, 8, v9")
        k("v_lshl_add_u32 v9, v7, 4, v9")
    def res_load():
        k("v_mul_u32_u24 v9, 1280, v7")
        k("v_lshl_add_u32 v9, v8, 3, v9")
        k(f"s_lshl_b32 s28, s{S_RS}, 2")
        k(f"s_add_u32 s28, s28, s{S_W}")
        k(f"s_mul_i32 s28, s28, {16*1280}")
        k(f"s_mul_i32 s29, s{S_CS}, 160")
        k("s_add_u32 s28, s28, s29")
        for j in range(5):
            k(f"buffer_load_dwordx2 {vr(RES+2*j,2)}, v9, s[68:71], s28 offen offset:{32*j}")

    SSIG, SSO, SPO = 54, 53, 94
    def seam_pre(seam, idx_setup):
        idx_setup()
        k("s_lshl_b32 s28, s28, 9")
        k(f"s_add_u32 s{SSO}, s{S_SEAM}, {CNT + 4*seam:#x}")
        k(f"s_add_u32 s{SPO}, s28, s{SSO}")
    def seam_post(both_roles=False, filler=None):
        lab, l1, lp = k.newlabel(), k.newlabel(), k.newlabel()
        if both_roles:
            k(f"s_cmp_lg_u32 s{S_ROLE}, 0")
            k(f"s_cbranch_scc1 {lab}")
        k(f"s_cmp_lg_u32 s{S_W}, 0")
        k(f"s_cbranch_scc1 {l1}")
        k(f"s_mov_b64 exec, s[{SSIG}:{SSIG+1}]")
        k(f"buffer_atomic_add v15, v12, s[8:11], s{SSO} offen sc1")
        k("s_mov_b64 exec, -1")
        k.label(l1)
        if filler:
            filler()
        k(f"s_cmp_lg_u32 s{S_W}, 1")
        k(f"s_cbranch_scc1 {lab}")
        k("s_mov_b32 s95, 0x40000")
        k(f"s_add_u32 s66, s{SPO}, 128")
        k(f"s_add_u32 s67, s{SPO}, 256")
        k.label(lp)
        k(f"s_load_dword s63, s[4:5], s{SPO} glc")
        k("s_load_dword s64, s[4:5], s66 glc")
        k("s_load_dword s65, s[4:5], s67 glc")
        k("s_sub_u32 s95, s95, 1")
        k(f"s_cbranch_scc1 {lp}_x")
        k("s_waitcnt lgkmcnt(0)")
        k("s_xor_b32 s63, s63, s60")
        k("s_xor_b32 s64, s64, s61")
        k("s_xor_b32 s65, s65, s62")
        k("s_or_b32 s63, s63, s64")
        k("s_or_b32 s63, s63, s65")
        k(f"s_cbranch_scc1 {lp}")
        k.label(lp + "_x")
        k("s_waitcnt lgkmcnt(0)")
        k.label(lab)
    def lseam_pre(seam, sig_group, sig_member, poll_group):
        k(f"s_lshr_b32 s28, s{S_LAY}, {25 - 15}")
        k(f"s_add_u32 s28, s28, {FL + seam*16*512:#x}")
        sig_group()
        k("s_lshl_b32 s29, s29, 9")
        k(f"s_add_u32 s{SSO}, s28, s29")
        sig_member()
        k("s_lshl_b32 s29, s29, 2")
        k(f"s_add_u32 s{SSO}, s{SSO}, s29")
        poll_group()
        k("s_lshl_b32 s29, s29, 9")
        k(f"s_add_u32 s{SPO}, s28, s29")
        k("v_lshlrev_b32 v13, 2, v1")
    def lseam_post(nprod, filler=None):
        lab, l1, l2, lp = k.newlabel(), k.newlabel(), k.newlabel(), k.newlabel()
        k(f"s_cmp_lg_u32 s{S_W}, 0")
        k(f"s_cbranch_scc1 {l1}")
        k("s_mov_b64 exec, 1")
        k(f"s_cmp_lg_u32 s{S_FAST}, 0")
        k(f"s_cbranch_scc1 {l2}")
        k("buffer_wbl2 sc1")
        k("s_waitcnt vmcnt(0)")
        k(f"buffer_store_dword v15, off, s[8:11], s{SSO} sc0 sc1")
        k("s_mov_b64 exec, -1")
        k(f"s_branch {l1}")
        k.label(l2)
        k(f"buffer_store_dword v15, off, s[8:11], s{SSO}")
        k("s_mov_b64 exec, -1")
        k.label(l1)
        if filler:
            filler()
        k(f"s_cmp_lg_u32 s{S_W}, 1")
        k(f"s_cbranch_scc1 {lab}")
        k("s_mov_b32 s95, 0x40000")
        k(f"s_mov_b64 exec, {(1 << nprod) - 1:#x}")
        k.label(lp)
        k(f"buffer_load_dword v14, v13, s[8:11], s{SPO} offen sc1")
        k("s_waitcnt vmcnt(0)")
        k("v_cmp_ne_u32 vcc, 1, v14")
        k("s_sub_u32 s95, s95, 1")
        k(f"s_cbranch_vccz {lp}_x")
        k(f"s_cbranch_scc0 {lp}")
        k.label(lp + "_x")
        k("s_mov_b64 exec, -1")
        k.label(lab)
    g_qb = lambda: k(f"s_mov_b32 s29, s{S_QB}")
    g_hd = lambda: k(f"s_mov_b32 s29, s{S_HD}")
    g_rb = lambda: k(f"s_mov_b32 s29, s{S_RB}")
    g_cb = lambda: k(f"s_mov_b32 s29, s{S_CB}")
    g_rs2 = lambda: k(f"s_lshr_b32 s29, s{S_RS}, 1")
    def g_sm():
        k(f"s_and_b32 s29, s{S_RS}, 1")
        k("s_lshl_b32 s29, s29, 3")
        k(f"s_add_u32 s29, s29, s{S_CS}")
    def targets(t):
        for i in range(3):
            k(f"s_mov_b32 s{60+i}, {t[i] if i < len(t) else 0}")

    ACC = 32
    def c_layout(p):
        FB = ACC + p.MX * p.NB * 4
        if p.name == "gu":
            XBUF = [FB, FB + 8]; WBUF = [FB + 16, FB + 44]; top = FB + 72
        elif p.name == "qkv":
            XBUF = [FB, FB + 8]; WBUF = [FB + 16, FB + 48]; top = FB + 80
        else:
            XBUF = [FB, FB + 8]; WBUF = [FB + 16, FB + 56]; top = FB + 96
        return FB, XBUF, WBUF, top
    def acc(p, m, j):
        return ACC + (m * p.NB + j) * 4
    def c_units(p):
        FB, XBUF, WBUF, top = c_layout(p)
        U = []
        if p.name == "gu":
            for u in range(4):
                st, h = u >> 1, u & 1
                rd = []
                if h == 0:
                    rd += [(XBUF[st] + 4 * m, 5, st * p.STEP + 1024 * m) for m in range(2)]
                rd += [(WBUF[h] + 4 * j, 6, st * p.STEP + (8 + 7 * h + j) * 1024) for j in range(7)]
                mm = [(acc(p, m, 7 * h + j), WBUF[h] + 4 * j, XBUF[st] + 4 * m) for j in range(7) for m in range(2)]
                U.append((rd, mm))
        elif p.name == "qkv":
            for st in range(2):
                rd = [(XBUF[st] + 4 * m, 5, st * p.STEP + 1024 * m) for m in range(2)]
                rd += [(WBUF[st] + 4 * j, 6, st * p.STEP + (8 + j) * 1024) for j in range(8)]
                mm = [(acc(p, m, j), WBUF[st] + 4 * j, XBUF[st] + 4 * m) for j in range(8) for m in range(2)]
                U.append((rd, mm))
        else:
            for u in range(2):
                rd, mm = [], []
                for s_ in range(2):
                    st = 2 * u + s_
                    rd += [(XBUF[u] + 4 * s_, 5, st * p.STEP)]
                    rd += [(WBUF[u] + 20 * s_ + 4 * j, 6, st * p.STEP + (4 + j) * 1024) for j in range(5)]
                    mm += [(acc(p, 0, j), WBUF[u] + 20 * s_ + 4 * j, XBUF[u] + 4 * s_) for j in range(5)]
                U.append((rd, mm))
        return U
    AXR, AWR = [4, 5, 6, 30], [27, 28, 29, 31]
    def c_addr(p):
        k(f"s_mul_i32 s28, s{S_W}, {p.MX*1024}")
        for i in range(p.R):
            k(f"v_add_u32 v{AWR[i]}, {p.SL[i]:#x}, v3")
            k(f"v_add_u32 v{AXR[i]}, s28, v{AWR[i]}")
    def c_mainloop(p, swap, tag, tail_extra=(), after_b0=None):
        U = c_units(p)
        NUS = len(U)
        def rdi(r, slot, sp=False):
            if sp and r[1] == 5:
                return f"ds_read2st64_b64 {vr(r[0],4)}, v9 offset0:{r[2]//512} offset1:{r[2]//512+1}"
            return f"ds_read_b128 {vr(r[0],4)}, v{(AXR if r[1] == 5 else AWR)[slot]} offset:{r[2]}"
        def special(slot):
            if p.name != "wo":
                return False
            k("v_lshlrev_b32 v9, 3, v1")
            k(f"v_sub_u32 v9, v{AXR[slot]}, v9")
            return True
        extra = list(tail_extra)
        seen = set()
        def run(mm, rd, nex=0, mid=(), z=False):
            rd = list(rd)
            mid = list(mid)
            per = 1 if len(rd) <= len(mm) else 2
            for i, (a, w, x) in enumerate(mm):
                a_, b_ = (w, x) if swap else (x, w)
                c_ = "0" if z and a not in seen else vr(a, 4)
                seen.add(a)
                k(f"{MF} {vr(a,4)}, {vr(a_,4)}, {vr(b_,4)}, {c_}")
                if not rd and mid:
                    k(mid.pop(0))
                for _ in range(per):
                    if rd:
                        k(rd.pop(0))
                for _ in range(nex):
                    if extra:
                        k(extra.pop(0))
            for r in rd + mid:
                k(r)
        R = p.R
        def stage(slot, mid=(), z=False, nex=0, entry=None):
            for u in range(NUS):
                last = u == NUS - 1
                if entry and u == entry[0]:
                    k.label(entry[1])
                k("s_waitcnt lgkmcnt(0)")
                if last:
                    k("s_barrier")
                ns = (slot + 1) % R if last else slot
                run(U[u][1], [rdi(r, ns) for r in U[(u + 1) % NUS][0]], nex, mid if last else (), z)
        c_addr(p)
        nfull = p.nst - 1
        sp = special(0)
        npeel = 1 if p.big else 0
        u0 = NUS * p.skip // p.SPS
        k(f"s_mov_b32 s36, {(nfull - npeel + R - 1) // R}")
        k("s_barrier")
        ts(tag + 1)
        for r in U[u0][0]:
            k(rdi(r, 0, sp))
        if after_b0:
            after_b0()
        if p.name == "wo":
            for st in range(nfull):
                stage(st % R, nex=1 if st else 0)
        else:
            L = k.newlabel()
            if npeel:
                stage(0, (), True)
            p0 = (R - (nfull - npeel) % R) % R
            if p0 or u0:
                k(f"s_branch {L}_mid")
            k(".p2align 4")
            k.label(L)
            for pos in range(R):
                stage((npeel + pos - p0) % R, ["s_sub_u32 s36, s36, 1", "s_cmp_lg_u32 s36, 0"] if pos == R - 1 else (),
                      entry=(u0, L + "_mid") if pos == p0 and (p0 or u0) else None)
            k(f"s_cbranch_scc1 {L}")
        sl = nfull % R
        nt = NUS
        nm_ = sum(len(U[u][1]) for u in range(nt))
        nex = (len(extra) + nm_ - 1) // nm_
        for u in range(nt):
            sp = special(sl) if u < nt - 1 else False
            k("s_waitcnt lgkmcnt(0)")
            run(U[u][1], [rdi(r, sl, sp) for r in U[u + 1][0]] if u < nt - 1 else [], nex)
        assert not extra
        k.nop(3)
        ts(tag + 2)

    EXT = 216
    STR = 248
    def ext_reg(p, j):
        return EXT + 2 * j
    def c_ext_loads(p):
        npl = 2
        k(f"s_mul_i32 s28, s{S_CB}, {p.NB*p.WS}")
        k(f"s_add_u32 s28, s28, {p.wsrc + p.nsteps*1024:#x}")
        c, msk = DUMMY[p.name]
        k(f"s_cmp_eq_u32 s{S_CB}, {c}")
        k(f"s_cselect_b32 s30, 0, {p.WS}")
        k(f"v_lshlrev_b32 v9, {3 if npl == 2 else 4}, v1")
        for j in range(p.NB):
            if (msk >> j) & 1:
                k(f"s_mul_i32 s29, s30, {j}")
                k("s_add_u32 s29, s29, s28")
            else:
                k(f"s_add_u32 s29, s28, {j*p.WS}")
            k(f"buffer_load_dwordx{npl} {vr(ext_reg(p,j),npl)}, v9, s[8:11], s29 offen")
    def c_ext_build(p, k=k):
        for j in range(p.NB):
            r = ext_reg(p, j)
            k(f"v_add_f32 v10, v{r}, v{r+1}")
            k("v_cvt_pk_bf16_f32 v11, v10, v10")
            k("v_and_b32 v11, 0xffff0000, v11")
            k("v_sub_f32 v11, v10, v11")
            k(f"v_cvt_pk_bf16_f32 v{r}, v10, v11")
            k(f"v_cvt_pk_bf16_f32 v{r+1}, v10, v11")
    def c_zero_acc(p):
        for i in range(0, p.MX * p.NB * 4, 2):
            k(f"v_mov_b64 {vr(ACC+i,2)}, 0")
    def c_stats_loads(stats):
        T = STR
        k("v_lshlrev_b32 v9, 15, v8")
        k("v_lshl_add_u32 v9, v7, 3, v9")
        k(f"s_lshl_b32 s28, s{S_RB}, 2")
        k(f"s_add_u32 s28, s28, s{S_W}")
        k("s_lshl_b32 s28, s28, 8")
        k(f"s_add_u32 s28, s28, {stats:#x}")
        k("s_add_u32 s29, s28, 16384")
        for m in range(2):
            k(f"buffer_load_dwordx2 {vr(T+4*m,2)}, v9, s[8:11], s28 offen offset:{128*m} {LSC}")
            k(f"buffer_load_dwordx2 {vr(T+4*m+2,2)}, v9, s[8:11], s29 offen offset:{128*m} {LSC}")
    def c_stats_valu(wait=True):
        T = STR
        L = ["s_waitcnt vmcnt(0)"] if wait else []
        add = [f"v_add_f32 v{T+4*m+i}, v{T+4*m+i}, v{T+4*m+2+i}" for m in range(2) for i in range(2)]
        L += add
        for sw in ("v_permlane32_swap_b32", "v_permlane16_swap_b32"):
            L += [f"v_mov_b32 v{T+4*m+2+i}, v{T+4*m+i}" for m in range(2) for i in range(2)]
            L += ["s_nop 1"]
            L += [f"{sw} v{T+4*m+i}, v{T+4*m+2+i}" for m in range(2) for i in range(2)]
            L += ["s_nop 0"]
            L += add
        for m in range(2):
            t = T + 4 * m
            L += [f"v_mul_f32 v{t}, {f2u(-1.0/640):#x}, v{t}",
                  f"v_mul_f32 v{t+1}, {f2u(1.0/640):#x}, v{t+1}",
                  f"v_cvt_pk_bf16_f32 v{t+2}, v{t}, v{t}",
                  f"v_fma_f32 v{t+1}, -v{t}, v{t}, v{t+1}",
                  f"v_and_b32 v{t+3}, 0xffff0000, v{t+2}",
                  f"v_max_f32 v{t+1}, 0, v{t+1}",
                  f"v_sub_f32 v{t+3}, v{t}, v{t+3}",
                  f"v_add_f32 v{t+1}, {f2u(1e-5):#x}, v{t+1}",
                  f"v_cvt_pk_bf16_f32 v{t+3}, v{t+3}, v{t+3}",
                  f"v_rsq_f32 v{10+m}, v{t+1}"]
        return L
    def ext_mfma(p, j, swap):
        for m in range(2):
            x, r = STR + 4 * m + 2, ext_reg(p, j)
            a_, b_ = (r, x) if swap else (x, r)
            k(f"v_mfma_f32_16x16x16_bf16 {vr(acc(p,m,j),4)}, {vr(a_,2)}, {vr(b_,2)}, {vr(acc(p,m,j),4)}")

    def c_res_to_acc():
        for i in range(10):
            k(f"v_lshlrev_b32 v{ACC+2*i}, 16, v{RES+i}")
            k(f"v_and_b32 v{ACC+2*i+1}, 0xffff0000, v{RES+i}")

    def c_small_pre(xdst, sdst, layadd):
        small_addr()
        k("v_mov_b32 v14, v9")
        k(f"s_mov_b32 s29, {xdst:#x}")
        k("s_add_u32 s30, s30, s29")
        k("s_add_u32 s31, s31, s29")
        k("v_lshlrev_b32 v26, 3, v7")
        k(f"s_lshl_b32 s29, s{S_CS}, 14")
        k("s_lshl_b32 s28, s28, 7")
        k("s_add_u32 s29, s29, s28")
        k(f"s_add_u32 s29, s29, {sdst:#x}")
    def c_small_touch():
        if not TOUCH & 4:
            return
        k("buffer_load_dwordx4 v[200:203], v3, s[8:11], s30 offen sc1")
        k("buffer_load_dwordx4 v[200:203], v3, s[8:11], s30 offen offset:1024 sc1")
        k("buffer_load_dwordx4 v[200:203], v14, s[8:11], s31 offen sc1")
        k("buffer_load_dwordx2 v[200:201], v26, s[8:11], s29 offen sc1")
    def c_small_epilogue():
        T = 56
        for i in range(4):
            k(f"v_cvt_pk_bf16_f32 v{RES+i}, v{ACC+2*i}, v{ACC+2*i+1}")
        k(f"buffer_store_dwordx4 {vr(RES,4)}, v3, s[8:11], s30 offen {XSC}")
        for i in (8, 9):
            k(f"v_cvt_pk_bf16_f32 v{RES+i}, v{ACC+2*i}, v{ACC+2*i+1}")
            k(f"v_cvt_pk_bf16_f32 v{T+i-8}, v{ACC+2*i}, v{ACC+2*i+1}")
            k(f"v_cvt_pk_bf16_f32 v{T+i-6}, v{ACC+2*i}, v{ACC+2*i+1}")
        for i in range(4, 8):
            k(f"v_cvt_pk_bf16_f32 v{RES+i}, v{ACC+2*i}, v{ACC+2*i+1}")
        k(f"buffer_store_dwordx4 {vr(RES+4,4)}, v3, s[8:11], s30 offen offset:1024 {XSC}")
        k(f"v_permlane16_swap_b32 v{T}, v{T+2}")
        k(f"v_permlane16_swap_b32 v{T+1}, v{T+3}")
        k("s_mov_b32 exec_lo, 0xffff")
        k("s_mov_b32 exec_hi, 0xffff")
        k(f"buffer_store_dwordx4 {vr(T,4)}, v14, s[8:11], s31 offen {XSC}")
        k("s_mov_b64 exec, -1")
        k(f"v_pk_add_f32 v[10:11], {vr(ACC,2)}, {vr(ACC+2,2)}")
        k(f"v_pk_mul_f32 v[12:13], {vr(ACC,2)}, {vr(ACC,2)}")
        for i in range(2, 20, 2):
            if i >= 4:
                k(f"v_pk_add_f32 v[10:11], v[10:11], {vr(ACC+i,2)}")
            k(f"v_pk_fma_f32 v[12:13], {vr(ACC+i,2)}, {vr(ACC+i,2)}, v[12:13]")
        k("v_add_f32 v10, v10, v11")
        k("v_add_f32 v11, v12, v13")
        for sw in ("v_permlane32_swap_b32", "v_permlane16_swap_b32"):
            k("v_mov_b32 v12, v10")
            k("v_mov_b32 v13, v11")
            k("s_nop 1")
            k(f"{sw} v10, v12")
            k(f"{sw} v11, v13")
            k("s_nop 0")
            k("v_pk_add_f32 v[10:11], v[10:11], v[12:13]")
        k("s_mov_b64 exec, 0xffff")
        k(f"buffer_store_dwordx2 v[10:11], v26, s[8:11], s29 offen {XSC}")
        k("s_mov_b64 exec, -1")
        k("s_nop 1")

    def sig_rows_big():
        k(f"s_lshr_b32 s28, s{S_RS}, 1")
        k("s_lshl_b32 s28, s28, 13")
        k("v_lshl_add_u32 v12, v1, 9, s28")
        k(f"s_mov_b64 s[{SSIG}:{SSIG+1}], 0xffff")
    def idx_big():
        k(f"s_lshl_b32 s28, s{S_RB}, 4")
        k(f"s_add_u32 s28, s28, s{S_CB}")
    def idx_small():
        k(f"s_lshl_b32 s28, s{S_RS}, 3")
        k(f"s_add_u32 s28, s28, s{S_CS}")

    def c_raw(swap, tail, join):
        p = PH["qkv"]
        FB, XBUF, WBUF, top = c_layout(p)
        AW, AXx, AC = 192, 200, 202
        CB_, ONE, CS, SX, GR = [232, 240], 204, 208, 216, 224
        k("v_and_b32 v4, 3, v1")
        k("v_bfe_u32 v5, v1, 2, 2")
        k("v_lshlrev_b32 v6, 1, v5")
        k("v_and_b32 v27, 1, v8")
        k("v_lshl_add_u32 v6, v27, 3, v6")
        k("v_lshl_add_u32 v5, v8, 3, v5")
        k("v_lshlrev_b32 v5, 8, v5")
        k("v_add_u32 v5, 0x4000, v5")
        if swap:
            k("v_lshrrev_b32 v27, 1, v4")
            k("v_mul_u32_u24 v27, 40, v27")
            k("v_and_b32 v28, 1, v4")
            k("v_lshl_add_u32 v27, v28, 4, v27")
            k("v_mul_u32_u24 v28, 40, v4")
            k("v_and_b32 v29, 1, v4")
            k("v_mul_u32_u24 v29, 40, v29")
            src = [(27, 80 * (b >> 1) + 8 * (b & 1)) for b in range(6)] + [(28, 32), (29, 192)]
        else:
            k("v_lshlrev_b32 v27, 3, v4")
            src = [(27, 32 * b) for b in range(8)]
        for b, (rg, off) in enumerate(src):
            k(f"v_add_u32 v30, {off}, v{rg}")
            k("v_lshrrev_b32 v31, 4, v30")
            k("v_xor_b32 v31, v31, v6")
            k("v_and_b32 v30, 8, v30")
            k("v_lshl_add_u32 v30, v31, 4, v30")
            k(f"v_add_u32 v{AW+b}, v30, v5")
        for i in range(2):
            k(f"v_mov_b32 v{AC+i}, v{AW+i}")
            for w_ in range(1, 4):
                k(f"s_cmp_eq_u32 s{S_W}, {w_}")
                k("s_cselect_b64 vcc, -1, 0")
                k(f"v_cndmask_b32 v{AC+i}, v{AC+i}, v{AW+2*w_+i}, vcc")
        k("v_lshrrev_b32 v4, 1, v7")
        k("v_xor_b32 v4, v4, v8")
        k("v_lshlrev_b32 v4, 4, v4")
        k("v_lshl_add_u32 v4, v7, 7, v4")
        k(f"s_lshl_b32 s28, s{S_W}, 12")
        k(f"v_add_u32 v{AXx}, s28, v4")
        k(f"v_xor_b32 v{AXx+1}, 64, v{AXx}")
        for i in range(4):
            k(f"v_mov_b32 v{ONE+i}, 0x3f803f80")
        for i in list(range(ACC, ACC + 64, 2)) + list(range(CS, CS + 24, 2)):
            k(f"v_mov_b64 {vr(i,2)}, 0")
        def reads(u):
            so, st = (u >> 1) * 32768, u & 1
            r = [f"ds_read_b128 {vr(XBUF[st]+4*m,4)}, v{AXx+st} offset:{so + 2048*m}" for m in range(2)]
            for b in range(8):
                for h in range(2):
                    r.append(f"ds_read_b64_tr_b16 {vr(WBUF[st]+4*b+2*h,2)}, v{AW+b} offset:{so + 8192*st + 1024*h}")
            for i in range(2):
                for h in range(2):
                    r.append(f"ds_read_b64_tr_b16 {vr(CB_[st]+4*i+2*h,2)}, v{AC+i} offset:{so + 8192*st + 1024*h}")
            return r
        def mfmas(st):
            mm = []
            for j in range(8):
                for m in range(2):
                    w_, x_ = WBUF[st] + 4 * j, XBUF[st] + 4 * m
                    a_, b_ = (w_, x_) if swap else (x_, w_)
                    mm.append((acc(p, m, j), a_, b_))
            for m in range(2):
                mm.append((SX + 4 * m, ONE, XBUF[st] + 4 * m))
                mm.append((GR + 4 * m, XBUF[st] + 4 * m, XBUF[st] + 4 * m))
                mm.append((CS + 4 * m, ONE, CB_[st] + 4 * m))
            return [f"{MF} {vr(a,4)}, {vr(x,4)}, {vr(y,4)}, {vr(a,4)}" for a, x, y in mm]
        tog = [f"v_xor_b32 v{r}, 0x10000, v{r}" for r in range(AW, AW + 12)]
        def unit(u, nxt, pre=()):
            for x in pre:
                k(x)
            k("s_waitcnt lgkmcnt(0)")
            if u & 1 and nxt is not None:
                k("s_barrier")
            rd = reads(nxt) if nxt is not None else []
            for m_ in mfmas(u & 1):
                k(m_)
                for _ in range(2):
                    if rd:
                        k(rd.pop(0))
        k("s_mov_b32 s36, 4")
        k("s_barrier")
        ts(1)
        for x in reads(0):
            k(x)
        L = k.newlabel()
        k.label(L)
        touch()
        unit(0, 1)
        unit(1, 2)
        if TGAP:
            touch()
        unit(2, 3)
        unit(3, 0, tog + ["s_sub_u32 s36, s36, 1", "s_cmp_lg_u32 s36, 0"])
        k(f"s_cbranch_scc1 {L}")
        unit(0, 1)
        unit(1, 2)
        unit(2, 3)
        unit(3, None)
        k(f"s_lshl_b32 s28, s{S_W}, 10")
        k(f"s_add_u32 s28, s28, {140*1024}")
        k("v_lshl_add_u32 v4, v1, 3, s28")
        k(f"v_mov_b32 v5, {140*1024:#x}")
        k("v_lshl_add_u32 v5, v1, 3, v5")
        k("v_lshrrev_b32 v6, 2, v7")
        k("v_and_b32 v27, 3, v7")
        k("v_cmp_eq_u32 s[56:57], v6, v8")
        k("v_cmp_eq_u32 s[58:59], 0, v8")
        k("s_nop 1")
        for i in range(2):
            c = CS + 4 * i
            k(f"v_cndmask_b32 v{c}, 0, v{c}, s[58:59]")
            k(f"v_cvt_pk_bf16_f32 v{c+1}, v{c}, v{c}")
            k(f"v_and_b32 v{c+1}, 0xffff0000, v{c+1}")
            k(f"v_sub_f32 v{c+1}, v{c}, v{c+1}")
            k(f"v_cvt_pk_bf16_f32 v{c+2}, v{c}, v{c+1}")
            k(f"v_cvt_pk_bf16_f32 v{c+3}, v{c}, v{c+1}")
            k(f"ds_write_b64 v4, {vr(c+2,2)} offset:{512*i}")
        for m in range(2):
            t, g_ = STR + 4 * m, GR + 4 * m
            for i in range(1, 4):
                k(f"v_cmp_eq_u32 vcc, {i}, v27")
                k("s_nop 1")
                k(f"v_cndmask_b32 v{g_}, v{g_}, v{g_+i}, vcc")
            k(f"v_cndmask_b32 v{t}, 0, v{SX+4*m}, s[58:59]")
            k(f"v_cndmask_b32 v{t+1}, 0, v{g_}, s[56:57]")
            k(f"v_mov_b64 {vr(t+2,2)}, 0")
        k("s_waitcnt lgkmcnt(0)")
        k("s_barrier")
        for j in range(8):
            k(f"ds_read_b64 {vr(ext_reg(p,j),2)}, v5 offset:{512*j}")
        lab = k.newlabel()
        k("v_lshlrev_b32 v198, 5, v1")
        k(f"s_cmp_lg_u32 s{S_W}, 3")
        k(f"s_cbranch_scc1 {lab}")
        k("s_mov_b64 exec, 0xff")
        k("buffer_load_dword v199, v198, s[76:79], 0 offen sc1")
        k("s_mov_b64 exec, -1")
        k.label(lab)
        for x in tail:
            k(x)
        k("s_waitcnt lgkmcnt(0)")
        ts(2)
        k(f"s_branch {join}")

    def scale_pack(a, o, r):
        rr = vr(r & ~1, 2)
        k(f"v_pk_mul_f32 {vr(a,2)}, {vr(a,2)}, {rr} op_sel:[0,{r&1}] op_sel_hi:[1,{r&1}]")
        k(f"v_pk_mul_f32 {vr(a+2,2)}, {vr(a+2,2)}, {rr} op_sel:[0,{r&1}] op_sel_hi:[1,{r&1}]")
        k(f"v_cvt_pk_bf16_f32 v{o}, v{a}, v{a+1}")
        k(f"v_cvt_pk_bf16_f32 v{o+1}, v{a+2}, v{a+3}")
    p = PH["qkv"]
    FB, XBUF, WBUF, top_qkv = c_layout(p)
    def touch():
        lab = k.newlabel()
        k("s_cmp_eq_u32 s39, 0")
        k(f"s_cbranch_scc1 {lab}")
        k("s_mov_b64 exec, s[84:85]")
        k("buffer_load_dword v16, v17, s[80:83], s37 offen")
        k("s_mov_b64 exec, -1")
        k("s_add_u32 s37, s37, s38")
        k("s_sub_u32 s39, s39, 1")
        k.label(lab)
    k("s_lshr_b32 s28, s2, 3")
    k("v_and_b32 v9, 31, v1")
    k("v_mul_u32_u24 v9, 1280, v9")
    k("v_lshrrev_b32 v10, 5, v1")
    k("v_lshl_add_u32 v9, v10, 7, v9")
    k("s_and_b32 s29, s2, 1")
    k("s_lshl_b32 s29, s29, 5")
    k("s_add_u32 s29, s29, s28")
    k(f"s_mul_i32 s29, s29, {32*1280}")
    k("v_mul_u32_u24 v10, 7282, v1")
    k("v_lshrrev_b32 v10, 16, v10")
    k("v_mul_u32_u24 v11, 9, v10")
    k("v_sub_u32 v11, v1, v11")
    k("v_mul_u32_u24 v10, 3840, v10")
    k("v_lshl_add_u32 v10, v11, 7, v10")
    k(f"s_lshr_b32 s30, s{S_CB}, 2")
    k("s_mul_i32 s30, s30, 896")
    k(f"s_mul_i32 s28, s28, {4*3840}")
    k("s_add_u32 s30, s30, s28")
    k(f"s_mov_b32 s31, {128*3840}")
    k(f"s_cmp_eq_u32 s{S_W}, 0")
    k("s_cselect_b64 s[80:81], s[68:69], s[72:73]")
    k("s_cselect_b32 s82, s70, s74")
    k("s_mov_b32 s83, 0x00020000")
    k("s_cselect_b32 s37, s29, s30")
    k("s_cselect_b32 s38, 256, s31")
    k("s_mov_b32 s84, -1")
    k("s_cselect_b32 s85, -1, 15")
    k("s_cselect_b64 vcc, -1, 0")
    k("v_cndmask_b32 v17, v10, v9, vcc")
    k(f"s_mul_i32 s28, s38, {NT0}")
    k("s_add_u32 s37, s37, s28")
    k(f"s_cmp_lt_u32 s{S_W}, 2")
    k(f"s_cselect_b32 s39, {5 - NT0}, 0")
    for _ in range(NT1):
        touch()
    k(f"s_cmp_lg_u32 s{S_W}, 3")
    k("s_cbranch_scc1 L_c_layer2")
    k("v_mov_b64 v[10:11], 0")
    k("v_lshlrev_b32 v9, 3, v1")
    k("s_lshl_b32 s28, s2, 9")
    k(f"s_add_u32 s28, s28, {CNT:#x}")
    k(f"buffer_store_dwordx2 v[10:11], v9, s[8:11], s28 offen {SC}")
    k("s_getreg_b32 s46, hwreg(HW_REG_XCC_ID)")
    k("s_and_b32 s46, s46, 7")
    k("s_lshl_b32 s28, s46, 5")
    k("v_mov_b32 v2, 1")
    k("s_waitcnt vmcnt(0)")
    k("s_mov_b64 exec, 1")
    k("buffer_atomic_add v2, off, s[76:79], s28 sc0 sc1")
    k("s_mov_b64 exec, -1")
    k("s_branch L_c_layer2")
    k.label("L_c_layer")
    k("s_barrier")
    c_stats_loads(STA)
    k.label("L_c_layer2")
    ts(0)
    k(f"s_cmp_ge_u32 s{S_CB}, 11")
    k("s_cbranch_scc1 L_c_v")
    k("v_and_b32 v9, 7, v7")
    k("v_lshrrev_b32 v12, 3, v7")
    k("v_lshl_add_u32 v9, v12, 4, v9")
    k("v_lshrrev_b32 v12, 1, v8")
    k(f"v_mul_u32_u24 v12, {UNIT}, v12")
    k("v_and_b32 v13, 1, v8")
    k("v_lshl_add_u32 v12, v13, 9, v12")
    k("v_lshl_add_u32 v12, v9, 4, v12")
    k(f"v_mul_u32_u24 v13, {UNIT}, v8")
    k("v_lshl_add_u32 v13, v7, 4, v13")
    k(f"s_mul_i32 s28, s{S_CB}, {6*UNIT}")
    k(f"s_mul_i32 s29, s{S_RB}, 10240")
    k("s_add_u32 s28, s28, s29")
    k(f"s_add_u32 s28, s28, s{S_LAY}")
    k(f"s_add_u32 s28, s28, {QKVI:#x}")
    k(f"s_lshl_b32 s29, s{S_W}, 10")
    k("s_add_u32 s30, s28, s29")
    k(f"s_and_b32 s29, s{S_W}, 1")
    k("s_lshl_b32 s29, s29, 9")
    k("s_add_u32 s31, s28, s29")
    k(f"s_lshr_b32 s29, s{S_W}, 1")
    k("s_lshl_b32 s29, s29, 8")
    k("s_add_u32 s31, s31, s29")
    k("s_add_u32 s31, s31, 4096")
    k(f"s_add_u32 s29, s31, {4*UNIT}")
    QKT = ["s_nop 0", f"v_mul_f32 v10, {f2u(SQRTC):#x}, v10", f"v_mul_f32 v11, {f2u(SQRTC):#x}, v11"]
    k(f"s_cmp_eq_u32 s{S_LAY}, 0")
    k("s_cbranch_scc1 L_raw_qk")
    c_mainloop(p, True, 0, c_stats_valu() + QKT)
    k.label("L_join_qk")
    for j in (0, 1, 2, 3, 6):
        ext_mfma(p, j, True)
    for b in range(3):
        if b == 2:
            for m in range(2):
                scale_pack(acc(p, m, 6), FB + 24 + 2 * m, 10 + m)
            k(f"buffer_store_dwordx4 {vr(FB+24,4)}, v13, s[8:11], s31 offen {SC}")
            k(f"s_cmp_eq_u32 s{S_CB}, 10")
            k("s_cbranch_scc1 L_c_qk_skip")
        for m in range(2):
            o = FB + 8 * b + 4 * m
            scale_pack(acc(p, m, 2 * b), o, 10 + m)
            scale_pack(acc(p, m, 2 * b + 1), o + 2, 10 + m)
            k(f"buffer_store_dwordx4 {vr(o,4)}, v12, s[8:11], s30 offen offset:{128*m} {SC}")
            if b == 0:
                for j in ((4, 5), (7,))[m]:
                    ext_mfma(p, j, True)
        k(f"s_add_u32 s30, s30, {2*UNIT}")
    for m in range(2):
        scale_pack(acc(p, m, 7), FB + 28 + 2 * m, 10 + m)
    k("s_mov_b64 exec, 0xffffffff")
    k(f"buffer_store_dwordx4 {vr(FB+28,4)}, v13, s[8:11], s29 offen {SC}")
    k("s_mov_b64 exec, -1")
    k.label("L_c_qk_skip")
    k("v_lshrrev_b32 v9, 3, v1")
    k("v_and_b32 v10, 7, v1")
    k(f"s_mul_i32 s28, s{S_CB}, 6")
    k("v_add_u32 v14, s28, v9")
    k("v_and_b32 v12, 31, v14")
    k("v_lshl_add_u32 v12, v12, 3, v10")
    k("v_lshlrev_b32 v12, 9, v12")
    k(f"s_lshr_b32 s28, s{S_RB}, 1")
    k("v_cmp_eq_u32 s[30:31], s28, v10")
    k("v_cmp_le_u32 vcc, 32, v14")
    k("s_or_b64 s[30:31], s[30:31], vcc")
    k("v_cmp_gt_u32 vcc, 64, v14")
    k("s_and_b64 s[30:31], s[30:31], vcc")
    k("v_cmp_gt_u32 vcc, 6, v9")
    k(f"s_and_b64 s[{SSIG}:{SSIG+1}], s[30:31], vcc")
    k("s_branch L_c_attn")

    k.label("L_c_v")
    RSV = top_qkv
    VAD = RSV + 8
    k(f"s_mul_i32 s30, s{S_RB}, 10240")
    k(f"s_mul_i32 s29, s{S_W}, 1280")
    k("s_add_u32 s30, s30, s29")
    k(f"s_add_u32 s30, s30, s{S_LAY}")
    k(f"s_add_u32 s30, s30, {QKVI + 32*UNIT + 5120:#x}")
    k(f"s_sub_u32 s29, s{S_CB}, 11")
    k("s_lshl_b32 s29, s29, 7")
    k("v_mul_u32_u24 v9, 320, v8")
    k("v_add_u32 v10, s29, v7")
    for j in range(8):
        k("v_mul_u32_u24 v12, 3277, v10")
        k("v_lshrrev_b32 v12, 16, v12")
        k(f"v_mul_u32_u24 v13, {UNIT-320}, v12")
        k("v_lshl_add_u32 v13, v10, 4, v13")
        k(f"v_add_u32 v{VAD+j}, v13, v9")
        k("v_add_u32 v10, 16, v10")
    k(f"s_lshl_b32 s28, s{S_W}, 7")
    k(f"s_add_u32 s28, s28, {SCRATCH}")
    k("v_lshl_add_u32 v12, v7, 2, s28")
    k("v_lshl_add_u32 v13, v8, 4, s28")
    VT = ["s_nop 0", "ds_write_b32 v12, v10", "ds_write_b32 v12, v11 offset:64"]
    k(f"s_cmp_eq_u32 s{S_LAY}, 0")
    k("s_cbranch_scc1 L_raw_v")
    c_mainloop(p, False, 0, c_stats_valu() + VT)
    k.label("L_join_v")
    k("s_waitcnt lgkmcnt(0)")
    k(f"ds_read_b128 {vr(RSV,4)}, v13")
    k(f"ds_read_b128 {vr(RSV+4,4)}, v13 offset:64")
    for j in range(8):
        ext_mfma(p, j, False)
    k("s_waitcnt lgkmcnt(0)")
    for j in range(8):
        o = FB + 4 * j
        for m in range(2):
            a = acc(p, m, j)
            k(f"v_pk_mul_f32 {vr(a,2)}, {vr(a,2)}, {vr(RSV+4*m,2)}")
            k(f"v_pk_mul_f32 {vr(a+2,2)}, {vr(a+2,2)}, {vr(RSV+4*m+2,2)}")
            k(f"v_cvt_pk_bf16_f32 v{o+2*m}, v{a}, v{a+1}")
            k(f"v_cvt_pk_bf16_f32 v{o+2*m+1}, v{a+2}, v{a+3}")
        k(f"buffer_store_dwordx4 {vr(o,4)}, v{VAD+j}, s[8:11], s30 offen {SC}")
    k(f"s_sub_u32 s28, s{S_CB}, 11")
    k("s_lshl_b32 s30, s28, 7")
    k("s_mul_i32 s31, s30, 3277")
    k("s_lshr_b32 s31, s31, 16")
    k("s_add_u32 s30, s30, 127")
    k("s_mul_i32 s30, s30, 3277")
    k("s_lshr_b32 s30, s30, 16")
    k("s_and_b32 s28, s28, 1")
    k("s_lshl_b32 s28, s28, 7")
    k("s_add_u32 s28, s28, 128")
    k("s_lshl_b32 s29, s31, 12")
    k("s_add_u32 s28, s28, s29")
    k("v_lshl_add_u32 v12, v1, 9, s28")
    k("v_lshrrev_b32 v9, 3, v1")
    k("v_add_u32 v9, s31, v9")
    k(f"v_cmp_ge_u32 s[{SSIG}:{SSIG+1}], s30, v9")

    k.label("L_c_attn")
    M16 = "v_mfma_f32_32x32x16_bf16"
    M8 = "v_mfma_f32_32x32x8_bf16"
    QL = [32, 36]; QHA = [40, 42]; QHB = [44, 46]
    S = [48, 64]; O = [80, 96]; NM = [112, 128]; P = 144
    KL = [152, 156]; KH = 160; V = [164, 172]
    A3, A4, A5, A6, A7, A8 = 26, 27, 28, 29, 30, 31
    VS1, VS2, VA0 = 180, 181, 182
    SUP, SPASS, SSEG, SSTR = 48, 50, 51, 52
    def idx_attn():
        k(f"s_mul_i32 s28, s{S_HD}, 20")
        k("s_add_u32 s29, s28, 19")
        k("s_lshr_b32 s28, s28, 7")
        k("s_lshr_b32 s29, s29, 7")
        k("s_and_b32 s30, s28, s29")
        k("s_or_b32 s31, s28, s29")
        k("s_and_b32 s30, s30, 1")
        k("s_xor_b32 s30, s30, 1")
        k("s_lshl_b32 s30, s30, 4")
        k("s_and_b32 s31, s31, 1")
        k("s_lshl_b32 s31, s31, 4")
        targets([18, "s30", "s31"])
        k(f"s_lshl_b32 s28, s{S_HD}, 3")
        k(f"s_add_u32 s28, s28, s{S_QB}")
    k(f"v_mov_b32 v{A3}, v3")
    k(f"v_and_b32 v{A6}, 31, v1")
    k(f"v_lshrrev_b32 v{A7}, 5, v1")
    k("v_and_b32 v9, 7, v1")
    k(f"v_lshlrev_b32 v{A8}, 4, v9")
    k("v_bfe_u32 v9, v1, 4, 1")
    k(f"v_lshl_add_u32 v{A8}, v9, 7, v{A8}")
    k("v_and_b32 v9, 8, v1")
    k(f"v_add_u32 v{A8}, v{A8}, v9")
    k(f"v_lshl_add_u32 v{A4}, v{A7}, 8, v{A8}")
    k(f"v_cmp_gt_u32 s[30:31], 28, v{A6}")
    k("s_mov_b32 s28, 0xfff00000")
    k("s_mov_b32 s29, 0xfff00000")
    k(f"v_mul_u32_u24 v9, 192, v{A7}")
    k("v_sub_u32 v9, 192, v9")
    k("v_mov_b32 v10, 144")
    k("v_cndmask_b32 v9, v9, v10, s[30:31]")
    k("s_mov_b32 s30, 0x01100000")
    k("s_mov_b32 s31, 0x01100000")
    k("v_mov_b32 v10, 128")
    k("v_cndmask_b32 v9, v9, v10, s[30:31]")
    k(f"v_mul_u32_u24 v{VA0}, 320, v{A7}")
    k(f"v_lshl_add_u32 v{VA0}, v{A6}, 4, v{VA0}")
    k(f"v_add_u32 v{VA0}, 5120, v{VA0}")
    k(f"v_cndmask_b32 v{VA0}, v{VA0}, v9, s[28:29]")
    k("v_mov_b32 v9, 1280")
    k(f"v_cndmask_b32 v{VS1}, v9, 0, s[28:29]")
    k("v_mov_b32 v9, 6400")
    k(f"v_cndmask_b32 v{VS2}, v9, 0, s[28:29]")
    k(f"s_mov_b32 s{SUP}, 0")
    k(f"s_mov_b32 s{SUP+1}, -1")
    k(f"s_mov_b32 s{SPASS}, 0")
    k(f"s_movk_i32 s{SSTR}, 10240")
    ts(3)
    k(f"s_add_u32 s{SSO}, s{S_SEAM}, {CNT:#x}")
    def attn_dep():
        lab = k.newlabel()
        k(f"s_cmp_lg_u32 s{S_LAY}, 0")
        k(f"s_cbranch_scc1 {lab}")
        get_coords()
        res_load()
        k.label(lab)
        seam_pre(0, idx_attn)
        k(f"s_mul_i32 s28, s{S_HD}, {UNIT}")
        k(f"s_add_u32 s28, s28, s{S_LAY}")
        k(f"s_add_u32 s39, s28, {QKVI + 32*UNIT:#x}")
        k("s_add_u32 s38, s39, 4096")
        k(f"s_lshl_b32 s29, s{S_QB}, 1")
        k(f"s_lshr_b32 s30, s{S_W}, 1")
        k("s_add_u32 s29, s29, s30")
        k("s_mul_i32 s29, s29, 10240")
        k("s_add_u32 s28, s28, s29")
        k(f"s_add_u32 s28, s28, {QKVI:#x}")
        k(f"s_and_b32 s30, s{S_W}, 1")
        k("s_lshl_b32 s29, s30, 11")
        k("s_add_u32 s29, s29, s28")
        k("s_lshl_b32 s30, s30, 8")
        k("s_add_u32 s30, s30, s28")
        k("s_add_u32 s30, s30, 4096")
    def zero_o():
        for i in range(0, 32, 2):
            k(f"v_mov_b64 {vr(O[0]+i,2)}, 0")
        for i in (0, 2):
            k(f"v_mov_b64 {vr(P+4+i,2)}, 0")
            k(f"v_mov_b64 {vr(V[1]+4+i,2)}, 0")
    def k0_loads():
        k(f"buffer_load_dwordx4 {vr(KL[0],4)}, v3, s[8:11], s39 offen {LSC}")
        k(f"buffer_load_dwordx2 {vr(KH,2)}, v{A4}, s[8:11], s38 offen {LSC}")
    zero_o()
    k("s_waitcnt vmcnt(0)")
    k(f"s_xor_b32 s28, s{S_W}, 3")
    k(f"s_or_b32 s28, s28, s{S_LAY}")
    k("s_cbranch_scc1 L_c_tkdone")
    k("v_lshlrev_b32 v198, 5, v1")
    k("s_mov_b32 s29, 0x40000")
    k("s_mov_b64 exec, 0xff")
    k.label("L_c_tkl")
    k("s_mov_b32 s30, 0")
    for i in range(8):
        k(f"v_readlane_b32 s31, v199, {i}")
        k("s_add_u32 s30, s30, s31")
    k("s_cmp_eq_u32 s30, 256")
    k("s_cbranch_scc1 L_c_tkx")
    k("s_sub_u32 s29, s29, 1")
    k("s_cbranch_scc1 L_c_tkx")
    k("buffer_load_dword v199, v198, s[76:79], 0 offen sc1")
    k("s_waitcnt vmcnt(0)")
    k("s_branch L_c_tkl")
    k.label("L_c_tkx")
    k("v_cmp_ne_u32 vcc, 32, v199")
    k("v_readfirstlane_b32 s30, v2")
    k("s_lshl_b32 s31, s46, 5")
    k("s_add_u32 s30, s30, s31")
    k("s_add_u32 s30, s30, 256")
    k("s_and_b32 s28, s2, 7")
    k("s_lshl_b32 s28, s28, 5")
    k("s_lshr_b32 s29, s2, 3")
    k("s_add_u32 s28, s28, s29")
    if FORCE_SLOW:
        k("s_mov_b32 s28, s2")
        k("s_mov_b64 vcc, 1")
    k("s_cmp_eq_u64 vcc, 0")
    k("s_cselect_b32 s28, s30, s28")
    k("s_mov_b64 exec, -1")
    k("v_mov_b32 v198, s28")
    k(f"v_mov_b32 v199, {SCRATCH + 1024:#x}")
    k("ds_write_b32 v199, v198")
    k("s_waitcnt lgkmcnt(0)")
    k.label("L_c_tkdone")
    k("s_barrier")
    ts(4)
    seam_post(filler=attn_dep)
    k("s_barrier")
    ts(8)
    k0_loads()
    for q in range(2):
        k(f"buffer_load_dwordx4 {vr(QL[q],4)}, v3, s[8:11], s29 offen offset:{1024*q} {LSC}")
        k(f"buffer_load_dwordx2 {vr(QHA[q],2)}, v{A8}, s[8:11], s30 offen offset:{512*q} {LSC}")
    k("s_waitcnt vmcnt(0)")
    for q in range(2):
        for i in range(2):
            k(f"v_cndmask_b32 v{QHB[q]+i}, 0, v{QHA[q]+i}, s[{SUP}:{SUP+1}]")
            k(f"v_cndmask_b32 v{QHA[q]+i}, v{QHA[q]+i}, 0, s[{SUP}:{SUP+1}]")
    def rdK(b, t):
        c, tt = divmod(t, 4)
        return f"ds_read_b128 {vr(KL[b],4)}, v{A3} offset:{c*10240 + tt*1024}"
    def rdH(pp, c):
        return f"ds_read_b64 {vr(KH+2*pp,2)}, v{A4} offset:{c*10240 + 4096 + pp*512}"
    def rdV(b):
        return [f"ds_read_b128 {vr(V[b],4)}, v{A5}", f"ds_read_b128 {vr(V[b]+4,4)}, v{A5} offset:640"]
    def smfma(sb, t, q, c):
        qh = QHA[q] if (t & 3) < 2 else QHB[q]
        return [f"{M16} {vr(S[sb],16)}, {vr(KL[t&1],4)}, {vr(QL[q],4)}, {c}",
                f"{M8} {vr(S[sb],16)}, {vr(KH+2*(t&1),2)}, {vr(qh,2)}, {vr(S[sb],16)}"]
    def rowmax_into(dst, sb, first):
        s = S[sb]
        if first:
            k(f"v_max3_f32 v{dst}, v{s}, v{s+1}, v{s+2}")
            rest = list(range(3, 16))
        else:
            rest = list(range(16))
        while len(rest) >= 2:
            k(f"v_max3_f32 v{dst}, v{dst}, v{s+rest[0]}, v{s+rest[1]}")
            rest = rest[2:]
        if rest:
            k(f"v_max_f32 v{dst}, v{dst}, v{s+rest[0]}")
    f0, f1 = smfma(0, 0, 0, "0"), smfma(1, 0, 1, "0")
    for x in (f0[0], f1[0], f0[1], f1[1]):
        k(x)
    k.nop(11)
    rowmax_into(10, 0, True)
    rowmax_into(11, 1, True)
    k.label("L_attn_start")
    k("v_mov_b32 v12, v10")
    k("v_mov_b32 v13, v11")
    k("s_nop 1")
    k("v_permlane32_swap_b32 v10, v12")
    k("v_permlane32_swap_b32 v11, v13")
    k("s_nop 1")
    k("v_max_f32 v10, v10, v12")
    k("v_max_f32 v11, v11, v13")
    k("v_sub_f32 v10, 0, v10")
    k("v_sub_f32 v12, 0, v11")
    k("v_mov_b32 v11, v10")
    k("v_mov_b32 v13, v12")
    for i in range(0, 16, 2):
        k(f"v_mov_b64 {vr(NM[0]+i,2)}, v[10:11]")
    k(f"v_mov_b32 v{A5}, v{VA0}")
    k(f"s_cmp_lg_u32 s{SPASS}, 0")
    for x in smfma(0, 0, 0, vr(NM[0], 16)):
        k(x)
    for i in range(0, 16, 2):
        k(f"v_mov_b64 {vr(NM[1]+i,2)}, v[12:13]")
    k(f"s_cselect_b32 s{SSEG}, 2, 0")
    k("s_cselect_b32 s36, 16, 1")
    k("s_cbranch_scc1 L_attn_nock0")
    k("s_barrier")
    k.label("L_attn_nock0")
    ts(9)
    for x in rdV(0) + [rdK(1, 1), rdH(1, 0)]:
        k(x)
    k(f"v_add_u32 v{A5}, v{VS1}, v{A5}")
    k(f"v_exp_f32 v{S[0]}, v{S[0]}")
    k(f"v_exp_f32 v{S[0]+1}, v{S[0]+1}")
    k(".p2align 6")
    k.label("L_attn_loop")
    for t in range(4):
        for q in range(2):
            a = S[q]
            nt, nq = (t, 1) if q == 0 else (t + 1, 0)
            pt, pq = (t - 1, 1) if q == 0 else (t, 0)
            sm = smfma(nq, nt, nq, vr(NM[nq], 16))
            ex = [f"v_exp_f32 v{a+i}, v{a+i}" for i in range(16)]
            cv = [f"v_cvt_pk_bf16_f32 v{P+i}, v{a+2*i}, v{a+2*i+1}" for i in range(8)]
            nex = [f"v_exp_f32 v{S[nq]+i}, v{S[nq]+i}" for i in range(2)]
            pvb = f"{M16} {vr(O[pq],16)}, {vr(V[pt&1]+4,4)}, {vr(P+4,4)}, {vr(O[pq],16)}"
            pva = f"{M16} {vr(O[q],16)}, {vr(V[t&1],4)}, {vr(P,4)}, {vr(O[q],16)}"
            g1 = ex[2:6] + cv[0:2]
            g2 = ex[6:10] + cv[2:4]
            g3 = ex[10:14] + cv[4:6]
            g4 = ex[14:16] + cv[6:8] + nex
            if q == 0:
                g3[0:0] = ["s_waitcnt lgkmcnt(0)"] + rdV((t + 1) & 1) + [rdK(t & 1, t + 2)] + ([rdH(t & 1, 1)] if t >= 2 else [])
                g4 += [f"v_add_u32 v{A5}, v{VS2 if t == 2 else VS1}, v{A5}"]
            elif t == 3:
                g1[0:0] = ["s_sub_u32 s36, s36, 1"]
                g3[0:0] = ["s_cmp_lg_u32 s36, 0"]
                g3 += [f"v_add_u32 v{x}, s{SSTR}, v{x}" for x in (A3, A4)]
            for x in [sm[0]] + g1 + [sm[1]] + g2 + [pvb] + g3 + [pva] + g4:
                k(x)
    k("s_cbranch_scc1 L_attn_loop")
    k(f"s_cmp_lt_u32 s{SSEG}, 2")
    k("s_cbranch_scc1 L_attn_ck")
    k(f"{M16} {vr(O[1],16)}, {vr(V[1]+4,4)}, {vr(P+4,4)}, {vr(O[1],16)}")
    k("s_waitcnt lgkmcnt(0)")
    ts(10)
    k(f"s_xor_b32 s28, s{S_W}, 2")
    k(f"s_or_b32 s28, s28, s{S_LAY}")
    k("s_cbranch_scc1 L_attn_nopc")
    k("v_lshlrev_b32 v184, 9, v1")
    k(f"s_mov_b32 s28, {CNT + 384:#x}")
    k("s_mov_b32 exec_hi, 0")
    k("buffer_load_dword v185, v184, s[8:11], s28 offen sc1")
    k("s_mov_b64 exec, -1")
    k.label("L_attn_nopc")
    for x in (A3, A4):
        k(f"v_subrev_u32 v{x}, {UNIT}, v{x}")
    k(f"v_bfe_u32 v9, v{A6}, 3, 1")
    k("v_mul_u32_u24 v9, 20480, v9")
    k(f"v_and_b32 v12, 7, v{A6}")
    k(f"v_lshrrev_b32 v13, 4, v{A6}")
    k("v_lshl_add_u32 v12, v13, 3, v12")
    k("v_lshl_add_u32 v14, v12, 4, v9")
    k(f"v_lshl_add_u32 v14, v{A7}, 8, v14")
    k("v_lshl_add_u32 v9, v12, 3, v9")
    k(f"v_mul_u32_u24 v13, 40960, v{A7}")
    k("v_add_u32 v9, v9, v13")
    k(f"s_lshl_b32 s28, s{S_QB}, 2")
    k(f"s_add_u32 s28, s28, s{S_W}")
    k("s_mul_i32 s28, s28, 81920")
    k(f"s_add_u32 s28, s28, s{S_LAY}")
    k(f"s_add_u32 s28, s28, {OF:#x}")
    k(f"s_lshl_b32 s29, s{S_HD}, 9")
    k("s_add_u32 s29, s29, s28")
    k("s_add_u32 s29, s29, 2048")
    for q in range(2):
        k(f"v_cndmask_b32 v{10+q}, v{O[q]+12}, v{O[q]+8}, s[{SUP}:{SUP+1}]")
    k("v_add_f32 v12, v10, v11")
    k(f"v_cmp_ngt_f32 vcc, {f2u(2.0**30):#x}, v12")
    k("v_rcp_f32 v10, v10")
    k("v_rcp_f32 v11, v11")
    k(f"s_lshr_b32 s30, s{S_HD}, 3")
    k(f"s_and_b32 s31, s{S_HD}, 16")
    k("s_add_u32 s30, s30, s31")
    k("s_lshl_b32 s30, s30, 10")
    k(f"s_and_b32 s31, s{S_HD}, 1")
    k("s_lshl_b32 s31, s31, 9")
    k("s_add_u32 s30, s30, s31")
    k(f"s_and_b32 s31, s{S_HD}, 6")
    k("s_lshl_b32 s31, s31, 6")
    k("s_add_u32 s30, s30, s31")
    k("s_add_u32 s30, s30, s28")
    k("s_add_u32 s31, s29, 40960")
    k(f"s_cmp_lg_u32 s{SPASS}, 0")
    k("s_cbranch_scc1 L_attn_out")
    k("s_cbranch_vccnz L_attn_slow")
    k.label("L_attn_out")
    for q in range(2):
        o = S[q]
        for i in range(3):
            scale_pack(O[q] + 4 * i, o + 2 * i, 10 + q)
        k(f"buffer_store_dwordx4 {vr(o,4)}, v14, s[8:11], s{29+2*q} offen {SC}")
    k("s_nop 0")
    for i in range(2):
        k(f"v_permlane32_swap_b32 v{S[0]+4+i}, v{S[1]+4+i}")
    k(f"buffer_store_dwordx2 {vr(S[0]+4,2)}, v9, s[8:11], s30 offen {SC}")
    ts(11)
    k(f"s_lshl_b32 s28, s{S_QB}, 14")
    k(f"s_and_b32 s29, s{S_HD}, 1")
    k("s_lshl_b32 s29, s29, 7")
    k("s_add_u32 s28, s28, s29")
    k("v_lshl_add_u32 v12, v1, 9, s28")
    k(f"s_mov_b64 s[{SSIG}:{SSIG+1}], 0xffffffff")
    targets([16, 16])
    seam_pre(1, idx_small)
    c_res_to_acc()
    k("s_waitcnt vmcnt(0)")
    k(f"s_xor_b32 s28, s{S_W}, 2")
    k(f"s_or_b32 s28, s28, s{S_LAY}")
    k("s_cbranch_scc1 L_attn_pcok")
    k("v_lshlrev_b32 v184, 9, v1")
    k("v_mov_b32 v186, 31")
    k("v_mov_b32 v187, 30")
    k("v_cmp_lt_u32 vcc, 11, v1")
    k(f"s_mov_b32 s28, {CNT + 384:#x}")
    k("s_mov_b32 s29, 0x40000")
    k("v_cndmask_b32 v186, v186, v187, vcc")
    k("s_mov_b32 exec_hi, 0")
    k.label("L_attn_pchk")
    k("v_cmp_ne_u32 vcc, v186, v185")
    k("s_sub_u32 s29, s29, 1")
    k("s_cbranch_scc1 L_attn_pcx")
    k("s_cbranch_vccz L_attn_pcx")
    k("s_sleep 8")
    k("buffer_load_dword v185, v184, s[8:11], s28 offen sc1")
    k("s_waitcnt vmcnt(0)")
    k("s_branch L_attn_pchk")
    k.label("L_attn_pcx")
    k("s_mov_b64 exec, -1")
    k.label("L_attn_pcok")
    k("s_barrier")
    ts(12)
    seam_post(filler=lambda: c_ext_loads(PH["gu"]))

    k("s_barrier")
    ts(16)
    if POLL2:
        k("s_waitcnt vmcnt(0)")
    c_small_pre(XB, STB, 0)
    eb = ["s_waitcnt vmcnt(0)"]
    c_ext_build(PH["gu"], eb.append)
    c_mainloop(PH["wo"], True, 16, eb)
    k.nop(5)
    c_small_epilogue()
    ts(19)
    lseam_pre(1, g_rs2, g_sm, g_rb)
    k("s_waitcnt vmcnt(0)")
    k("s_barrier")
    ts(20)
    lseam_post(16)

    p = PH["gu"]
    FB, XBUF, WBUF, top_gu = c_layout(p)
    k("s_barrier")
    ts(24)
    if POLL2:
        k("s_waitcnt vmcnt(0)")
    c_stats_loads(STB)
    k(f"s_lshl_b32 s28, s{S_RB}, 2")
    k(f"s_add_u32 s28, s28, s{S_W}")
    k(f"s_mul_i32 s28, s28, {2*55296}")
    k(f"s_add_u32 s28, s28, {HF:#x}")
    k(f"s_mul_i32 s29, s{S_CB}, 3072")
    k("s_add_u32 s30, s28, s29")
    k("s_add_u32 s31, s30, 55296")
    k(f"s_lshl_b32 s29, s{S_CB}, 9")
    k("s_add_u32 s29, s28, s29")
    k(f"s_add_u32 s29, s29, {46*1024}")
    k("v_and_b32 v9, 1, v8")
    k("v_mul_u32_u24 v9, 55296, v9")
    k("v_lshrrev_b32 v12, 1, v8")
    k("v_lshl_add_u32 v9, v12, 8, v9")
    k("v_lshl_add_u32 v9, v7, 4, v9")
    if TOUCH & 8:
        k("buffer_load_dwordx4 v[244:247], v9, s[8:11], s29 offen sc1")
        for j in range(3):
            for m in range(2):
                k(f"buffer_load_dwordx4 v[244:247], v3, s[8:11], s{30+m} offen offset:{1024*j} sc1")
    c_mainloop(p, True, 24, c_stats_valu() + ["s_nop 0", "v_mul_f32 v10, v10, v10", "v_mul_f32 v11, v11, v11"])
    def glu(m, b, o):
        g_, u_ = acc(p, m, 2 * b), acc(p, m, 2 * b + 1)
        for i in range(4):
            k(f"v_max_f32 v{g_+i}, 0, v{g_+i}")
        for i in (0, 2):
            k(f"v_pk_mul_f32 {vr(g_+i,2)}, {vr(g_+i,2)}, {vr(u_+i,2)}")
        scale_pack(g_, o, 10 + m)
    for j in (0, 1, 2, 3, 12, 13):
        ext_mfma(p, j, True)
    later = [4, 5, 6, 7, 8, 9, 10, 11]
    for j in range(3):
        for m in range(2):
            o = FB + 4 + 8 * j + 4 * m
            for h in range(2):
                glu(m, 2 * j + h, o + 2 * h)
                for _ in range(2):
                    if later:
                        ext_mfma(p, later.pop(0), True)
            k(f"buffer_store_dwordx4 {vr(o,4)}, v3, s[8:11], s{30+m} offen offset:{1024*j} {HSC}")
        if j == 0:
            for m in range(2):
                glu(m, 6, FB + 2 * m)
            k("s_nop 1")
            k(f"v_permlane16_swap_b32 v{FB}, v{FB+2}")
            k(f"v_permlane16_swap_b32 v{FB+1}, v{FB+3}")
            k(f"buffer_store_dwordx4 {vr(FB,4)}, v9, s[8:11], s29 offen {HSC}")
            k(f"s_cmp_eq_u32 s{S_CB}, 15")
            k("s_cbranch_scc1 L_c_gu_skip")
    k.label("L_c_gu_skip")
    ts(27)
    c_res_to_acc()
    lseam_pre(2, g_rb, g_cb, g_rs2)
    k("s_waitcnt vmcnt(0)")
    k("s_barrier")
    ts(28)
    lseam_post(16)

    k("s_barrier")
    ts(32)
    if POLL2:
        k("s_waitcnt vmcnt(0)")
    def down_b0():
        lab = k.newlabel()
        k(f"s_cmp_lg_u32 s{S_LAY}, 0")
        k(f"s_cbranch_scc1 {lab}")
        c_ext_loads(PH["qkv"])
        c_small_pre(XA, STA, LSTR)
        k.label(lab)
    c_mainloop(PH["down"], True, 32, (), down_b0)
    k(f"s_cmp_lg_u32 s{S_LAY}, 0")
    k("s_cbranch_scc1 L_c_final")
    k.nop(3)
    c_small_epilogue()
    ts(35)
    k("s_waitcnt vmcnt(4)")
    c_ext_build(PH["qkv"])
    lseam_pre(3, g_rs2, g_sm, g_rb)
    k("s_waitcnt vmcnt(0)")
    k("s_barrier")
    ts(36)
    lseam_post(16)
    k(f"s_mov_b32 s{S_LAY}, {LSTR:#x}")
    k(f"s_mov_b32 s{S_SEAM}, 20")
    k(f"s_add_u32 s{S_TS}, s{S_TS}, 320")
    k("s_branch L_c_layer")

    k.label("L_c_final")
    k("v_mul_u32_u24 v9, 1280, v7")
    k("v_and_b32 v10, 1, v8")
    k("v_lshl_add_u32 v9, v10, 5, v9")
    k("v_lshrrev_b32 v10, 1, v8")
    k("v_lshl_add_u32 v9, v10, 4, v9")
    k(f"s_lshl_b32 s28, s{S_RS}, 2")
    k(f"s_add_u32 s28, s28, s{S_W}")
    k(f"s_mul_i32 s28, s28, {16*1280}")
    k(f"s_mul_i32 s29, s{S_CS}, 160")
    k("s_add_u32 s28, s28, s29")
    for i in range(10):
        k(f"v_cvt_pk_bf16_f32 v{56+i}, v{ACC+2*i}, v{ACC+2*i+1}")
    k("v_mov_b32 v66, v64")
    k("v_mov_b32 v67, v65")
    for j in range(3):
        for i in range(2):
            k(f"v_permlane16_swap_b32 v{56+4*j+i}, v{58+4*j+i}")
        if j == 2:
            k("s_mov_b32 exec_lo, 0xffff")
            k("s_mov_b32 exec_hi, 0xffff")
        k(f"buffer_store_dwordx4 {vr(56+4*j,4)}, v9, s[24:27], s28 offen offset:{64*j}")
    if INSTR:
        ts(35)
        k("s_waitcnt vmcnt(0)")
        ts(36)
    k.label(L_end)
    k("s_endpgm")

    k.label("L_attn_ck")
    k(f"s_cmp_eq_u32 s{SSEG}, 0")
    k("s_cselect_b32 s36, 3, 12")
    k(f"s_add_u32 s{SSEG}, s{SSEG}, 1")
    k("s_barrier")
    k("s_branch L_attn_loop")

    k.label("L_l_attn")
    k("s_barrier")
    k(f"s_cmp_lg_u32 s{S_LAY}, 0")
    k("s_cbranch_scc1 L_l_havec")
    get_coords()
    k.label("L_l_havec")
    k(f"s_mul_i32 s28, s{S_HD}, {UNIT}")
    k(f"s_add_u32 s28, s28, s{S_LAY}")
    k(f"s_lshl_b32 s29, s{S_W}, 10")
    k("s_mov_b32 m0, s29")
    k("s_add_u32 s31, s28, s29")
    k(f"s_add_u32 s31, s31, {QKVI + 32*UNIT:#x}")
    k("s_mov_b32 s28, 0x100")
    k("s_mov_b32 s29, 0x10000")
    k("v_mov_b32 v8, 0x3f803f80")
    k("v_cndmask_b32 v8, 0, v8, s[28:29]")
    for i in range(1, 4):
        k(f"v_mov_b32 v{8+i}, v8")
    k("ds_write_b128 v3, v[8:11]")
    k("s_waitcnt lgkmcnt(0)")
    k(f"s_cmp_eq_u32 s{S_W}, 0")
    k(f"s_mov_b32 s36, {5 if KV5 else 8}")
    k("s_barrier")
    k("s_cbranch_scc1 L_l_skip0")
    def pieces(n, first=False):
        lab = k.newlabel()
        if not first:
            k(f"s_mov_b32 s36, {n}")
        k.label(lab)
        k(f"buffer_load_dwordx4 v3, s[8:11], s31 offen {LSC} lds")
        if first:
            k.label("L_l_skip0")
        k("s_add_u32 m0, m0, 4096")
        k("s_add_u32 s31, s31, 4096")
        k("s_sub_u32 s36, s36, 1")
        k("s_cmp_lg_u32 s36, 0")
        k(f"s_cbranch_scc1 {lab}")
    if KV5:
        pieces(5, True)
        k("s_waitcnt vmcnt(3)")
        pieces(6)
        k("s_waitcnt vmcnt(6)")
    else:
        pieces(8, True)
        k("s_waitcnt vmcnt(3)")
    k("s_barrier")
    k("s_setprio 3")
    pieces(11 if KV5 else 14)
    k("s_waitcnt vmcnt(9)")
    k("s_barrier")
    pieces(18)
    sb, vb = 56, 64
    k(f"s_lshl_b32 s28, s{S_W}, 8")
    k("s_add_u32 s28, s28, s2")
    k(f"s_cmp_lg_u32 s{S_LAY}, 0")
    k("s_cselect_b32 s28, 1000, s28")
    k("s_cmp_ge_u32 s28, 972")
    k("s_cbranch_scc1 L_attn_noprep")
    k(f"s_mov_b32 s{sb+27}, 0x00020000")
    k("s_and_b32 s37, s28, 31")
    k("s_cmp_lt_u32 s28, 732")
    k("s_cbranch_scc1 L_prep_notq")
    k("s_sub_u32 s28, s28, 732")
    k(f"s_and_b32 s{sb}, s28, 7")
    k("s_lshr_b32 s28, s28, 3")
    k("s_lshl_b32 s28, s28, 6")
    k("v_add_u32 v5, s28, v1")
    k(f"v_lshlrev_b32 v{vb}, 1, v5")
    k(f"s_mov_b32 s{sb+24}, s32")
    k(f"s_mov_b32 s{sb+25}, s33")
    k(f"s_mov_b32 s{sb+26}, {640*3840}")
    k(f"s_movk_i32 s{sb+20}, 3840")
    k("v_mul_u32_u24 v6, 3277, v5")
    k("v_lshrrev_b32 v6, 16, v6")
    k("v_mul_u32_u24 v7, 20, v6")
    k("v_sub_u32 v7, v5, v7")
    k("v_mul_u32_u24 v8, 43, v6")
    k("v_lshrrev_b32 v8, 8, v8")
    k("v_mul_u32_u24 v9, 6, v8")
    k("v_sub_u32 v9, v6, v9")
    k("v_and_b32 v10, 6, v9")
    k("v_bfe_u32 v11, v7, 2, 1")
    k("v_add_u32 v10, v10, v11")
    k("v_and_b32 v11, 1, v9")
    k("v_lshlrev_b32 v12, 3, v11")
    k("v_bfe_u32 v11, v7, 3, 1")
    k("v_lshl_add_u32 v12, v11, 2, v12")
    k("v_lshrrev_b32 v14, 2, v9")
    k("v_add_u32 v14, 6, v14")
    k("v_and_b32 v17, 3, v9")
    k("v_lshlrev_b32 v17, 2, v17")
    k("v_cmp_le_u32 s[30:31], 16, v7")
    k("s_nop 1")
    k("v_cndmask_b32 v10, v10, v14, s[30:31]")
    k("v_cndmask_b32 v12, v12, v17, s[30:31]")
    k("v_and_b32 v13, 3, v7")
    k("v_add_u32 v12, v12, v13")
    k("v_lshl_add_u32 v10, v8, 3, v10")
    k("v_lshrrev_b32 v14, 4, v5")
    k("v_add_u32 v14, 8, v14")
    k("v_and_b32 v17, 15, v5")
    k("s_movk_i32 s30, 1280")
    k("v_cmp_le_u32 s[30:31], s30, v5")
    k("s_nop 1")
    k("v_cndmask_b32 v10, v10, v14, s[30:31]")
    k("v_cndmask_b32 v12, v12, v17, s[30:31]")
    k("v_mov_b32 v9, v12")
    k("s_movk_i32 s31, 21504")
    k(f"s_mov_b32 s35, {WQKV_F:#x}")
    k("s_movk_i32 s38, 80")
    k("s_mov_b32 s39, 1")
    k("s_branch L_prep_go")
    k.label("L_prep_notq")
    k("s_cmp_ge_u32 s28, 432")
    k("s_cbranch_scc1 L_prep_small")
    k(f"s_and_b32 s{sb}, s28, 7")
    k("s_lshr_b32 s31, s28, 3")
    k("s_cmp_ge_u32 s31, 27")
    k(f"s_cselect_b32 s{sb+24}, s90, s88")
    k(f"s_cselect_b32 s{sb+25}, s91, s89")
    k("s_cselect_b32 s29, 21504, 0")
    k("s_cselect_b32 s30, 27, 0")
    k("s_sub_u32 s30, s31, s30")
    k(f"s_mov_b32 s{sb+26}, {640*3456}")
    k(f"s_movk_i32 s{sb+20}, 3456")
    k("s_lshl_b32 s30, s30, 6")
    k("v_add_u32 v9, s30, v1")
    k(f"v_lshlrev_b32 v{vb}, 1, v9")
    k("v_lshrrev_b32 v10, 4, v9")
    k("v_mov_b32 v11, 111")
    k("v_cmp_eq_u32 vcc, 107, v10")
    k(f"s_add_u32 s35, s29, {WGU_F:#x}")
    k("s_mov_b32 s31, 43008")
    k("v_cndmask_b32 v10, v10, v11, vcc")
    k("s_movk_i32 s38, 80")
    k("s_mov_b32 s39, 1")
    k("s_branch L_prep_go")
    k.label("L_prep_small")
    k(f"s_movk_i32 s{sb+20}, 1280")
    k("s_mov_b32 s39, 0")
    k(f"s_mov_b32 s29, {640*1280}")
    k("s_movk_i32 s30, 432")
    k("s_movk_i32 s38, 80")
    k("s_movk_i32 s31, 20480")
    k(f"s_mov_b32 s35, {WO_F:#x}")
    k("s_cmp_ge_u32 s28, 512")
    k(f"s_cselect_b32 s{sb+24}, s92, s86")
    k(f"s_cselect_b32 s{sb+25}, s93, s87")
    k(f"s_cselect_b32 s{sb+26}, {1728*1280}, s29")
    k("s_cselect_b32 s29, 512, s30")
    k("s_cselect_b32 s38, 216, s38")
    k("s_cselect_b32 s31, 55296, s31")
    k(f"s_cselect_b32 s35, {WD_F:#x}, s35")
    k("s_sub_u32 s28, s28, s29")
    k(f"s_mul_i32 s{sb}, s28, 205")
    k(f"s_lshr_b32 s{sb}, s{sb}, 11")
    k(f"s_mul_i32 s29, s{sb}, 10")
    k("s_sub_u32 s28, s28, s29")
    k("s_lshl_b32 s28, s28, 6")
    k("v_add_u32 v9, s28, v1")
    k(f"v_lshlrev_b32 v{vb}, 1, v9")
    k("v_lshrrev_b32 v10, 4, v9")
    k.label("L_prep_go")
    k("v_mul_u32_u24 v10, s31, v10")
    k("v_add_u32 v10, s35, v10")
    k("v_and_b32 v9, 15, v9")
    k(f"v_lshl_add_u32 v{vb+1}, v9, 4, v10")
    k(f"v_lshl_add_u32 v{vb+2}, v9, 3, v10")
    k(f"s_mul_i32 s{sb+1}, s{sb}, 10")
    k(f"s_mov_b32 s{sb+23}, s{sb+1}")
    k("s_mov_b32 s35, 0")
    k.label("L_prep_rows")
    k("s_cmp_lg_u32 s39, 0")
    k("s_cbranch_scc1 L_prep_rx")
    k("s_cmp_eq_u32 s38, 80")
    k("s_cbranch_scc1 L_prep_rwo")
    prep_rows(k, "wd", sb)
    k("s_branch L_prep_ld")
    k.label("L_prep_rwo")
    prep_rows(k, "wo", sb)
    k("s_branch L_prep_ld")
    k.label("L_prep_rx")
    prep_rows(k, "x", sb)
    k.label("L_prep_ld")
    k("s_cmp_lg_u32 s35, 0")
    k("s_cbranch_scc1 L_prep_ld2")
    prep_loads(k, sb, vb, vb + 16)
    k("s_mov_b32 s35, 1")
    k(f"s_add_u32 s{sb+23}, s{sb+23}, 5")
    k("s_branch L_prep_rows")
    k.label("L_prep_ld2")
    k("s_waitcnt vmcnt(40)")
    prep_loads(k, sb, vb, vb + 56)
    k("s_barrier")
    k("s_waitcnt vmcnt(0)")
    ts(5, 1)
    prep_finish(k, sb, vb, 10, SC, "s38", "s39")
    k("s_lshl_b32 s37, s37, 9")
    k(f"s_add_u32 s37, s37, {CNT + 384:#x}")
    ts(6, 1)
    k("s_waitcnt vmcnt(0)")
    k("s_mov_b64 exec, 1")
    k("buffer_atomic_add v15, off, s[8:11], s37 sc1")
    k("s_mov_b64 exec, -1")
    k("s_branch L_attn_Bgo")
    k.label("L_attn_noprep")
    k("s_waitcnt vmcnt(0)")
    k("s_barrier")
    k.label("L_attn_Bgo")
    ts(13, 1)
    ts(15, 1, 1)
    ts(7, 1, 2)
    k(f"s_cmp_lg_u32 s{S_LAY}, 0")
    k("s_cbranch_scc1 L_attn_prepok")
    if TOUCH & 1:
        l_touch_h()
    k.label("L_attn_prepok")
    if PFW:
        k(f"s_cmp_lg_u32 s{S_W}, 3")
        k("s_cbranch_scc1 L_attn_nopf")
        if PFW == 1:
            k(f"s_cmp_eq_u32 s{S_LAY}, 0")
            k("s_cbranch_scc1 L_attn_nopf")
        k(f"s_lshl_b32 s28, s{S_CS}, 2")
        k(f"s_and_b32 s29, s{S_RS}, 3")
        k("s_add_u32 s28, s28, s29")
        k("s_mul_i32 s29, s28, 25600")
        k(f"s_add_u32 s29, s29, {WO_F:#x}")
        k("s_mov_b32 s36, 25")
        k.label("L_pf_wo")
        k("buffer_load_dwordx4 v[20:23], v3, s[8:11], s29 offen")
        k("s_add_u32 s29, s29, 1024")
        k("s_sub_u32 s36, s36, 1")
        k("s_cmp_lg_u32 s36, 0")
        k("s_cbranch_scc1 L_pf_wo")
        k("s_min_u32 s28, s28, 29")
        k(f"s_mul_i32 s29, s28, {7*21504}")
        k(f"s_add_u32 s29, s29, {WGU_F:#x}")
        k("s_mov_b32 s36, 7")
        k.label("L_pf_gu")
        for st in eval(os.environ.get("PFST", "[0, 1, 2]")):
            k(f"s_add_u32 s30, s29, {st*2048}")
            k("buffer_load_dwordx4 v[20:23], v3, s[8:11], s30 offen")
            k("buffer_load_dwordx4 v[20:23], v3, s[8:11], s30 offen offset:1024")
        k("s_add_u32 s29, s29, 21504")
        k("s_sub_u32 s36, s36, 1")
        k("s_cmp_lg_u32 s36, 0")
        k("s_cbranch_scc1 L_pf_gu")
        k.label("L_attn_nopf")
    if TOUCH & 16:
        l_touch_x()
    ts(14, 1, 3)
    l_setup_w(PH["wo"])
    l_setup_x(PH["wo"])
    k(f"s_setprio {LPRIO}")
    k("s_barrier")
    k("s_branch L_l_after_attn")

    k.label("L_attn_slow")
    k(f"s_mov_b32 s{SPASS}, 1")
    k("v_mov_b32 v10, 0xff800000")
    k("v_mov_b32 v11, 0xff800000")
    k("s_mov_b32 s36, 0")
    k0_loads()
    k(rdH(1, 0))
    k("s_waitcnt vmcnt(0)")
    k("s_branch L_attn_slow_in")
    k.label("L_attn_slow_loop")
    k(rdH(0, 0))
    k(rdH(1, 0))
    for t in range(4):
        k(rdK(t & 1, t))
        if t == 0:
            k.label("L_attn_slow_in")
        k("s_waitcnt lgkmcnt(0)")
        for q in range(2):
            for x in smfma(q, t, q, "0"):
                k(x)
        k.nop(16)
        rowmax_into(10, 0, False)
        rowmax_into(11, 1, False)
    k(f"v_add_u32 v{A3}, s{SSTR}, v{A3}")
    k(f"v_add_u32 v{A4}, s{SSTR}, v{A4}")
    k("s_add_u32 s36, s36, 1")
    k("s_cmp_lg_u32 s36, 16")
    k("s_cbranch_scc1 L_attn_slow_loop")
    k(f"v_subrev_u32 v{A3}, {UNIT}, v{A3}")
    k(f"v_subrev_u32 v{A4}, {UNIT}, v{A4}")
    k0_loads()
    zero_o()
    k("s_waitcnt vmcnt(0)")
    k("s_branch L_attn_start")
    k.label("L_raw_qk")
    c_raw(True, c_stats_valu(False) + QKT, "L_join_qk")
    k.label("L_raw_v")
    c_raw(False, c_stats_valu(False) + VT, "L_join_v")
    k.label("L_mega_last")
    k("s_endpgm")
    return k.text(256, 102)


def main(out):
    hdr = open("cdna_kernels/" + NAME + ".s.ref").read().split("\n")
    hdr = [l for l in hdr if l.startswith(";") and "@launch" not in l and "Override launch" not in l and "grid=ceil" not in l]
    mega = gen_mega()
    L = [f"; @launch kernel=mega_kernel grid=(256,1,1) block=(512,1,1) lds={UNIT}"]
    txt = "\n".join(hdr + L) + "\n" + '.amdgcn_target "amdgcn-amd-amdhsa--gfx950"\n'
    txt += mega
    open(out, "w").write(txt)


if __name__ == "__main__":
    main(sys.argv[1] if len(sys.argv) > 1 else "cdna_kernels/" + NAME + ".s")
```

```python
import math, struct, sys, os

NAME = "interleave_layers__mha_block__glu_gated_reglu__prompt"
INSTR = os.environ.get("INSTR", "0") == "1"

WQKV_F = 0x0001000
WGU_F  = 0x0300000
WO_F   = 0x0800000
WD_F   = 0x0900000
CNT    = 0x0C00000
LBASE  = 0x1000000
LSTR   = 0x2000000
XA     = LBASE + 0x0000000
STA    = LBASE + 0x0280000
XB     = XA
STB    = STA
QKVI   = LBASE + 0x0600000
OF     = LBASE + 0x1000000
HF     = LBASE + 0x1300000
TSBUF  = 0x8000000
WS_SIZE = 0x10000000
UNIT = 163840
SLOT = 49152
SCRATCH = 156 * 1024
SC = "sc0 sc1"
LSC = os.environ.get("LSC", "sc1")

def f2u(x):
    return struct.unpack("<I", struct.pack("<f", x))[0]

SQRTC = math.sqrt(math.log2(math.e) / math.sqrt(20.0))
MF = "v_mfma_f32_16x16x32_bf16"
ROT = int(os.environ.get("ROT", "0"))
CK2 = int(os.environ.get("CK2", "2"))
PF = int(os.environ.get("PF", "0"))
WARM = int(os.environ.get("WARM", "1"))
LPRIO = int(os.environ.get("LPRIO", "0"))
TOUCH = int(os.environ.get("TOUCH", "19"))
W2LATE = int(os.environ.get("W2LATE", "7"))
TLBW = int(os.environ.get("TLBW", "0"))
HEAD2 = int(os.environ.get("HEAD2", "1"))
PFW = int(os.environ.get("PFW", "0"))
SPF = int(os.environ.get("SPF", "0"))
SPS_ = int(os.environ.get("SPSTR", "128"))
WBL = int(os.environ.get("WBL", "0"))
HSC = os.environ.get("HSC", "")
XSC = os.environ.get("XSC", "")
SPT = eval(os.environ.get("SPT", "{}"))
SELFW = int(os.environ.get("SELFW", "0"))
KV5 = int(os.environ.get("KV5", "1"))
WOPRE = int(os.environ.get("WOPRE", "4"))
NT0 = int(os.environ.get("NT0", "5"))
NT1 = int(os.environ.get("NT1", "0"))
TGAP = int(os.environ.get("TGAP", "1"))
POLL2 = int(os.environ.get("POLL2", "0"))


class K:
    def __init__(self, name):
        self.name = name
        self.l = []
        self.nlab = 0
    def __call__(self, s):
        for x in s.split("\n"):
            x = x.strip()
            if x.startswith("LABEL "):
                self.l.append(x.split()[1] + ":")
            elif x:
                self.l.append("    " + x)
    def label(self, s):
        self.l.append(s + ":")
    def newlabel(self, p="L"):
        self.nlab += 1
        return f"{p}_{self.name}_{self.nlab}"
    def nop(self, n):
        while n > 0:
            m = min(n, 16)
            self(f"s_nop {m-1}")
            n -= m
    def text(self, vgpr, sgpr=96):
        acc = (vgpr + 3) // 4 * 4
        kn = self.name + "_kernel"
        t = [".text", f".globl {kn}", ".p2align 8", f".type {kn},@function", f"{kn}:"]
        t += self.l
        d = ['.section .rodata,"a"', ".p2align 6", f".amdhsa_kernel {kn}",
             f"  .amdhsa_next_free_vgpr {vgpr}", f"  .amdhsa_next_free_sgpr {sgpr}",
             f"  .amdhsa_accum_offset {acc}", "  .amdhsa_group_segment_fixed_size 0",
             "  .amdhsa_kernarg_size 80", "  .amdhsa_user_sgpr_count 2",
             "  .amdhsa_user_sgpr_kernarg_segment_ptr 1", "  .amdhsa_system_sgpr_workgroup_id_x 1",
             ".end_amdhsa_kernel"]
        return "\n".join(t + d) + "\n"


def vr(b, n):
    return f"v[{b}:{b+n-1}]" if n > 1 else f"v{b}"

def srd(k, d, base, size):
    k(f"s_mov_b32 s{d}, s{base}")
    k(f"s_mov_b32 s{d+1}, s{base+1}")
    k(f"s_mov_b32 s{d+2}, {size:#x}")
    k(f"s_mov_b32 s{d+3}, 0x00020000")


def prep_rows(k, kind, sb):
    t = lambda i: f"s{sb+2+i}"
    for i in range(5):
        P, G4, S_, r0, r1, u, w = t(0), t(1), t(2), t(3), t(4), t(5), t(6)
        k(f"s_add_u32 {P}, s{sb+23}, {i}")
        if kind == "wd":
            k(f"s_min_u32 {P}, {P}, 215")
        k(f"s_and_b32 {G4}, {P}, 3")
        k(f"s_lshl_b32 {G4}, {G4}, 2")
        k(f"s_lshr_b32 {S_}, {P}, 2")
        if kind in ("x", "wd"):
            if kind == "x":
                k(f"s_lshr_b32 {r0}, {S_}, 1")
                k(f"s_and_b32 {r1}, {S_}, 1")
                tw, lim, sub = 80, 16, 2560 - 64
            else:
                k(f"s_mul_i32 {r0}, {S_}, 86")
                k(f"s_lshr_b32 {r0}, {r0}, 8")
                k(f"s_mul_i32 {r1}, {r0}, 3")
                k(f"s_sub_u32 {r1}, {S_}, {r1}")
                tw, lim, sub = 112, 46, 224 * 46 - 96
            k(f"s_mul_i32 {r0}, {r0}, {tw}")
            k(f"s_lshl_b32 {r1}, {r1}, 5")
            k(f"s_add_u32 {r0}, {r0}, {r1}")
            k(f"s_add_u32 {r0}, {r0}, {G4}")
            k(f"s_lshr_b32 {u}, {P}, 1")
            k(f"s_mul_i32 {u}, {u}, {tw}")
            k(f"s_sub_u32 {u}, {u}, {sub}")
            if kind == "wd":
                k(f"s_min_u32 {u}, {u}, 1712")
            k(f"s_and_b32 {w}, {P}, 1")
            k(f"s_lshl_b32 {w}, {w}, 3")
            k(f"s_add_u32 {u}, {u}, {w}")
            k(f"s_cmp_ge_u32 {S_}, {lim}")
            k(f"s_cselect_b32 {r0}, {u}, {r0}")
            k(f"s_cselect_b32 {r1}, 4, 16")
            k(f"s_add_u32 {r1}, {r0}, {r1}")
        else:
            k(f"s_sub_u32 {S_}, {P}, 8")
            k(f"s_lshr_b32 {r0}, {S_}, 1")
            k(f"s_mul_i32 {r0}, {r0}, 20")
            k(f"s_and_b32 {r1}, {P}, 1")
            k(f"s_lshl_b32 {r1}, {r1}, 2")
            k(f"s_add_u32 {r0}, {r0}, {r1}")
            k(f"s_and_b32 {u}, {P}, 15")
            k(f"s_mul_i32 {u}, {u}, 40")
            k(f"s_add_u32 {u}, {u}, 16")
            k(f"s_cmp_ge_u32 {S_}, 64")
            k(f"s_cselect_b32 {r0}, {u}, {r0}")
            k(f"s_cselect_b32 {r1}, 20, 8")
            k(f"s_add_u32 {r1}, {r0}, {r1}")
        k(f"s_mul_i32 s{sb+10+2*i}, {r0}, s{sb+20}")
        k(f"s_mul_i32 s{sb+11+2*i}, {r1}, s{sb+20}")

def prep_loads(k, sb, vb, v0):
    for i in range(5):
        for j in range(8):
            sreg = f"s{sb+10+2*i+(j>>2)}"
            k(f"buffer_load_ushort v{v0+8*i+j}, v{vb}, s[{sb+24}:{sb+27}], {sreg} offen")
            if j not in (3, 7):
                k(f"s_add_u32 {sreg}, {sreg}, s{sb+20}")

def prep_finish(k, sb, vb, NP, sc, npieces_reg, colsum_reg):
    done, nocs = k.newlabel(), k.newlabel()
    k(f"s_lshl_b32 s{sb+2}, s{sb+1}, 8")
    for i in range(NP):
        a = vb + 16 + 8 * i
        o = vb + 8 + 4 * (i & 1)
        if i:
            k(f"s_add_u32 s{sb+3}, s{sb+1}, {i}")
            k(f"s_cmp_ge_u32 s{sb+3}, {npieces_reg}")
            k(f"s_cbranch_scc1 {done}")
        for j in range(4):
            k(f"v_lshl_or_b32 v{o+j}, v{a+2*j+1}, 16, v{a+2*j}")
        k(f"buffer_store_dwordx4 {vr(o,4)}, v{vb+1}, s[8:11], s{sb+2} offen offset:{i*256} {sc}")
    k.label(done)
    k(f"s_cmp_eq_u32 {colsum_reg}, 0")
    k(f"s_cbranch_scc1 {nocs}")
    e = vb + 16
    for r in range(0, 8 * NP, 2):
        k(f"v_lshlrev_b32 v{e+r}, 16, v{e+r}")
        k(f"v_lshlrev_b32 v{e+r+1}, 16, v{e+r+1}")
        if r:
            k(f"v_pk_add_f32 {vr(e,2)}, {vr(e,2)}, {vr(e+r,2)}")
    k(f"v_add_f32 v{e}, v{e}, v{e+1}")
    lg = 2 if NP == 5 else 1
    k(f"s_lshr_b32 s{sb+2}, s{sb}, {lg}")
    k(f"s_lshl_b32 s{sb+2}, s{sb+2}, {6+lg}")
    k(f"s_and_b32 s{sb+3}, s{sb}, {(1<<lg)-1}")
    k(f"s_lshl_b32 s{sb+3}, s{sb+3}, 2")
    k(f"s_add_u32 s{sb+2}, s{sb+2}, s{sb+3}")
    k(f"s_add_u32 s{sb+2}, s{sb+2}, {20*1024}")
    k(f"buffer_store_dword v{e}, v{vb+2}, s[8:11], s{sb+2} offen {sc}")
    k.label(nocs)


def gen_prep():
    k = K("prep")
    NWG = 246
    L_end = "L_prep_end"
    sb, vb = 40, 16
    if SELFW:
        k("s_getpc_b64 s[32:33]")
        k("v_and_b32 v1, 63, v0")
        k("v_lshlrev_b32 v4, 7, v1")
        k("global_load_dword v85, v4, s[32:33]")
    k(f"s_cmp_ge_u32 s2, {NWG}")
    k(f"s_cbranch_scc1 {L_end}")
    k("s_load_dwordx4 s[24:27], s[0:1], 0")
    k("s_load_dwordx2 s[4:5], s[0:1], 72")
    if TLBW:
        k("s_load_dwordx2 s[80:81], s[0:1], 16")
        k("s_load_dwordx4 s[84:87], s[0:1], 32")
        k("s_load_dwordx4 s[88:91], s[0:1], 48")
    k("v_and_b32 v1, 63, v0")
    k("v_lshrrev_b32 v2, 6, v0")
    k("s_nop 0")
    k("v_readfirstlane_b32 s12, v2")
    if WARM:
        k("s_getpc_b64 s[28:29]")
        k.label("L_prep_pc")
        k("s_add_u32 s28, s28, mega_kernel - L_prep_pc")
        k("s_addc_u32 s29, s29, 0")
        k("s_lshr_b32 s30, s2, 3")
        k("s_mul_i32 s30, s30, 3")
        k("s_add_u32 s30, s30, s12")
        k("s_lshl_b32 s30, s30, 9")
        k("s_min_u32 s30, s30, L_mega_last - mega_kernel - 512")
        k("v_lshl_add_u32 v4, v1, 3, s30")
        k("global_load_dwordx2 v[86:87], v4, s[28:29]")
    k(f"s_mul_i32 s12, s12, {NWG}")
    k("s_add_u32 s12, s12, s2")
    k("s_cmp_ge_u32 s12, 480")
    k("s_cbranch_scc1 L_prep_x")
    k(f"s_and_b32 s{sb}, s12, 15")
    k(f"s_mul_i32 s{sb+1}, s{sb}, 5")
    k(f"s_mov_b32 s{sb+23}, s{sb+1}")
    k("s_lshr_b32 s22, s12, 4")
    k("s_lshl_b32 s22, s22, 6")
    k(f"s_movk_i32 s{sb+20}, 3840")
    k("v_add_u32 v5, s22, v1")
    k(f"v_lshlrev_b32 v{vb}, 1, v5")
    prep_rows(k, "x", sb)
    k("s_waitcnt lgkmcnt(0)")
    srd(k, sb + 24, 26, 640 * 3840)
    srd(k, 8, 4, WS_SIZE)
    prep_loads(k, sb, vb, vb + 16)
    k("v_mul_u32_u24 v6, 3277, v5")
    k("v_lshrrev_b32 v6, 16, v6")
    k("v_mul_u32_u24 v7, 20, v6")
    k("v_sub_u32 v7, v5, v7")
    k("v_mul_u32_u24 v8, 43, v6")
    k("v_lshrrev_b32 v8, 8, v8")
    k("v_mul_u32_u24 v9, 6, v8")
    k("v_sub_u32 v9, v6, v9")
    k("v_and_b32 v10, 6, v9")
    k("v_bfe_u32 v11, v7, 2, 1")
    k("v_add_u32 v10, v10, v11")
    k("v_and_b32 v11, 1, v9")
    k("v_lshlrev_b32 v12, 3, v11")
    k("v_bfe_u32 v11, v7, 3, 1")
    k("v_lshl_add_u32 v12, v11, 2, v12")
    k("v_lshrrev_b32 v14, 2, v9")
    k("v_add_u32 v14, 6, v14")
    k("v_and_b32 v15, 3, v9")
    k("v_lshlrev_b32 v15, 2, v15")
    k("v_cmp_le_u32 s[30:31], 16, v7")
    k("s_nop 1")
    k("v_cndmask_b32 v10, v10, v14, s[30:31]")
    k("v_cndmask_b32 v12, v12, v15, s[30:31]")
    k("v_and_b32 v13, 3, v7")
    k("v_add_u32 v12, v12, v13")
    k("v_lshl_add_u32 v10, v8, 3, v10")
    k("v_lshrrev_b32 v14, 4, v5")
    k("v_add_u32 v14, 8, v14")
    k("v_and_b32 v15, 15, v5")
    k("s_movk_i32 s30, 1280")
    k("v_cmp_le_u32 s[30:31], s30, v5")
    k("s_nop 1")
    k("v_cndmask_b32 v10, v10, v14, s[30:31]")
    k("v_cndmask_b32 v12, v12, v15, s[30:31]")
    k(f"v_mul_u32_u24 v{vb+1}, 21504, v10")
    k(f"v_add_u32 v{vb+1}, {WQKV_F:#x}, v{vb+1}")
    k(f"v_lshl_add_u32 v{vb+1}, v12, 4, v{vb+1}")
    k(f"v_mov_b32 v{vb+2}, v{vb+1}")
    k("s_waitcnt vmcnt(0)")
    prep_finish(k, sb, vb, 5, "", "80", "1")
    k("s_endpgm")

    k.label("L_prep_x")
    k("s_sub_u32 s22, s12, 480")
    k("s_cmp_ge_u32 s22, 256")
    k(f"s_cbranch_scc1 {L_end}")
    k("s_and_b32 s23, s22, 1")
    k("s_lshl_b32 s23, s23, 3")
    k("v_lshrrev_b32 v5, 3, v1")
    k("v_add_u32 v5, s23, v5")
    k("v_and_b32 v6, 7, v1")
    k("v_mul_u32_u24 v3, 1280, v5")
    k("v_lshl_add_u32 v3, v6, 4, v3")
    k("s_lshr_b32 s23, s22, 1")
    k("s_mul_i32 s42, s23, 20480")
    k("s_waitcnt lgkmcnt(0)")
    srd(k, 16, 24, 2048 * 1280)
    srd(k, 8, 4, WS_SIZE)
    for i in range(10):
        k(f"buffer_load_dwordx4 {vr(16+4*i,4)}, v3, s[16:19], s42 offen offset:{128*i}")
    if TLBW:
        k("v_lshlrev_b32 v84, 20, v1")
        k("buffer_load_dword v85, v84, s[8:11], 0 offen")
        k(f"s_mov_b32 s70, {64<<20:#x}")
        k("s_mov_b64 exec, 0xffff")
        k("buffer_load_dword v85, v84, s[8:11], s70 offen")
        k("s_mov_b64 exec, 7")
        for (b_, n_) in ((84, 640*3456), (86, 640*3456), (88, 1728*1280), (90, 2048*1280), (80, 640*1280)):
            srd(k, 72, b_, n_)
            k("buffer_load_dword v85, v84, s[72:75], 0 offen")
        k("s_mov_b64 exec, -1")
    k("v_mov_b32 v8, 0")
    k("v_mov_b32 v9, 0")
    k("v_lshlrev_b32 v10, 3, v1")
    k("s_lshl_b32 s43, s22, 9")
    k(f"s_add_u32 s43, s43, {CNT:#x}")
    k("buffer_store_dwordx2 v[8:9], v10, s[8:11], s43 offen")
    k("v_lshlrev_b32 v4, 4, v5")
    k("v_and_b32 v15, 1, v6")
    k("v_lshrrev_b32 v7, 1, v6")
    k("v_mov_b32 v56, 0x100")
    for i in range(10):
        d = 64 + 2 * i
        k(f"v_add_u32 v10, {4*i}, v7")
        k("v_mul_u32_u24 v11, 52, v10")
        k("v_lshrrev_b32 v11, 8, v11")
        k("v_mul_u32_u24 v12, 5, v11")
        k("v_sub_u32 v12, v10, v12")
        k("v_lshrrev_b32 v13, 1, v12")
        k("v_lshl_add_u32 v13, v11, 1, v13")
        k("v_lshl_add_u32 v13, v13, 1, v15")
        k("v_lshlrev_b32 v13, 9, v13")
        k("v_and_b32 v14, 1, v12")
        k("v_lshl_add_u32 v13, v14, 3, v13")
        k("v_lshl_add_u32 v14, v11, 1, v15")
        k("v_lshlrev_b32 v14, 8, v14")
        k("v_add_u32 v14, 0x4000, v14")
        k("v_cmp_eq_u32 s[44:45], 4, v12")
        k("s_nop 1")
        k("v_cndmask_b32 v13, v13, v14, s[44:45]")
        k("v_cndmask_b32 v14, v56, 8, s[44:45]")
        k(f"v_add_u32 v{d}, v13, v4")
        k(f"v_add_u32 v{d+1}, v{d}, v14")
    k(f"s_add_u32 s43, s42, {XA:#x}")
    k("s_waitcnt vmcnt(0)")
    for i in range(10):
        k(f"buffer_store_dwordx2 {vr(16+4*i,2)}, v{64+2*i}, s[8:11], s43 offen")
        k(f"buffer_store_dwordx2 {vr(18+4*i,2)}, v{65+2*i}, s[8:11], s43 offen")
    k("v_mov_b64 v[12:13], 0")
    for r in range(40):
        k(f"v_lshlrev_b32 v10, 16, v{16+r}")
        k(f"v_and_b32 v11, 0xffff0000, v{16+r}")
        k("v_pk_add_f32 v[8:9], v[8:9], v[10:11]")
        k("v_pk_fma_f32 v[12:13], v[10:11], v[10:11], v[12:13]")
    k("v_add_f32 v8, v8, v9")
    k("v_add_f32 v9, v12, v13")
    k("v_lshlrev_b32 v4, 14, v6")
    k("v_lshl_add_u32 v4, v5, 3, v4")
    k("s_lshl_b32 s43, s23, 7")
    k(f"s_add_u32 s43, s43, {STA:#x}")
    k("buffer_store_dwordx2 v[8:9], v4, s[8:11], s43 offen")
    k.label(L_end)
    k("s_endpgm")
    return k.text(88, 96), NWG


class Ph:
    def __init__(s, name, big, NB, nsteps, xsrc, wsrc):
        s.name, s.big, s.NB, s.nsteps, s.xsrc, s.wsrc = name, big, NB, nsteps, xsrc, wsrc
        s.MX = 2 if big else 1
        s.NXF = 4 * s.MX
        s.SPS = 2 if big else 4
        s.STEP = (s.NXF + NB) * 1024
        s.XS = nsteps * 1024
        s.WS = (nsteps + 1) * 1024 if big else nsteps * 1024
        s.nst = (nsteps + s.SPS - 1) // s.SPS
        s.skip = s.SPS * s.nst - nsteps
        s.SL = [x * 1024 for x in {"wo": [108, 0, 36, 72], "gu": [0, 44, 88], "down": [88, 48, 124, 0], "qkv": [0, 124, 88, 48]}[name]]
        s.R = len(s.SL)
        s.EARLY = eval(os.environ.get("EARLY", '{"wo": {3: [0], 4: [1]}, "gu": {8: [1], 9: [0, 2]}, "down": {12: [0, 1], 13: [2]}, "qkv": {}}'))[name]
        s.nx = 4
        s.nw = NB // 2 if big else NB
        s.n = s.nx + s.nw
        assert s.SPS * s.STEP <= SLOT

PH = {
    "qkv": Ph("qkv", True, 8, 20, XA, WQKV_F),
    "wo": Ph("wo", False, 5, 20, OF, WO_F),
    "gu": Ph("gu", True, 14, 20, XB, WGU_F),
    "down": Ph("down", False, 5, 54, HF, WD_F),
}

S_W = 12
S_RB, S_CB = 13, 14
S_RS, S_CS = 15, 16
S_HD, S_QB = 17, 18
S_LAY = 19
S_SLOT = 20
S_SEAM = 21
S_TS = 22
S_ROLE = 23
S_FAST = 3
TK = CNT + 64*512 + 384
FL = CNT + 128*512 + 384
FORCE_SLOW = int(os.environ.get('FORCE_SLOW', '0'))
RES = 16


def gen_mega():
    k = K("mega")
    L_end = "L_mega_end"

    def ts(i, role=0, wave=0):
        if not INSTR:
            return
        lab = k.newlabel()
        k(f"s_xor_b32 s96, s{S_ROLE}, {role}")
        k(f"s_xor_b32 s97, s{S_W}, {wave}")
        k("s_or_b32 s96, s96, s97")
        k(f"s_cbranch_scc1 {lab}")
        k("s_memtime s[96:97]")
        k("s_memrealtime s[98:99]")
        k("s_waitcnt lgkmcnt(0)")
        k("s_mov_b64 s[100:101], exec")
        k("s_mov_b64 exec, 1")
        k("v_mov_b32 v0, s96")
        k(f"buffer_store_dword v0, off, s[8:11], s{S_TS} offset:{8*i}")
        k("s_nop 1")
        k("v_mov_b32 v0, s98")
        k(f"buffer_store_dword v0, off, s[8:11], s{S_TS} offset:{8*i+4}")
        k("s_mov_b64 exec, s[100:101]")
        k.label(lab)

    def get_coords():
        k(f"v_mov_b32 v9, {SCRATCH + 1024:#x}")
        k("ds_read_b32 v9, v9")
        k("s_waitcnt lgkmcnt(0)")
        k("v_readfirstlane_b32 s28, v9")
        k(f"s_lshr_b32 s{S_FAST}, s28, 8")
        k("s_bfe_u32 s30, s28, 0x30005")
        k(f"s_lshl_b32 s{S_RS}, s30, 2")
        k("s_and_b32 s29, s28, 3")
        k(f"s_add_u32 s{S_RS}, s{S_RS}, s29")
        k(f"s_bfe_u32 s{S_CS}, s28, 0x30002")
        k(f"s_lshl_b32 s{S_RB}, s30, 1")
        k("s_and_b32 s29, s28, 1")
        k(f"s_add_u32 s{S_RB}, s{S_RB}, s29")
        k(f"s_bfe_u32 s{S_CB}, s28, 0x40001")
        k(f"s_mov_b32 s{S_HD}, s{S_RS}")
        k(f"s_mov_b32 s{S_QB}, s{S_CS}")

    def next_slot(dst=S_SLOT):
        k(f"s_add_u32 s{dst}, s{dst}, {SLOT}")
        k(f"s_cmp_eq_u32 s{dst}, {3*SLOT}")
        k(f"s_cselect_b32 s{dst}, 0, s{dst}")

    k("s_cmp_ge_u32 s2, 256")
    k(f"s_cbranch_scc1 {L_end}")
    k("s_getpc_b64 s[30:31]")
    k("s_lshr_b32 s28, s2, 3")
    k("s_mul_i32 s28, s28, 1536")
    k("v_lshl_add_u32 v4, v0, 7, s28")
    k("v_min_u32 v4, L_mega_last - mega_kernel - 128, v4")
    k("v_cmp_gt_u32 vcc, 12, v0")
    k("s_and_saveexec_b64 s[28:29], vcc")
    k("s_cbranch_execz L_nocode")
    k("global_load_dword v16, v4, s[30:31]")
    k.label("L_nocode")
    k("s_mov_b64 exec, s[28:29]")
    k("s_load_dwordx2 s[4:5], s[0:1], 72")
    k("s_load_dwordx2 s[6:7], s[0:1], 56")
    k("s_load_dwordx2 s[86:87], s[0:1], 16")
    k("s_load_dwordx4 s[88:91], s[0:1], 32")
    k("s_load_dwordx2 s[92:93], s[0:1], 48")
    k("s_load_dwordx4 s[32:35], s[0:1], 0")
    k("s_load_dwordx2 s[36:37], s[0:1], 64")
    k("v_and_b32 v1, 63, v0")
    k("v_lshrrev_b32 v2, 6, v0")
    k("v_lshlrev_b32 v3, 4, v1")
    k(f"v_readfirstlane_b32 s{S_W}, v2")
    k(f"s_and_b32 s{S_RB}, s2, 1")
    k(f"s_lshl_b32 s{S_RB}, s{S_RB}, 3")
    k("s_bfe_u32 s28, s2, 0x30003")
    k(f"s_add_u32 s{S_RB}, s{S_RB}, s28")
    k(f"s_bfe_u32 s{S_CB}, s2, 0x20001")
    k(f"s_lshl_b32 s{S_CB}, s{S_CB}, 2")
    k("s_lshr_b32 s28, s2, 6")
    k(f"s_add_u32 s{S_CB}, s{S_CB}, s28")
    k(f"s_mov_b32 s{S_LAY}, 0")
    k(f"s_mov_b32 s{S_SEAM}, 0")
    k(f"s_lshl_b32 s{S_TS}, s2, 10")
    k(f"s_add_u32 s{S_TS}, s{S_TS}, {TSBUF:#x}")
    k("s_waitcnt lgkmcnt(0)")
    srd(k, 8, 4, WS_SIZE)
    srd(k, 24, 6, 2048 * 1280)
    srd(k, 68, 32, 2048 * 1280)
    srd(k, 72, 34, 640 * 3840)
    srd(k, 76, 36, 256)
    k("s_mov_b64 s[32:33], s[34:35]")
    k(f"s_mul_i32 s47, s{S_CB}, 240")
    k(f"s_lshl_b32 s28, s{S_CB}, 8")
    k("s_sub_u32 s28, s28, 256")
    k(f"s_cmp_ge_u32 s{S_CB}, 11")
    k("s_cselect_b32 s47, s28, s47")
    k("v_mov_b32 v15, 1")
    k(f"s_mov_b32 s{S_ROLE}, 0")
    k(f"s_cmp_lt_u32 s{S_W}, 4")
    k("s_cbranch_scc1 L_comp")
    k(f"s_mov_b32 s{S_ROLE}, 1")

    k(f"s_sub_u32 s{S_W}, s{S_W}, 4")
    k(f"s_setprio {LPRIO}")
    AX = {"qkv": 32, "wo": 48, "gu": 32, "down": 48}
    DUMMY = {"qkv": (10, 0xb0), "gu": (15, 0xff0)}
    def dummy_mask(p, dst):
        c, msk = DUMMY[p.name]
        k(f"s_cmp_eq_u32 s{S_CB}, {c}")
        k(f"s_cselect_b32 s{dst}, {msk:#x}, 0")
    def l_setup_w(p):
        a = AX[p.name] + 4
        rc = S_CB if p.big else S_CS
        k(f"s_mul_i32 s28, s{rc}, {p.NB*p.WS}")
        k(f"s_lshr_b32 s29, s{S_W}, {1 if p.big else 0}")
        k("s_lshl_b32 s29, s29, 10")
        k("s_add_u32 s28, s28, s29")
        k(f"s_add_u32 s28, s28, {p.wsrc - p.skip*1024:#x}")
        if not p.big:
            for j in range(p.nw):
                k(f"s_add_u32 s29, s28, {j*p.WS - (j&3)*1024}")
                k(f"v_add_u32 v{a+j}, s29, v3")
            return
        dummy_mask(p, 30)
        k(f"s_and_b32 s29, s{S_W}, 1")
        k(f"s_mul_i32 s29, s29, {p.nw}")
        for j in range(p.nw):
            k("s_bitcmp1_b32 s30, s29")
            k("s_cselect_b32 s31, 0, s29")
            k(f"s_mul_i32 s31, s31, {p.WS}")
            k("s_add_u32 s31, s31, s28")
            k(f"s_sub_u32 s31, s31, {(j&3)*1024}")
            k(f"v_add_u32 v{a+j}, s31, v3")
            k("s_add_u32 s29, s29, 1")
        if p.name == "qkv":
            k(f"s_cmp_lt_u32 s{S_CB}, 11")
            k("s_cselect_b32 s30, 0x80, 0")
            k("s_cmp_eq_u32 s29, 8")
            k("s_cselect_b32 s30, s30, 0")
            k("v_and_b32 v4, s30, v3")
            k(f"v_sub_u32 v{a+3}, v{a+3}, v4")
    def l_setup_x(p):
        a = AX[p.name]
        rr = S_RB if p.big else S_RS
        k(f"s_mul_i32 s28, s{rr}, {p.NXF*p.XS}")
        if p.big:
            k(f"s_and_b32 s29, s{S_W}, 1")
            k(f"s_mul_i32 s29, s29, {4*p.XS}")
            k("s_add_u32 s28, s28, s29")
            k(f"s_lshr_b32 s29, s{S_W}, 1")
        else:
            k(f"s_mov_b32 s29, s{S_W}")
        k("s_lshl_b32 s29, s29, 10")
        k("s_add_u32 s28, s28, s29")
        k(f"s_add_u32 s28, s28, {p.xsrc - p.skip*1024:#x}")
        if p.name == "wo":
            k(f"s_add_u32 s28, s28, s{S_LAY}")
        for j in range(4):
            k(f"v_add_u32 v{a+j}, s28, v3")
            if j < 3:
                k(f"s_add_u32 s28, s28, {p.XS - 1024}")
    LOFF = {"qkv": 40, "wo": 42, "gu": 44, "down": 42}
    for nm in ("qkv", "wo", "gu"):
        p = PH[nm]
        r = LOFF[nm]
        if p.big:
            k(f"s_lshr_b32 s28, s{S_W}, 1")
            k(f"s_mul_i32 s28, s28, {p.STEP}")
            k(f"s_and_b32 s29, s{S_W}, 1")
            k(f"s_lshl_b32 s30, s29, 12")
            k(f"s_add_u32 s{r}, s28, s30")
            k(f"s_mul_i32 s30, s29, {p.nw*1024}")
            k(f"s_add_u32 s{r+1}, s28, s30")
            k(f"s_add_u32 s{r+1}, s{r+1}, {p.NXF*1024}")
        else:
            k(f"s_mul_i32 s{r}, s{S_W}, {p.STEP}")
            k(f"s_add_u32 s{r+1}, s{r}, 4096")
    class Trk:
        def __init__(t): t.ops = []
        def has(t, g): return any(x == g for x, n in t.ops)
        def allowed(t, tags):
            last = max(i for i, (g, n) in enumerate(t.ops) if g in tags)
            return sum(n for g, n in t.ops[last+1:])
    def l_issue(p, part, st, trk):
        a = AX[p.name] + (0 if part == "x" else 4)
        n = p.nx if part == "x" else p.nw
        r = LOFF[p.name] + (0 if part == "x" else 1)
        lds = p.SL[st % p.R]
        lab = None
        if st == 0 and p.skip:
            lab = k.newlabel()
            k(f"s_cmp_lt_u32 s{S_W}, {p.skip}")
            k(f"s_cbranch_scc1 {lab}")
        for j in range(n):
            if j % 4 == 0:
                k(f"s_add_u32 m0, s{r}, {lds + j*1024}")
                k(f"s_mov_b32 s35, {st*p.SPS*1024}")
            k(f"buffer_load_dwordx4 v{a+j}, s[8:11], s35 offen offset:{(j&3)*1024} {LSC if part == 'x' else ''} lds")
        if lab:
            k.label(lab)
        trk.ops.append(((p.name, part, st), 0 if lab else n))
    def l_touch_h():
        k(f"s_lshl_b32 s28, s{S_RB}, 2")
        k(f"s_add_u32 s28, s28, s{S_W}")
        k(f"s_mul_i32 s28, s28, {2*55296}")
        k(f"s_add_u32 s28, s28, {HF:#x}")
        k(f"s_mul_i32 s29, s{S_CB}, 3072")
        k("s_add_u32 s30, s28, s29")
        k(f"s_lshl_b32 s29, s{S_CB}, 9")
        k("s_add_u32 s29, s28, s29")
        k(f"s_add_u32 s29, s29, {46*1024}")
        k(f"s_cmp_eq_u32 s{S_CB}, 15")
        k("s_cselect_b32 s31, 0, 1024")
        k("v_add_u32 v24, s31, v3")
        k("v_add_u32 v25, s31, v24")
        for m in range(2):
            for j in range(3):
                k(f"buffer_load_dwordx4 v[20:23], v{3 if j == 0 else 23+j}, s[8:11], s30 offen sc1")
            k("s_mov_b32 exec_hi, 0")
            k("buffer_load_dwordx4 v[20:23], v3, s[8:11], s29 offen sc1")
            k("s_mov_b64 exec, -1")
            if m == 0:
                k("s_add_u32 s30, s30, 55296")
                k("s_add_u32 s29, s29, 55296")
    def l_touch_x():
        k(f"s_lshl_b32 s28, s{S_RS}, 2")
        k(f"s_add_u32 s28, s28, s{S_W}")
        k("s_mul_i32 s29, s28, 20480")
        k(f"s_add_u32 s29, s29, {XA:#x}")
        k(f"s_lshl_b32 s30, s{S_CS}, 11")
        k("s_add_u32 s30, s30, s29")
        k(f"s_lshl_b32 s31, s{S_CS}, 9")
        k("s_add_u32 s31, s31, s29")
        k("s_add_u32 s31, s31, 16384")
        k("buffer_load_dwordx4 v[20:23], v3, s[8:11], s30 offen sc1")
        k("buffer_load_dwordx4 v[20:23], v3, s[8:11], s30 offen offset:1024 sc1")
        k("s_mov_b32 exec_hi, 0")
        k("buffer_load_dwordx4 v[20:23], v3, s[8:11], s31 offen sc1")
        k(f"s_lshl_b32 s29, s{S_CS}, 14")
        k("s_lshl_b32 s28, s28, 7")
        k("s_add_u32 s29, s29, s28")
        k(f"s_add_u32 s29, s29, {STA:#x}")
        k("s_mov_b64 exec, 1")
        k("buffer_load_dwordx4 v[20:23], v3, s[8:11], s29 offen sc1")
        k("s_mov_b64 exec, -1")
    def l_gemm(p, nxt, trk):
        def need(st):
            return trk.allowed({(p.name, "x", st), (p.name, "w", st)})
        def fill(st):
            for part in ("w", "x"):
                if not trk.has((p.name, part, st)):
                    l_issue(p, part, st, trk)
        fill(0)
        fill(1)
        for st in range(p.nst):
            k(f"s_waitcnt vmcnt({need(st)})")
            k("s_barrier")
            if st == 0:
                for i in range(2, p.R):
                    fill(i)
                if nxt:
                    l_setup_w(nxt)
                if p.name == "down" and TOUCH & 16:
                    lab = k.newlabel()
                    k(f"s_cmp_lg_u32 s{S_LAY}, 0")
                    k(f"s_cbranch_scc1 {lab}")
                    l_touch_x()
                    k.label(lab)
            elif st - 1 + p.R < p.nst:
                fill(st - 1 + p.R)
            if st in SPT.get(p.name, []):
                i_ = SPT[p.name].index(st)
                base, size = (WD_F, 40*55296) if p.name == "gu" else (WQKV_F, 128*21504)
                k(f"s_lshl_b32 s28, s{S_CS}, 2")
                k(f"s_and_b32 s29, s{S_RS}, 3")
                k("s_add_u32 s28, s28, s29")
                k("s_lshl_b32 s28, s28, 2")
                k(f"s_add_u32 s28, s28, s{S_W}")
                k("s_lshl_b32 s28, s28, 13")
                k(f"s_add_u32 s28, s28, {i_ << 20}")
                k(f"s_min_u32 s28, s28, {size - 8192}")
                k(f"s_add_u32 s28, s28, {base:#x}")
                k("v_lshlrev_b32 v24, 7, v1")
                k("buffer_load_dword v20, v24, s[8:11], s28 offen")
                trk.ops.append(("t", 1))
            if p.name == "gu" and st == p.nst - 1 and TOUCH & 2:
                l_touch_h()
                trk.ops.append(("t", 8))
            if p.name == "down" and st == min(p.EARLY):
                assert st == p.nst - 2
                lab = k.newlabel()
                k(f"s_cmp_eq_u32 s{S_LAY}, 0")
                k(f"s_cbranch_scc1 {lab}")
                k("s_waitcnt vmcnt(0)")
                k("s_barrier")
                k("s_endpgm")
                k.label(lab)
            for i in p.EARLY.get(st, []):
                l_issue(nxt, "w", i, trk)
        return trk

    k("v_lshrrev_b32 v8, 3, v1")
    k("v_and_b32 v9, 7, v1")
    k("v_lshrrev_b32 v10, 4, v1")
    k("v_xor_b32 v9, v9, v10")
    k("v_mul_u32_u24 v8, 1280, v8")
    k(f"s_lshl_b32 s28, s{S_RB}, 2")
    k(f"s_add_u32 s28, s28, s{S_W}")
    k(f"s_mul_i32 s28, s28, {32*1280}")
    for j in range(4):
        k(f"v_xor_b32 v11, {4*(j&1)}, v9")
        k("v_lshl_add_u32 v11, v11, 4, v8")
        k(f"s_add_u32 s29, s28, {j*(8*1280-1024)}")
        k(f"v_add_u32 v{32+j}, s29, v11")
    k("v_and_b32 v9, 15, v1")
    k("v_lshlrev_b32 v11, 1, v10")
    k("v_xor_b32 v9, v9, v11")
    k("v_mul_u32_u24 v8, 3840, v10")
    k(f"s_mul_i32 s28, s{S_W}, {16*3840}")
    k("s_add_u32 s28, s28, s47")
    for j in range(4):
        k(f"v_xor_b32 v11, {8*(j>>1)}, v9")
        k("v_lshl_add_u32 v11, v11, 4, v8")
        k(f"s_add_u32 s29, s28, {j*(4*3840-1024)}")
        k(f"v_add_u32 v{36+j}, s29, v11")
    k(f"s_lshl_b32 s30, s{S_W}, 12")
    def raw_issue(st):
        k(f"s_add_u32 m0, s30, {(st%4)*32768 + 16384}")
        k(f"s_mov_b32 s35, {st*64*3840}")
        for j in range(4):
            k(f"buffer_load_dwordx4 v{36+j}, s[72:75], s35 offen offset:{1024*j} lds")
        k(f"s_add_u32 m0, s30, {(st%4)*32768}")
        k(f"s_movk_i32 s35, {st*128}")
        for j in range(4):
            k(f"buffer_load_dwordx4 v{32+j}, s[68:71], s35 offen offset:{1024*j} lds")
    raw_issue(0)
    raw_issue(1)
    issued = 2
    for st in range(10):
        k(f"s_waitcnt vmcnt({8*(issued-1-st)})")
        k("s_barrier")
        hi = 4 if st == 0 else min(10, st + 4)
        while issued < hi:
            raw_issue(issued)
            issued += 1
    k("s_barrier")
    k("s_branch L_l_attn")
    k.label("L_l_after_attn")
    t = Trk()
    for i in range(WOPRE):
        l_issue(PH["wo"], "w", i, t)
    k("s_barrier")
    for (nm, nx) in (("wo", "gu"), ("gu", "down"), ("down", "qkv")):
        t = l_gemm(PH[nm], PH[nx], t)
        if nm == "down":
            k(f"s_mov_b32 s{S_LAY}, {LSTR:#x}")
            k(f"s_add_u32 s{S_TS}, s{S_TS}, 320")
        l_setup_x(PH[nx])
        k("s_barrier")
        k("s_barrier")
    l_gemm(PH["qkv"], None, t)
    k("s_branch L_l_attn")
    k.label("L_l_done")
    k("s_waitcnt vmcnt(0)")
    k("s_endpgm")

    k.label("L_comp")
    k("v_and_b32 v7, 15, v1")
    k("v_lshrrev_b32 v8, 4, v1")
    k("v_lshlrev_b32 v2, 7, v1")

    def small_addr():
        k(f"s_lshl_b32 s28, s{S_RS}, 2")
        k(f"s_add_u32 s28, s28, s{S_W}")
        k("s_mul_i32 s29, s28, 20480")
        k(f"s_lshl_b32 s30, s{S_CS}, 11")
        k("s_add_u32 s30, s30, s29")
        k(f"s_lshl_b32 s31, s{S_CS}, 9")
        k("s_add_u32 s31, s31, s29")
        k("s_add_u32 s31, s31, 16384")
        k("v_lshrrev_b32 v9, 1, v8")
        k("v_lshlrev_b32 v9, 8, v9")
        k("v_lshl_add_u32 v9, v7, 4, v9")
    def res_load():
        k("v_mul_u32_u24 v9, 1280, v7")
        k("v_lshl_add_u32 v9, v8, 3, v9")
        k(f"s_lshl_b32 s28, s{S_RS}, 2")
        k(f"s_add_u32 s28, s28, s{S_W}")
        k(f"s_mul_i32 s28, s28, {16*1280}")
        k(f"s_mul_i32 s29, s{S_CS}, 160")
        k("s_add_u32 s28, s28, s29")
        for j in range(5):
            k(f"buffer_load_dwordx2 {vr(RES+2*j,2)}, v9, s[68:71], s28 offen offset:{32*j}")

    SSIG, SSO, SPO = 54, 53, 94
    def seam_pre(seam, idx_setup):
        idx_setup()
        k("s_lshl_b32 s28, s28, 9")
        k(f"s_add_u32 s{SSO}, s{S_SEAM}, {CNT + 4*seam:#x}")
        k(f"s_add_u32 s{SPO}, s28, s{SSO}")
    def seam_post(both_roles=False, filler=None):
        lab, l1, lp = k.newlabel(), k.newlabel(), k.newlabel()
        if both_roles:
            k(f"s_cmp_lg_u32 s{S_ROLE}, 0")
            k(f"s_cbranch_scc1 {lab}")
        k(f"s_cmp_lg_u32 s{S_W}, 0")
        k(f"s_cbranch_scc1 {l1}")
        k(f"s_mov_b64 exec, s[{SSIG}:{SSIG+1}]")
        k(f"buffer_atomic_add v15, v12, s[8:11], s{SSO} offen sc1")
        k("s_mov_b64 exec, -1")
        k.label(l1)
        if filler:
            filler()
        k(f"s_cmp_lg_u32 s{S_W}, 1")
        k(f"s_cbranch_scc1 {lab}")
        k("s_mov_b32 s95, 0x40000")
        k(f"s_add_u32 s66, s{SPO}, 128")
        k(f"s_add_u32 s67, s{SPO}, 256")
        k.label(lp)
        k(f"s_load_dword s63, s[4:5], s{SPO} glc")
        k("s_load_dword s64, s[4:5], s66 glc")
        k("s_load_dword s65, s[4:5], s67 glc")
        k("s_sub_u32 s95, s95, 1")
        k(f"s_cbranch_scc1 {lp}_x")
        k("s_waitcnt lgkmcnt(0)")
        k("s_xor_b32 s63, s63, s60")
        k("s_xor_b32 s64, s64, s61")
        k("s_xor_b32 s65, s65, s62")
        k("s_or_b32 s63, s63, s64")
        k("s_or_b32 s63, s63, s65")
        k(f"s_cbranch_scc1 {lp}")
        k.label(lp + "_x")
        k("s_waitcnt lgkmcnt(0)")
        k.label(lab)
    def lseam_pre(seam, sig_group, sig_member, poll_group):
        k(f"s_lshr_b32 s28, s{S_LAY}, {25 - 15}")
        k(f"s_add_u32 s28, s28, {FL + seam*16*512:#x}")
        sig_group()
        k("s_lshl_b32 s29, s29, 9")
        k(f"s_add_u32 s{SSO}, s28, s29")
        sig_member()
        k("s_lshl_b32 s29, s29, 2")
        k(f"s_add_u32 s{SSO}, s{SSO}, s29")
        poll_group()
        k("s_lshl_b32 s29, s29, 9")
        k(f"s_add_u32 s{SPO}, s28, s29")
        k("v_lshlrev_b32 v13, 2, v1")
    def lseam_post(nprod, filler=None):
        lab, l1, l2, lp = k.newlabel(), k.newlabel(), k.newlabel(), k.newlabel()
        k(f"s_cmp_lg_u32 s{S_W}, 0")
        k(f"s_cbranch_scc1 {l1}")
        k("s_mov_b64 exec, 1")
        k(f"s_cmp_lg_u32 s{S_FAST}, 0")
        k(f"s_cbranch_scc1 {l2}")
        k("buffer_wbl2 sc1")
        k("s_waitcnt vmcnt(0)")
        k(f"buffer_store_dword v15, off, s[8:11], s{SSO} sc0 sc1")
        k("s_mov_b64 exec, -1")
        k(f"s_branch {l1}")
        k.label(l2)
        k(f"buffer_store_dword v15, off, s[8:11], s{SSO}")
        k("s_mov_b64 exec, -1")
        k.label(l1)
        if filler:
            filler()
        k(f"s_cmp_lg_u32 s{S_W}, 1")
        k(f"s_cbranch_scc1 {lab}")
        k("s_mov_b32 s95, 0x40000")
        k(f"s_mov_b64 exec, {(1 << nprod) - 1:#x}")
        k.label(lp)
        k(f"buffer_load_dword v14, v13, s[8:11], s{SPO} offen sc1")
        k("s_waitcnt vmcnt(0)")
        k("v_cmp_ne_u32 vcc, 1, v14")
        k("s_sub_u32 s95, s95, 1")
        k(f"s_cbranch_vccz {lp}_x")
        k(f"s_cbranch_scc0 {lp}")
        k.label(lp + "_x")
        k("s_mov_b64 exec, -1")
        k.label(lab)
    g_qb = lambda: k(f"s_mov_b32 s29, s{S_QB}")
    g_hd = lambda: k(f"s_mov_b32 s29, s{S_HD}")
    g_rb = lambda: k(f"s_mov_b32 s29, s{S_RB}")
    g_cb = lambda: k(f"s_mov_b32 s29, s{S_CB}")
    g_rs2 = lambda: k(f"s_lshr_b32 s29, s{S_RS}, 1")
    def g_sm():
        k(f"s_and_b32 s29, s{S_RS}, 1")
        k("s_lshl_b32 s29, s29, 3")
        k(f"s_add_u32 s29, s29, s{S_CS}")
    def targets(t):
        for i in range(3):
            k(f"s_mov_b32 s{60+i}, {t[i] if i < len(t) else 0}")

    ACC = 32
    def c_layout(p):
        FB = ACC + p.MX * p.NB * 4
        if p.name == "gu":
            XBUF = [FB, FB + 8]; WBUF = [FB + 16, FB + 44]; top = FB + 72
        elif p.name == "qkv":
            XBUF = [FB, FB + 8]; WBUF = [FB + 16, FB + 48]; top = FB + 80
        else:
            XBUF = [FB, FB + 8]; WBUF = [FB + 16, FB + 56]; top = FB + 96
        return FB, XBUF, WBUF, top
    def acc(p, m, j):
        return ACC + (m * p.NB + j) * 4
    def c_units(p):
        FB, XBUF, WBUF, top = c_layout(p)
        U = []
        if p.name == "gu":
            for u in range(4):
                st, h = u >> 1, u & 1
                rd = []
                if h == 0:
                    rd += [(XBUF[st] + 4 * m, 5, st * p.STEP + 1024 * m) for m in range(2)]
                rd += [(WBUF[h] + 4 * j, 6, st * p.STEP + (8 + 7 * h + j) * 1024) for j in range(7)]
                mm = [(acc(p, m, 7 * h + j), WBUF[h] + 4 * j, XBUF[st] + 4 * m) for j in range(7) for m in range(2)]
                U.append((rd, mm))
        elif p.name == "qkv":
            for st in range(2):
                rd = [(XBUF[st] + 4 * m, 5, st * p.STEP + 1024 * m) for m in range(2)]
                rd += [(WBUF[st] + 4 * j, 6, st * p.STEP + (8 + j) * 1024) for j in range(8)]
                mm = [(acc(p, m, j), WBUF[st] + 4 * j, XBUF[st] + 4 * m) for j in range(8) for m in range(2)]
                U.append((rd, mm))
        else:
            for u in range(2):
                rd, mm = [], []
                for s_ in range(2):
                    st = 2 * u + s_
                    rd += [(XBUF[u] + 4 * s_, 5, st * p.STEP)]
                    rd += [(WBUF[u] + 20 * s_ + 4 * j, 6, st * p.STEP + (4 + j) * 1024) for j in range(5)]
                    mm += [(acc(p, 0, j), WBUF[u] + 20 * s_ + 4 * j, XBUF[u] + 4 * s_) for j in range(5)]
                U.append((rd, mm))
        return U
    AXR, AWR = [4, 5, 6, 30], [27, 28, 29, 31]
    def c_addr(p):
        k(f"s_mul_i32 s28, s{S_W}, {p.MX*1024}")
        for i in range(p.R):
            k(f"v_add_u32 v{AWR[i]}, {p.SL[i]:#x}, v3")
            k(f"v_add_u32 v{AXR[i]}, s28, v{AWR[i]}")
    def c_mainloop(p, swap, tag, tail_extra=(), after_b0=None):
        U = c_units(p)
        NUS = len(U)
        def rdi(r, slot, sp=False):
            if sp and r[1] == 5:
                return f"ds_read2st64_b64 {vr(r[0],4)}, v9 offset0:{r[2]//512} offset1:{r[2]//512+1}"
            return f"ds_read_b128 {vr(r[0],4)}, v{(AXR if r[1] == 5 else AWR)[slot]} offset:{r[2]}"
        def special(slot):
            if p.name != "wo":
                return False
            k("v_lshlrev_b32 v9, 3, v1")
            k(f"v_sub_u32 v9, v{AXR[slot]}, v9")
            return True
        extra = list(tail_extra)
        seen = set()
        def run(mm, rd, nex=0, mid=(), z=False):
            rd = list(rd)
            mid = list(mid)
            per = 1 if len(rd) <= len(mm) else 2
            for i, (a, w, x) in enumerate(mm):
                a_, b_ = (w, x) if swap else (x, w)
                c_ = "0" if z and a not in seen else vr(a, 4)
                seen.add(a)
                k(f"{MF} {vr(a,4)}, {vr(a_,4)}, {vr(b_,4)}, {c_}")
                if not rd and mid:
                    k(mid.pop(0))
                for _ in range(per):
                    if rd:
                        k(rd.pop(0))
                for _ in range(nex):
                    if extra:
                        k(extra.pop(0))
            for r in rd + mid:
                k(r)
        R = p.R
        def stage(slot, mid=(), z=False, nex=0, entry=None):
            for u in range(NUS):
                last = u == NUS - 1
                if entry and u == entry[0]:
                    k.label(entry[1])
                k("s_waitcnt lgkmcnt(0)")
                if last:
                    k("s_barrier")
                ns = (slot + 1) % R if last else slot
                run(U[u][1], [rdi(r, ns) for r in U[(u + 1) % NUS][0]], nex, mid if last else (), z)
        c_addr(p)
        nfull = p.nst - 1
        sp = special(0)
        npeel = 1 if p.big else 0
        u0 = NUS * p.skip // p.SPS
        k(f"s_mov_b32 s36, {(nfull - npeel + R - 1) // R}")
        k("s_barrier")
        ts(tag + 1)
        for r in U[u0][0]:
            k(rdi(r, 0, sp))
        if after_b0:
            after_b0()
        if p.name == "wo":
            for st in range(nfull):
                stage(st % R, nex=1 if st else 0)
        else:
            L = k.newlabel()
            if npeel:
                stage(0, (), True)
            p0 = (R - (nfull - npeel) % R) % R
            if p0 or u0:
                k(f"s_branch {L}_mid")
            k(".p2align 4")
            k.label(L)
            for pos in range(R):
                stage((npeel + pos - p0) % R, ["s_sub_u32 s36, s36, 1", "s_cmp_lg_u32 s36, 0"] if pos == R - 1 else (),
                      entry=(u0, L + "_mid") if pos == p0 and (p0 or u0) else None)
            k(f"s_cbranch_scc1 {L}")
        sl = nfull % R
        nt = NUS
        nm_ = sum(len(U[u][1]) for u in range(nt))
        nex = (len(extra) + nm_ - 1) // nm_
        for u in range(nt):
            sp = special(sl) if u < nt - 1 else False
            k("s_waitcnt lgkmcnt(0)")
            run(U[u][1], [rdi(r, sl, sp) for r in U[u + 1][0]] if u < nt - 1 else [], nex)
        assert not extra
        k.nop(3)
        ts(tag + 2)

    EXT = 216
    STR = 248
    def ext_reg(p, j):
        return EXT + 2 * j
    def c_ext_loads(p):
        npl = 2
        k(f"s_mul_i32 s28, s{S_CB}, {p.NB*p.WS}")
        k(f"s_add_u32 s28, s28, {p.wsrc + p.nsteps*1024:#x}")
        c, msk = DUMMY[p.name]
        k(f"s_cmp_eq_u32 s{S_CB}, {c}")
        k(f"s_cselect_b32 s30, 0, {p.WS}")
        k(f"v_lshlrev_b32 v9, {3 if npl == 2 else 4}, v1")
        for j in range(p.NB):
            if (msk >> j) & 1:
                k(f"s_mul_i32 s29, s30, {j}")
                k("s_add_u32 s29, s29, s28")
            else:
                k(f"s_add_u32 s29, s28, {j*p.WS}")
            k(f"buffer_load_dwordx{npl} {vr(ext_reg(p,j),npl)}, v9, s[8:11], s29 offen")
    def c_ext_build(p, k=k):
        for j in range(p.NB):
            r = ext_reg(p, j)
            k(f"v_add_f32 v10, v{r}, v{r+1}")
            k("v_cvt_pk_bf16_f32 v11, v10, v10")
            k("v_and_b32 v11, 0xffff0000, v11")
            k("v_sub_f32 v11, v10, v11")
            k(f"v_cvt_pk_bf16_f32 v{r}, v10, v11")
            k(f"v_cvt_pk_bf16_f32 v{r+1}, v10, v11")
    def c_zero_acc(p):
        for i in range(0, p.MX * p.NB * 4, 2):
            k(f"v_mov_b64 {vr(ACC+i,2)}, 0")
    def c_stats_loads(stats):
        T = STR
        k("v_lshlrev_b32 v9, 15, v8")
        k("v_lshl_add_u32 v9, v7, 3, v9")
        k(f"s_lshl_b32 s28, s{S_RB}, 2")
        k(f"s_add_u32 s28, s28, s{S_W}")
        k("s_lshl_b32 s28, s28, 8")
        k(f"s_add_u32 s28, s28, {stats:#x}")
        k("s_add_u32 s29, s28, 16384")
        for m in range(2):
            k(f"buffer_load_dwordx2 {vr(T+4*m,2)}, v9, s[8:11], s28 offen offset:{128*m} {LSC}")
            k(f"buffer_load_dwordx2 {vr(T+4*m+2,2)}, v9, s[8:11], s29 offen offset:{128*m} {LSC}")
    def c_stats_valu(wait=True):
        T = STR
        L = ["s_waitcnt vmcnt(0)"] if wait else []
        add = [f"v_add_f32 v{T+4*m+i}, v{T+4*m+i}, v{T+4*m+2+i}" for m in range(2) for i in range(2)]
        L += add
        for sw in ("v_permlane32_swap_b32", "v_permlane16_swap_b32"):
            L += [f"v_mov_b32 v{T+4*m+2+i}, v{T+4*m+i}" for m in range(2) for i in range(2)]
            L += ["s_nop 1"]
            L += [f"{sw} v{T+4*m+i}, v{T+4*m+2+i}" for m in range(2) for i in range(2)]
            L += ["s_nop 0"]
            L += add
        for m in range(2):
            t = T + 4 * m
            L += [f"v_mul_f32 v{t}, {f2u(-1.0/640):#x}, v{t}",
                  f"v_mul_f32 v{t+1}, {f2u(1.0/640):#x}, v{t+1}",
                  f"v_cvt_pk_bf16_f32 v{t+2}, v{t}, v{t}",
                  f"v_fma_f32 v{t+1}, -v{t}, v{t}, v{t+1}",
                  f"v_and_b32 v{t+3}, 0xffff0000, v{t+2}",
                  f"v_max_f32 v{t+1}, 0, v{t+1}",
                  f"v_sub_f32 v{t+3}, v{t}, v{t+3}",
                  f"v_add_f32 v{t+1}, {f2u(1e-5):#x}, v{t+1}",
                  f"v_cvt_pk_bf16_f32 v{t+3}, v{t+3}, v{t+3}",
                  f"v_rsq_f32 v{10+m}, v{t+1}"]
        return L
    def ext_mfma(p, j, swap):
        for m in range(2):
            x, r = STR + 4 * m + 2, ext_reg(p, j)
            a_, b_ = (r, x) if swap else (x, r)
            k(f"v_mfma_f32_16x16x16_bf16 {vr(acc(p,m,j),4)}, {vr(a_,2)}, {vr(b_,2)}, {vr(acc(p,m,j),4)}")

    def c_res_to_acc():
        for i in range(10):
            k(f"v_lshlrev_b32 v{ACC+2*i}, 16, v{RES+i}")
            k(f"v_and_b32 v{ACC+2*i+1}, 0xffff0000, v{RES+i}")

    def c_small_pre(xdst, sdst, layadd):
        small_addr()
        k("v_mov_b32 v14, v9")
        k(f"s_mov_b32 s29, {xdst:#x}")
        k("s_add_u32 s30, s30, s29")
        k("s_add_u32 s31, s31, s29")
        k("v_lshlrev_b32 v26, 3, v7")
        k(f"s_lshl_b32 s29, s{S_CS}, 14")
        k("s_lshl_b32 s28, s28, 7")
        k("s_add_u32 s29, s29, s28")
        k(f"s_add_u32 s29, s29, {sdst:#x}")
    def c_small_touch():
        if not TOUCH & 4:
            return
        k("buffer_load_dwordx4 v[200:203], v3, s[8:11], s30 offen sc1")
        k("buffer_load_dwordx4 v[200:203], v3, s[8:11], s30 offen offset:1024 sc1")
        k("buffer_load_dwordx4 v[200:203], v14, s[8:11], s31 offen sc1")
        k("buffer_load_dwordx2 v[200:201], v26, s[8:11], s29 offen sc1")
    def c_small_epilogue():
        T = 56
        for i in range(4):
            k(f"v_cvt_pk_bf16_f32 v{RES+i}, v{ACC+2*i}, v{ACC+2*i+1}")
        k(f"buffer_store_dwordx4 {vr(RES,4)}, v3, s[8:11], s30 offen {XSC}")
        for i in (8, 9):
            k(f"v_cvt_pk_bf16_f32 v{RES+i}, v{ACC+2*i}, v{ACC+2*i+1}")
            k(f"v_cvt_pk_bf16_f32 v{T+i-8}, v{ACC+2*i}, v{ACC+2*i+1}")
            k(f"v_cvt_pk_bf16_f32 v{T+i-6}, v{ACC+2*i}, v{ACC+2*i+1}")
        for i in range(4, 8):
            k(f"v_cvt_pk_bf16_f32 v{RES+i}, v{ACC+2*i}, v{ACC+2*i+1}")
        k(f"buffer_store_dwordx4 {vr(RES+4,4)}, v3, s[8:11], s30 offen offset:1024 {XSC}")
        k(f"v_permlane16_swap_b32 v{T}, v{T+2}")
        k(f"v_permlane16_swap_b32 v{T+1}, v{T+3}")
        k("s_mov_b32 exec_lo, 0xffff")
        k("s_mov_b32 exec_hi, 0xffff")
        k(f"buffer_store_dwordx4 {vr(T,4)}, v14, s[8:11], s31 offen {XSC}")
        k("s_mov_b64 exec, -1")
        k(f"v_pk_add_f32 v[10:11], {vr(ACC,2)}, {vr(ACC+2,2)}")
        k(f"v_pk_mul_f32 v[12:13], {vr(ACC,2)}, {vr(ACC,2)}")
        for i in range(2, 20, 2):
            if i >= 4:
                k(f"v_pk_add_f32 v[10:11], v[10:11], {vr(ACC+i,2)}")
            k(f"v_pk_fma_f32 v[12:13], {vr(ACC+i,2)}, {vr(ACC+i,2)}, v[12:13]")
        k("v_add_f32 v10, v10, v11")
        k("v_add_f32 v11, v12, v13")
        for sw in ("v_permlane32_swap_b32", "v_permlane16_swap_b32"):
            k("v_mov_b32 v12, v10")
            k("v_mov_b32 v13, v11")
            k("s_nop 1")
            k(f"{sw} v10, v12")
            k(f"{sw} v11, v13")
            k("s_nop 0")
            k("v_pk_add_f32 v[10:11], v[10:11], v[12:13]")
        k("s_mov_b64 exec, 0xffff")
        k(f"buffer_store_dwordx2 v[10:11], v26, s[8:11], s29 offen {XSC}")
        k("s_mov_b64 exec, -1")
        k("s_nop 1")

    def sig_rows_big():
        k(f"s_lshr_b32 s28, s{S_RS}, 1")
        k("s_lshl_b32 s28, s28, 13")
        k("v_lshl_add_u32 v12, v1, 9, s28")
        k(f"s_mov_b64 s[{SSIG}:{SSIG+1}], 0xffff")
    def idx_big():
        k(f"s_lshl_b32 s28, s{S_RB}, 4")
        k(f"s_add_u32 s28, s28, s{S_CB}")
    def idx_small():
        k(f"s_lshl_b32 s28, s{S_RS}, 3")
        k(f"s_add_u32 s28, s28, s{S_CS}")

    def c_raw(swap, tail, join):
        p = PH["qkv"]
        FB, XBUF, WBUF, top = c_layout(p)
        AW, AXx, AC = 192, 200, 202
        CB_, ONE, CS, SX, GR = [232, 240], 204, 208, 216, 224
        k("v_and_b32 v4, 3, v1")
        k("v_bfe_u32 v5, v1, 2, 2")
        k("v_lshlrev_b32 v6, 1, v5")
        k("v_and_b32 v27, 1, v8")
        k("v_lshl_add_u32 v6, v27, 3, v6")
        k("v_lshl_add_u32 v5, v8, 3, v5")
        k("v_lshlrev_b32 v5, 8, v5")
        k("v_add_u32 v5, 0x4000, v5")
        if swap:
            k("v_lshrrev_b32 v27, 1, v4")
            k("v_mul_u32_u24 v27, 40, v27")
            k("v_and_b32 v28, 1, v4")
            k("v_lshl_add_u32 v27, v28, 4, v27")
            k("v_mul_u32_u24 v28, 40, v4")
            k("v_and_b32 v29, 1, v4")
            k("v_mul_u32_u24 v29, 40, v29")
            src = [(27, 80 * (b >> 1) + 8 * (b & 1)) for b in range(6)] + [(28, 32), (29, 192)]
        else:
            k("v_lshlrev_b32 v27, 3, v4")
            src = [(27, 32 * b) for b in range(8)]
        for b, (rg, off) in enumerate(src):
            k(f"v_add_u32 v30, {off}, v{rg}")
            k("v_lshrrev_b32 v31, 4, v30")
            k("v_xor_b32 v31, v31, v6")
            k("v_and_b32 v30, 8, v30")
            k("v_lshl_add_u32 v30, v31, 4, v30")
            k(f"v_add_u32 v{AW+b}, v30, v5")
        for i in range(2):
            k(f"v_mov_b32 v{AC+i}, v{AW+i}")
            for w_ in range(1, 4):
                k(f"s_cmp_eq_u32 s{S_W}, {w_}")
                k("s_cselect_b64 vcc, -1, 0")
                k(f"v_cndmask_b32 v{AC+i}, v{AC+i}, v{AW+2*w_+i}, vcc")
        k("v_lshrrev_b32 v4, 1, v7")
        k("v_xor_b32 v4, v4, v8")
        k("v_lshlrev_b32 v4, 4, v4")
        k("v_lshl_add_u32 v4, v7, 7, v4")
        k(f"s_lshl_b32 s28, s{S_W}, 12")
        k(f"v_add_u32 v{AXx}, s28, v4")
        k(f"v_xor_b32 v{AXx+1}, 64, v{AXx}")
        for i in range(4):
            k(f"v_mov_b32 v{ONE+i}, 0x3f803f80")
        for i in list(range(ACC, ACC + 64, 2)) + list(range(CS, CS + 24, 2)):
            k(f"v_mov_b64 {vr(i,2)}, 0")
        def reads(u):
            so, st = (u >> 1) * 32768, u & 1
            r = [f"ds_read_b128 {vr(XBUF[st]+4*m,4)}, v{AXx+st} offset:{so + 2048*m}" for m in range(2)]
            for b in range(8):
                for h in range(2):
                    r.append(f"ds_read_b64_tr_b16 {vr(WBUF[st]+4*b+2*h,2)}, v{AW+b} offset:{so + 8192*st + 1024*h}")
            for i in range(2):
                for h in range(2):
                    r.append(f"ds_read_b64_tr_b16 {vr(CB_[st]+4*i+2*h,2)}, v{AC+i} offset:{so + 8192*st + 1024*h}")
            return r
        def mfmas(st):
            mm = []
            for j in range(8):
                for m in range(2):
                    w_, x_ = WBUF[st] + 4 * j, XBUF[st] + 4 * m
                    a_, b_ = (w_, x_) if swap else (x_, w_)
                    mm.append((acc(p, m, j), a_, b_))
            for m in range(2):
                mm.append((SX + 4 * m, ONE, XBUF[st] + 4 * m))
                mm.append((GR + 4 * m, XBUF[st] + 4 * m, XBUF[st] + 4 * m))
                mm.append((CS + 4 * m, ONE, CB_[st] + 4 * m))
            return [f"{MF} {vr(a,4)}, {vr(x,4)}, {vr(y,4)}, {vr(a,4)}" for a, x, y in mm]
        tog = [f"v_xor_b32 v{r}, 0x10000, v{r}" for r in range(AW, AW + 12)]
        def unit(u, nxt, pre=()):
            for x in pre:
                k(x)
            k("s_waitcnt lgkmcnt(0)")
            if u & 1 and nxt is not None:
                k("s_barrier")
            rd = reads(nxt) if nxt is not None else []
            for m_ in mfmas(u & 1):
                k(m_)
                for _ in range(2):
                    if rd:
                        k(rd.pop(0))
        k("s_mov_b32 s36, 4")
        k("s_barrier")
        ts(1)
        for x in reads(0):
            k(x)
        L = k.newlabel()
        k.label(L)
        touch()
        unit(0, 1)
        unit(1, 2)
        if TGAP:
            touch()
        unit(2, 3)
        unit(3, 0, tog + ["s_sub_u32 s36, s36, 1", "s_cmp_lg_u32 s36, 0"])
        k(f"s_cbranch_scc1 {L}")
        unit(0, 1)
        unit(1, 2)
        unit(2, 3)
        unit(3, None)
        k(f"s_lshl_b32 s28, s{S_W}, 10")
        k(f"s_add_u32 s28, s28, {140*1024}")
        k("v_lshl_add_u32 v4, v1, 3, s28")
        k(f"v_mov_b32 v5, {140*1024:#x}")
        k("v_lshl_add_u32 v5, v1, 3, v5")
        k("v_lshrrev_b32 v6, 2, v7")
        k("v_and_b32 v27, 3, v7")
        k("v_cmp_eq_u32 s[56:57], v6, v8")
        k("v_cmp_eq_u32 s[58:59], 0, v8")
        k("s_nop 1")
        for i in range(2):
            c = CS + 4 * i
            k(f"v_cndmask_b32 v{c}, 0, v{c}, s[58:59]")
            k(f"v_cvt_pk_bf16_f32 v{c+1}, v{c}, v{c}")
            k(f"v_and_b32 v{c+1}, 0xffff0000, v{c+1}")
            k(f"v_sub_f32 v{c+1}, v{c}, v{c+1}")
            k(f"v_cvt_pk_bf16_f32 v{c+2}, v{c}, v{c+1}")
            k(f"v_cvt_pk_bf16_f32 v{c+3}, v{c}, v{c+1}")
            k(f"ds_write_b64 v4, {vr(c+2,2)} offset:{512*i}")
        for m in range(2):
            t, g_ = STR + 4 * m, GR + 4 * m
            for i in range(1, 4):
                k(f"v_cmp_eq_u32 vcc, {i}, v27")
                k("s_nop 1")
                k(f"v_cndmask_b32 v{g_}, v{g_}, v{g_+i}, vcc")
            k(f"v_cndmask_b32 v{t}, 0, v{SX+4*m}, s[58:59]")
            k(f"v_cndmask_b32 v{t+1}, 0, v{g_}, s[56:57]")
            k(f"v_mov_b64 {vr(t+2,2)}, 0")
        k("s_waitcnt lgkmcnt(0)")
        k("s_barrier")
        for j in range(8):
            k(f"ds_read_b64 {vr(ext_reg(p,j),2)}, v5 offset:{512*j}")
        lab = k.newlabel()
        k("v_lshlrev_b32 v198, 5, v1")
        k(f"s_cmp_lg_u32 s{S_W}, 3")
        k(f"s_cbranch_scc1 {lab}")
        k("s_mov_b64 exec, 0xff")
        k("buffer_load_dword v199, v198, s[76:79], 0 offen sc1")
        k("s_mov_b64 exec, -1")
        k.label(lab)
        for x in tail:
            k(x)
        k("s_waitcnt lgkmcnt(0)")
        ts(2)
        k(f"s_branch {join}")

    def scale_pack(a, o, r):
        rr = vr(r & ~1, 2)
        k(f"v_pk_mul_f32 {vr(a,2)}, {vr(a,2)}, {rr} op_sel:[0,{r&1}] op_sel_hi:[1,{r&1}]")
        k(f"v_pk_mul_f32 {vr(a+2,2)}, {vr(a+2,2)}, {rr} op_sel:[0,{r&1}] op_sel_hi:[1,{r&1}]")
        k(f"v_cvt_pk_bf16_f32 v{o}, v{a}, v{a+1}")
        k(f"v_cvt_pk_bf16_f32 v{o+1}, v{a+2}, v{a+3}")
    p = PH["qkv"]
    FB, XBUF, WBUF, top_qkv = c_layout(p)
    def touch():
        lab = k.newlabel()
        k("s_cmp_eq_u32 s39, 0")
        k(f"s_cbranch_scc1 {lab}")
        k("s_mov_b64 exec, s[84:85]")
        k("buffer_load_dword v16, v17, s[80:83], s37 offen")
        k("s_mov_b64 exec, -1")
        k("s_add_u32 s37, s37, s38")
        k("s_sub_u32 s39, s39, 1")
        k.label(lab)
    k("s_lshr_b32 s28, s2, 3")
    k("v_and_b32 v9, 31, v1")
    k("v_mul_u32_u24 v9, 1280, v9")
    k("v_lshrrev_b32 v10, 5, v1")
    k("v_lshl_add_u32 v9, v10, 7, v9")
    k("s_and_b32 s29, s2, 1")
    k("s_lshl_b32 s29, s29, 5")
    k("s_add_u32 s29, s29, s28")
    k(f"s_mul_i32 s29, s29, {32*1280}")
    k("v_mul_u32_u24 v10, 7282, v1")
    k("v_lshrrev_b32 v10, 16, v10")
    k("v_mul_u32_u24 v11, 9, v10")
    k("v_sub_u32 v11, v1, v11")
    k("v_mul_u32_u24 v10, 3840, v10")
    k("v_lshl_add_u32 v10, v11, 7, v10")
    k(f"s_lshr_b32 s30, s{S_CB}, 2")
    k("s_mul_i32 s30, s30, 896")
    k(f"s_mul_i32 s28, s28, {4*3840}")
    k("s_add_u32 s30, s30, s28")
    k(f"s_mov_b32 s31, {128*3840}")
    k(f"s_cmp_eq_u32 s{S_W}, 0")
    k("s_cselect_b64 s[80:81], s[68:69], s[72:73]")
    k("s_cselect_b32 s82, s70, s74")
    k("s_mov_b32 s83, 0x00020000")
    k("s_cselect_b32 s37, s29, s30")
    k("s_cselect_b32 s38, 256, s31")
    k("s_mov_b32 s84, -1")
    k("s_cselect_b32 s85, -1, 15")
    k("s_cselect_b64 vcc, -1, 0")
    k("v_cndmask_b32 v17, v10, v9, vcc")
    k(f"s_mul_i32 s28, s38, {NT0}")
    k("s_add_u32 s37, s37, s28")
    k(f"s_cmp_lt_u32 s{S_W}, 2")
    k(f"s_cselect_b32 s39, {5 - NT0}, 0")
    for _ in range(NT1):
        touch()
    k(f"s_cmp_lg_u32 s{S_W}, 3")
    k("s_cbranch_scc1 L_c_layer2")
    k("v_mov_b64 v[10:11], 0")
    k("v_lshlrev_b32 v9, 3, v1")
    k("s_lshl_b32 s28, s2, 9")
    k(f"s_add_u32 s28, s28, {CNT:#x}")
    k(f"buffer_store_dwordx2 v[10:11], v9, s[8:11], s28 offen {SC}")
    k("s_getreg_b32 s46, hwreg(HW_REG_XCC_ID)")
    k("s_and_b32 s46, s46, 7")
    k("s_lshl_b32 s28, s46, 5")
    k("v_mov_b32 v2, 1")
    k("s_waitcnt vmcnt(0)")
    k("s_mov_b64 exec, 1")
    k("buffer_atomic_add v2, off, s[76:79], s28 sc0 sc1")
    k("s_mov_b64 exec, -1")
    k("s_branch L_c_layer2")
    k.label("L_c_layer")
    k("s_barrier")
    c_stats_loads(STA)
    k.label("L_c_layer2")
    ts(0)
    k(f"s_cmp_ge_u32 s{S_CB}, 11")
    k("s_cbranch_scc1 L_c_v")
    k("v_and_b32 v9, 7, v7")
    k("v_lshrrev_b32 v12, 3, v7")
    k("v_lshl_add_u32 v9, v12, 4, v9")
    k("v_lshrrev_b32 v12, 1, v8")
    k(f"v_mul_u32_u24 v12, {UNIT}, v12")
    k("v_and_b32 v13, 1, v8")
    k("v_lshl_add_u32 v12, v13, 9, v12")
    k("v_lshl_add_u32 v12, v9, 4, v12")
    k(f"v_mul_u32_u24 v13, {UNIT}, v8")
    k("v_lshl_add_u32 v13, v7, 4, v13")
    k(f"s_mul_i32 s28, s{S_CB}, {6*UNIT}")
    k(f"s_mul_i32 s29, s{S_RB}, 10240")
    k("s_add_u32 s28, s28, s29")
    k(f"s_add_u32 s28, s28, s{S_LAY}")
    k(f"s_add_u32 s28, s28, {QKVI:#x}")
    k(f"s_lshl_b32 s29, s{S_W}, 10")
    k("s_add_u32 s30, s28, s29")
    k(f"s_and_b32 s29, s{S_W}, 1")
    k("s_lshl_b32 s29, s29, 9")
    k("s_add_u32 s31, s28, s29")
    k(f"s_lshr_b32 s29, s{S_W}, 1")
    k("s_lshl_b32 s29, s29, 8")
    k("s_add_u32 s31, s31, s29")
    k("s_add_u32 s31, s31, 4096")
    k(f"s_add_u32 s29, s31, {4*UNIT}")
    QKT = ["s_nop 0", f"v_mul_f32 v10, {f2u(SQRTC):#x}, v10", f"v_mul_f32 v11, {f2u(SQRTC):#x}, v11"]
    k(f"s_cmp_eq_u32 s{S_LAY}, 0")
    k("s_cbranch_scc1 L_raw_qk")
    c_mainloop(p, True, 0, c_stats_valu() + QKT)
    k.label("L_join_qk")
    for j in (0, 1, 2, 3, 6):
        ext_mfma(p, j, True)
    for b in range(3):
        if b == 2:
            for m in range(2):
                scale_pack(acc(p, m, 6), FB + 24 + 2 * m, 10 + m)
            k(f"buffer_store_dwordx4 {vr(FB+24,4)}, v13, s[8:11], s31 offen {SC}")
            k(f"s_cmp_eq_u32 s{S_CB}, 10")
            k("s_cbranch_scc1 L_c_qk_skip")
        for m in range(2):
            o = FB + 8 * b + 4 * m
            scale_pack(acc(p, m, 2 * b), o, 10 + m)
            scale_pack(acc(p, m, 2 * b + 1), o + 2, 10 + m)
            k(f"buffer_store_dwordx4 {vr(o,4)}, v12, s[8:11], s30 offen offset:{128*m} {SC}")
            if b == 0:
                for j in ((4, 5), (7,))[m]:
                    ext_mfma(p, j, True)
        k(f"s_add_u32 s30, s30, {2*UNIT}")
    for m in range(2):
        scale_pack(acc(p, m, 7), FB + 28 + 2 * m, 10 + m)
    k("s_mov_b64 exec, 0xffffffff")
    k(f"buffer_store_dwordx4 {vr(FB+28,4)}, v13, s[8:11], s29 offen {SC}")
    k("s_mov_b64 exec, -1")
    k.label("L_c_qk_skip")
    k("v_lshrrev_b32 v9, 3, v1")
    k("v_and_b32 v10, 7, v1")
    k(f"s_mul_i32 s28, s{S_CB}, 6")
    k("v_add_u32 v14, s28, v9")
    k("v_and_b32 v12, 31, v14")
    k("v_lshl_add_u32 v12, v12, 3, v10")
    k("v_lshlrev_b32 v12, 9, v12")
    k(f"s_lshr_b32 s28, s{S_RB}, 1")
    k("v_cmp_eq_u32 s[30:31], s28, v10")
    k("v_cmp_le_u32 vcc, 32, v14")
    k("s_or_b64 s[30:31], s[30:31], vcc")
    k("v_cmp_gt_u32 vcc, 64, v14")
    k("s_and_b64 s[30:31], s[30:31], vcc")
    k("v_cmp_gt_u32 vcc, 6, v9")
    k(f"s_and_b64 s[{SSIG}:{SSIG+1}], s[30:31], vcc")
    k("s_branch L_c_attn")

    k.label("L_c_v")
    RSV = top_qkv
    VAD = RSV + 8
    k(f"s_mul_i32 s30, s{S_RB}, 10240")
    k(f"s_mul_i32 s29, s{S_W}, 1280")
    k("s_add_u32 s30, s30, s29")
    k(f"s_add_u32 s30, s30, s{S_LAY}")
    k(f"s_add_u32 s30, s30, {QKVI + 32*UNIT + 5120:#x}")
    k(f"s_sub_u32 s29, s{S_CB}, 11")
    k("s_lshl_b32 s29, s29, 7")
    k("v_mul_u32_u24 v9, 320, v8")
    k("v_add_u32 v10, s29, v7")
    for j in range(8):
        k("v_mul_u32_u24 v12, 3277, v10")
        k("v_lshrrev_b32 v12, 16, v12")
        k(f"v_mul_u32_u24 v13, {UNIT-320}, v12")
        k("v_lshl_add_u32 v13, v10, 4, v13")
        k(f"v_add_u32 v{VAD+j}, v13, v9")
        k("v_add_u32 v10, 16, v10")
    k(f"s_lshl_b32 s28, s{S_W}, 7")
    k(f"s_add_u32 s28, s28, {SCRATCH}")
    k("v_lshl_add_u32 v12, v7, 2, s28")
    k("v_lshl_add_u32 v13, v8, 4, s28")
    VT = ["s_nop 0", "ds_write_b32 v12, v10", "ds_write_b32 v12, v11 offset:64"]
    k(f"s_cmp_eq_u32 s{S_LAY}, 0")
    k("s_cbranch_scc1 L_raw_v")
    c_mainloop(p, False, 0, c_stats_valu() + VT)
    k.label("L_join_v")
    k("s_waitcnt lgkmcnt(0)")
    k(f"ds_read_b128 {vr(RSV,4)}, v13")
    k(f"ds_read_b128 {vr(RSV+4,4)}, v13 offset:64")
    for j in range(8):
        ext_mfma(p, j, False)
    k("s_waitcnt lgkmcnt(0)")
    for j in range(8):
        o = FB + 4 * j
        for m in range(2):
            a = acc(p, m, j)
            k(f"v_pk_mul_f32 {vr(a,2)}, {vr(a,2)}, {vr(RSV+4*m,2)}")
            k(f"v_pk_mul_f32 {vr(a+2,2)}, {vr(a+2,2)}, {vr(RSV+4*m+2,2)}")
            k(f"v_cvt_pk_bf16_f32 v{o+2*m}, v{a}, v{a+1}")
            k(f"v_cvt_pk_bf16_f32 v{o+2*m+1}, v{a+2}, v{a+3}")
        k(f"buffer_store_dwordx4 {vr(o,4)}, v{VAD+j}, s[8:11], s30 offen {SC}")
    k(f"s_sub_u32 s28, s{S_CB}, 11")
    k("s_lshl_b32 s30, s28, 7")
    k("s_mul_i32 s31, s30, 3277")
    k("s_lshr_b32 s31, s31, 16")
    k("s_add_u32 s30, s30, 127")
    k("s_mul_i32 s30, s30, 3277")
    k("s_lshr_b32 s30, s30, 16")
    k("s_and_b32 s28, s28, 1")
    k("s_lshl_b32 s28, s28, 7")
    k("s_add_u32 s28, s28, 128")
    k("s_lshl_b32 s29, s31, 12")
    k("s_add_u32 s28, s28, s29")
    k("v_lshl_add_u32 v12, v1, 9, s28")
    k("v_lshrrev_b32 v9, 3, v1")
    k("v_add_u32 v9, s31, v9")
    k(f"v_cmp_ge_u32 s[{SSIG}:{SSIG+1}], s30, v9")

    k.label("L_c_attn")
    M16 = "v_mfma_f32_32x32x16_bf16"
    M8 = "v_mfma_f32_32x32x8_bf16"
    QL = [32, 36]; QHA = [40, 42]; QHB = [44, 46]
    S = [48, 64]; O = [80, 96]; NM = [112, 128]; P = 144
    KL = [152, 156]; KH = 160; V = [164, 172]
    A3, A4, A5, A6, A7, A8 = 26, 27, 28, 29, 30, 31
    VS1, VS2, VA0 = 180, 181, 182
    SUP, SPASS, SSEG, SSTR = 48, 50, 51, 52
    def idx_attn():
        k(f"s_mul_i32 s28, s{S_HD}, 20")
        k("s_add_u32 s29, s28, 19")
        k("s_lshr_b32 s28, s28, 7")
        k("s_lshr_b32 s29, s29, 7")
        k("s_and_b32 s30, s28, s29")
        k("s_or_b32 s31, s28, s29")
        k("s_and_b32 s30, s30, 1")
        k("s_xor_b32 s30, s30, 1")
        k("s_lshl_b32 s30, s30, 4")
        k("s_and_b32 s31, s31, 1")
        k("s_lshl_b32 s31, s31, 4")
        targets([18, "s30", "s31"])
        k(f"s_lshl_b32 s28, s{S_HD}, 3")
        k(f"s_add_u32 s28, s28, s{S_QB}")
    k(f"v_mov_b32 v{A3}, v3")
    k(f"v_and_b32 v{A6}, 31, v1")
    k(f"v_lshrrev_b32 v{A7}, 5, v1")
    k("v_and_b32 v9, 7, v1")
    k(f"v_lshlrev_b32 v{A8}, 4, v9")
    k("v_bfe_u32 v9, v1, 4, 1")
    k(f"v_lshl_add_u32 v{A8}, v9, 7, v{A8}")
    k("v_and_b32 v9, 8, v1")
    k(f"v_add_u32 v{A8}, v{A8}, v9")
    k(f"v_lshl_add_u32 v{A4}, v{A7}, 8, v{A8}")
    k(f"v_cmp_gt_u32 s[30:31], 28, v{A6}")
    k("s_mov_b32 s28, 0xfff00000")
    k("s_mov_b32 s29, 0xfff00000")
    k(f"v_mul_u32_u24 v9, 192, v{A7}")
    k("v_sub_u32 v9, 192, v9")
    k("v_mov_b32 v10, 144")
    k("v_cndmask_b32 v9, v9, v10, s[30:31]")
    k("s_mov_b32 s30, 0x01100000")
    k("s_mov_b32 s31, 0x01100000")
    k("v_mov_b32 v10, 128")
    k("v_cndmask_b32 v9, v9, v10, s[30:31]")
    k(f"v_mul_u32_u24 v{VA0}, 320, v{A7}")
    k(f"v_lshl_add_u32 v{VA0}, v{A6}, 4, v{VA0}")
    k(f"v_add_u32 v{VA0}, 5120, v{VA0}")
    k(f"v_cndmask_b32 v{VA0}, v{VA0}, v9, s[28:29]")
    k("v_mov_b32 v9, 1280")
    k(f"v_cndmask_b32 v{VS1}, v9, 0, s[28:29]")
    k("v_mov_b32 v9, 6400")
    k(f"v_cndmask_b32 v{VS2}, v9, 0, s[28:29]")
    k(f"s_mov_b32 s{SUP}, 0")
    k(f"s_mov_b32 s{SUP+1}, -1")
    k(f"s_mov_b32 s{SPASS}, 0")
    k(f"s_movk_i32 s{SSTR}, 10240")
    ts(3)
    k(f"s_add_u32 s{SSO}, s{S_SEAM}, {CNT:#x}")
    def attn_dep():
        lab = k.newlabel()
        k(f"s_cmp_lg_u32 s{S_LAY}, 0")
        k(f"s_cbranch_scc1 {lab}")
        get_coords()
        res_load()
        k.label(lab)
        seam_pre(0, idx_attn)
        k(f"s_mul_i32 s28, s{S_HD}, {UNIT}")
        k(f"s_add_u32 s28, s28, s{S_LAY}")
        k(f"s_add_u32 s39, s28, {QKVI + 32*UNIT:#x}")
        k("s_add_u32 s38, s39, 4096")
        k(f"s_lshl_b32 s29, s{S_QB}, 1")
        k(f"s_lshr_b32 s30, s{S_W}, 1")
        k("s_add_u32 s29, s29, s30")
        k("s_mul_i32 s29, s29, 10240")
        k("s_add_u32 s28, s28, s29")
        k(f"s_add_u32 s28, s28, {QKVI:#x}")
        k(f"s_and_b32 s30, s{S_W}, 1")
        k("s_lshl_b32 s29, s30, 11")
        k("s_add_u32 s29, s29, s28")
        k("s_lshl_b32 s30, s30, 8")
        k("s_add_u32 s30, s30, s28")
        k("s_add_u32 s30, s30, 4096")
    def zero_o():
        for i in range(0, 32, 2):
            k(f"v_mov_b64 {vr(O[0]+i,2)}, 0")
        for i in (0, 2):
            k(f"v_mov_b64 {vr(P+4+i,2)}, 0")
            k(f"v_mov_b64 {vr(V[1]+4+i,2)}, 0")
    def k0_loads():
        k(f"buffer_load_dwordx4 {vr(KL[0],4)}, v3, s[8:11], s39 offen {LSC}")
        k(f"buffer_load_dwordx2 {vr(KH,2)}, v{A4}, s[8:11], s38 offen {LSC}")
    zero_o()
    k("s_waitcnt vmcnt(0)")
    k(f"s_xor_b32 s28, s{S_W}, 3")
    k(f"s_or_b32 s28, s28, s{S_LAY}")
    k("s_cbranch_scc1 L_c_tkdone")
    k("v_lshlrev_b32 v198, 5, v1")
    k("s_mov_b32 s29, 0x40000")
    k("s_mov_b64 exec, 0xff")
    k.label("L_c_tkl")
    k("s_mov_b32 s30, 0")
    for i in range(8):
        k(f"v_readlane_b32 s31, v199, {i}")
        k("s_add_u32 s30, s30, s31")
    k("s_cmp_eq_u32 s30, 256")
    k("s_cbranch_scc1 L_c_tkx")
    k("s_sub_u32 s29, s29, 1")
    k("s_cbranch_scc1 L_c_tkx")
    k("buffer_load_dword v199, v198, s[76:79], 0 offen sc1")
    k("s_waitcnt vmcnt(0)")
    k("s_branch L_c_tkl")
    k.label("L_c_tkx")
    k("v_cmp_ne_u32 vcc, 32, v199")
    k("v_readfirstlane_b32 s30, v2")
    k("s_lshl_b32 s31, s46, 5")
    k("s_add_u32 s30, s30, s31")
    k("s_add_u32 s30, s30, 256")
    k("s_and_b32 s28, s2, 7")
    k("s_lshl_b32 s28, s28, 5")
    k("s_lshr_b32 s29, s2, 3")
    k("s_add_u32 s28, s28, s29")
    if FORCE_SLOW:
        k("s_mov_b32 s28, s2")
        k("s_mov_b64 vcc, 1")
    k("s_cmp_eq_u64 vcc, 0")
    k("s_cselect_b32 s28, s30, s28")
    k("s_mov_b64 exec, -1")
    k("v_mov_b32 v198, s28")
    k(f"v_mov_b32 v199, {SCRATCH + 1024:#x}")
    k("ds_write_b32 v199, v198")
    k("s_waitcnt lgkmcnt(0)")
    k.label("L_c_tkdone")
    k("s_barrier")
    ts(4)
    seam_post(filler=attn_dep)
    k("s_barrier")
    ts(8)
    k0_loads()
    for q in range(2):
        k(f"buffer_load_dwordx4 {vr(QL[q],4)}, v3, s[8:11], s29 offen offset:{1024*q} {LSC}")
        k(f"buffer_load_dwordx2 {vr(QHA[q],2)}, v{A8}, s[8:11], s30 offen offset:{512*q} {LSC}")
    k("s_waitcnt vmcnt(0)")
    for q in range(2):
        for i in range(2):
            k(f"v_cndmask_b32 v{QHB[q]+i}, 0, v{QHA[q]+i}, s[{SUP}:{SUP+1}]")
            k(f"v_cndmask_b32 v{QHA[q]+i}, v{QHA[q]+i}, 0, s[{SUP}:{SUP+1}]")
    def rdK(b, t):
        c, tt = divmod(t, 4)
        return f"ds_read_b128 {vr(KL[b],4)}, v{A3} offset:{c*10240 + tt*1024}"
    def rdH(pp, c):
        return f"ds_read_b64 {vr(KH+2*pp,2)}, v{A4} offset:{c*10240 + 4096 + pp*512}"
    def rdV(b):
        return [f"ds_read_b128 {vr(V[b],4)}, v{A5}", f"ds_read_b128 {vr(V[b]+4,4)}, v{A5} offset:640"]
    def smfma(sb, t, q, c):
        qh = QHA[q] if (t & 3) < 2 else QHB[q]
        return [f"{M16} {vr(S[sb],16)}, {vr(KL[t&1],4)}, {vr(QL[q],4)}, {c}",
                f"{M8} {vr(S[sb],16)}, {vr(KH+2*(t&1),2)}, {vr(qh,2)}, {vr(S[sb],16)}"]
    def rowmax_into(dst, sb, first):
        s = S[sb]
        if first:
            k(f"v_max3_f32 v{dst}, v{s}, v{s+1}, v{s+2}")
            rest = list(range(3, 16))
        else:
            rest = list(range(16))
        while len(rest) >= 2:
            k(f"v_max3_f32 v{dst}, v{dst}, v{s+rest[0]}, v{s+rest[1]}")
            rest = rest[2:]
        if rest:
            k(f"v_max_f32 v{dst}, v{dst}, v{s+rest[0]}")
    f0, f1 = smfma(0, 0, 0, "0"), smfma(1, 0, 1, "0")
    for x in (f0[0], f1[0], f0[1], f1[1]):
        k(x)
    k.nop(11)
    rowmax_into(10, 0, True)
    rowmax_into(11, 1, True)
    k.label("L_attn_start")
    k("v_mov_b32 v12, v10")
    k("v_mov_b32 v13, v11")
    k("s_nop 1")
    k("v_permlane32_swap_b32 v10, v12")
    k("v_permlane32_swap_b32 v11, v13")
    k("s_nop 1")
    k("v_max_f32 v10, v10, v12")
    k("v_max_f32 v11, v11, v13")
    k("v_sub_f32 v10, 0, v10")
    k("v_sub_f32 v12, 0, v11")
    k("v_mov_b32 v11, v10")
    k("v_mov_b32 v13, v12")
    for i in range(0, 16, 2):
        k(f"v_mov_b64 {vr(NM[0]+i,2)}, v[10:11]")
    k(f"v_mov_b32 v{A5}, v{VA0}")
    k(f"s_cmp_lg_u32 s{SPASS}, 0")
    for x in smfma(0, 0, 0, vr(NM[0], 16)):
        k(x)
    for i in range(0, 16, 2):
        k(f"v_mov_b64 {vr(NM[1]+i,2)}, v[12:13]")
    k(f"s_cselect_b32 s{SSEG}, 2, 0")
    k("s_cselect_b32 s36, 16, 1")
    k("s_cbranch_scc1 L_attn_nock0")
    k("s_barrier")
    k.label("L_attn_nock0")
    ts(9)
    for x in rdV(0) + [rdK(1, 1), rdH(1, 0)]:
        k(x)
    k(f"v_add_u32 v{A5}, v{VS1}, v{A5}")
    k(f"v_exp_f32 v{S[0]}, v{S[0]}")
    k(f"v_exp_f32 v{S[0]+1}, v{S[0]+1}")
    k(".p2align 6")
    k.label("L_attn_loop")
    for t in range(4):
        for q in range(2):
            a = S[q]
            nt, nq = (t, 1) if q == 0 else (t + 1, 0)
            pt, pq = (t - 1, 1) if q == 0 else (t, 0)
            sm = smfma(nq, nt, nq, vr(NM[nq], 16))
            ex = [f"v_exp_f32 v{a+i}, v{a+i}" for i in range(16)]
            cv = [f"v_cvt_pk_bf16_f32 v{P+i}, v{a+2*i}, v{a+2*i+1}" for i in range(8)]
            nex = [f"v_exp_f32 v{S[nq]+i}, v{S[nq]+i}" for i in range(2)]
            pvb = f"{M16} {vr(O[pq],16)}, {vr(V[pt&1]+4,4)}, {vr(P+4,4)}, {vr(O[pq],16)}"
            pva = f"{M16} {vr(O[q],16)}, {vr(V[t&1],4)}, {vr(P,4)}, {vr(O[q],16)}"
            g1 = ex[2:6] + cv[0:2]
            g2 = ex[6:10] + cv[2:4]
            g3 = ex[10:14] + cv[4:6]
            g4 = ex[14:16] + cv[6:8] + nex
            if q == 0:
                g3[0:0] = ["s_waitcnt lgkmcnt(0)"] + rdV((t + 1) & 1) + [rdK(t & 1, t + 2)] + ([rdH(t & 1, 1)] if t >= 2 else [])
                g4 += [f"v_add_u32 v{A5}, v{VS2 if t == 2 else VS1}, v{A5}"]
            elif t == 3:
                g1[0:0] = ["s_sub_u32 s36, s36, 1"]
                g3[0:0] = ["s_cmp_lg_u32 s36, 0"]
                g3 += [f"v_add_u32 v{x}, s{SSTR}, v{x}" for x in (A3, A4)]
            for x in [sm[0]] + g1 + [sm[1]] + g2 + [pvb] + g3 + [pva] + g4:
                k(x)
    k("s_cbranch_scc1 L_attn_loop")
    k(f"s_cmp_lt_u32 s{SSEG}, 2")
    k("s_cbranch_scc1 L_attn_ck")
    k(f"{M16} {vr(O[1],16)}, {vr(V[1]+4,4)}, {vr(P+4,4)}, {vr(O[1],16)}")
    k("s_waitcnt lgkmcnt(0)")
    ts(10)
    k(f"s_xor_b32 s28, s{S_W}, 2")
    k(f"s_or_b32 s28, s28, s{S_LAY}")
    k("s_cbranch_scc1 L_attn_nopc")
    k("v_lshlrev_b32 v184, 9, v1")
    k(f"s_mov_b32 s28, {CNT + 384:#x}")
    k("s_mov_b32 exec_hi, 0")
    k("buffer_load_dword v185, v184, s[8:11], s28 offen sc1")
    k("s_mov_b64 exec, -1")
    k.label("L_attn_nopc")
    for x in (A3, A4):
        k(f"v_subrev_u32 v{x}, {UNIT}, v{x}")
    k(f"v_bfe_u32 v9, v{A6}, 3, 1")
    k("v_mul_u32_u24 v9, 20480, v9")
    k(f"v_and_b32 v12, 7, v{A6}")
    k(f"v_lshrrev_b32 v13, 4, v{A6}")
    k("v_lshl_add_u32 v12, v13, 3, v12")
    k("v_lshl_add_u32 v14, v12, 4, v9")
    k(f"v_lshl_add_u32 v14, v{A7}, 8, v14")
    k("v_lshl_add_u32 v9, v12, 3, v9")
    k(f"v_mul_u32_u24 v13, 40960, v{A7}")
    k("v_add_u32 v9, v9, v13")
    k(f"s_lshl_b32 s28, s{S_QB}, 2")
    k(f"s_add_u32 s28, s28, s{S_W}")
    k("s_mul_i32 s28, s28, 81920")
    k(f"s_add_u32 s28, s28, s{S_LAY}")
    k(f"s_add_u32 s28, s28, {OF:#x}")
    k(f"s_lshl_b32 s29, s{S_HD}, 9")
    k("s_add_u32 s29, s29, s28")
    k("s_add_u32 s29, s29, 2048")
    for q in range(2):
        k(f"v_cndmask_b32 v{10+q}, v{O[q]+12}, v{O[q]+8}, s[{SUP}:{SUP+1}]")
    k("v_add_f32 v12, v10, v11")
    k(f"v_cmp_ngt_f32 vcc, {f2u(2.0**30):#x}, v12")
    k("v_rcp_f32 v10, v10")
    k("v_rcp_f32 v11, v11")
    k(f"s_lshr_b32 s30, s{S_HD}, 3")
    k(f"s_and_b32 s31, s{S_HD}, 16")
    k("s_add_u32 s30, s30, s31")
    k("s_lshl_b32 s30, s30, 10")
    k(f"s_and_b32 s31, s{S_HD}, 1")
    k("s_lshl_b32 s31, s31, 9")
    k("s_add_u32 s30, s30, s31")
    k(f"s_and_b32 s31, s{S_HD}, 6")
    k("s_lshl_b32 s31, s31, 6")
    k("s_add_u32 s30, s30, s31")
    k("s_add_u32 s30, s30, s28")
    k("s_add_u32 s31, s29, 40960")
    k(f"s_cmp_lg_u32 s{SPASS}, 0")
    k("s_cbranch_scc1 L_attn_out")
    k("s_cbranch_vccnz L_attn_slow")
    k.label("L_attn_out")
    for q in range(2):
        o = S[q]
        for i in range(3):
            scale_pack(O[q] + 4 * i, o + 2 * i, 10 + q)
        k(f"buffer_store_dwordx4 {vr(o,4)}, v14, s[8:11], s{29+2*q} offen {SC}")
    k("s_nop 0")
    for i in range(2):
        k(f"v_permlane32_swap_b32 v{S[0]+4+i}, v{S[1]+4+i}")
    k(f"buffer_store_dwordx2 {vr(S[0]+4,2)}, v9, s[8:11], s30 offen {SC}")
    ts(11)
    k(f"s_lshl_b32 s28, s{S_QB}, 14")
    k(f"s_and_b32 s29, s{S_HD}, 1")
    k("s_lshl_b32 s29, s29, 7")
    k("s_add_u32 s28, s28, s29")
    k("v_lshl_add_u32 v12, v1, 9, s28")
    k(f"s_mov_b64 s[{SSIG}:{SSIG+1}], 0xffffffff")
    targets([16, 16])
    seam_pre(1, idx_small)
    c_res_to_acc()
    k("s_waitcnt vmcnt(0)")
    k(f"s_xor_b32 s28, s{S_W}, 2")
    k(f"s_or_b32 s28, s28, s{S_LAY}")
    k("s_cbranch_scc1 L_attn_pcok")
    k("v_lshlrev_b32 v184, 9, v1")
    k("v_mov_b32 v186, 31")
    k("v_mov_b32 v187, 30")
    k("v_cmp_lt_u32 vcc, 11, v1")
    k(f"s_mov_b32 s28, {CNT + 384:#x}")
    k("s_mov_b32 s29, 0x40000")
    k("v_cndmask_b32 v186, v186, v187, vcc")
    k("s_mov_b32 exec_hi, 0")
    k.label("L_attn_pchk")
    k("v_cmp_ne_u32 vcc, v186, v185")
    k("s_sub_u32 s29, s29, 1")
    k("s_cbranch_scc1 L_attn_pcx")
    k("s_cbranch_vccz L_attn_pcx")
    k("s_sleep 8")
    k("buffer_load_dword v185, v184, s[8:11], s28 offen sc1")
    k("s_waitcnt vmcnt(0)")
    k("s_branch L_attn_pchk")
    k.label("L_attn_pcx")
    k("s_mov_b64 exec, -1")
    k.label("L_attn_pcok")
    k("s_barrier")
    ts(12)
    seam_post(filler=lambda: c_ext_loads(PH["gu"]))

    k("s_barrier")
    ts(16)
    if POLL2:
        k("s_waitcnt vmcnt(0)")
    c_small_pre(XB, STB, 0)
    eb = ["s_waitcnt vmcnt(0)"]
    c_ext_build(PH["gu"], eb.append)
    c_mainloop(PH["wo"], True, 16, eb)
    k.nop(5)
    c_small_epilogue()
    ts(19)
    lseam_pre(1, g_rs2, g_sm, g_rb)
    k("s_waitcnt vmcnt(0)")
    k("s_barrier")
    ts(20)
    lseam_post(16)

    p = PH["gu"]
    FB, XBUF, WBUF, top_gu = c_layout(p)
    k("s_barrier")
    ts(24)
    if POLL2:
        k("s_waitcnt vmcnt(0)")
    c_stats_loads(STB)
    k(f"s_lshl_b32 s28, s{S_RB}, 2")
    k(f"s_add_u32 s28, s28, s{S_W}")
    k(f"s_mul_i32 s28, s28, {2*55296}")
    k(f"s_add_u32 s28, s28, {HF:#x}")
    k(f"s_mul_i32 s29, s{S_CB}, 3072")
    k("s_add_u32 s30, s28, s29")
    k("s_add_u32 s31, s30, 55296")
    k(f"s_lshl_b32 s29, s{S_CB}, 9")
    k("s_add_u32 s29, s28, s29")
    k(f"s_add_u32 s29, s29, {46*1024}")
    k("v_and_b32 v9, 1, v8")
    k("v_mul_u32_u24 v9, 55296, v9")
    k("v_lshrrev_b32 v12, 1, v8")
    k("v_lshl_add_u32 v9, v12, 8, v9")
    k("v_lshl_add_u32 v9, v7, 4, v9")
    if TOUCH & 8:
        k("buffer_load_dwordx4 v[244:247], v9, s[8:11], s29 offen sc1")
        for j in range(3):
            for m in range(2):
                k(f"buffer_load_dwordx4 v[244:247], v3, s[8:11], s{30+m} offen offset:{1024*j} sc1")
    c_mainloop(p, True, 24, c_stats_valu() + ["s_nop 0", "v_mul_f32 v10, v10, v10", "v_mul_f32 v11, v11, v11"])
    def glu(m, b, o):
        g_, u_ = acc(p, m, 2 * b), acc(p, m, 2 * b + 1)
        for i in range(4):
            k(f"v_max_f32 v{g_+i}, 0, v{g_+i}")
        for i in (0, 2):
            k(f"v_pk_mul_f32 {vr(g_+i,2)}, {vr(g_+i,2)}, {vr(u_+i,2)}")
        scale_pack(g_, o, 10 + m)
    for j in (0, 1, 2, 3, 12, 13):
        ext_mfma(p, j, True)
    later = [4, 5, 6, 7, 8, 9, 10, 11]
    for j in range(3):
        for m in range(2):
            o = FB + 4 + 8 * j + 4 * m
            for h in range(2):
                glu(m, 2 * j + h, o + 2 * h)
                for _ in range(2):
                    if later:
                        ext_mfma(p, later.pop(0), True)
            k(f"buffer_store_dwordx4 {vr(o,4)}, v3, s[8:11], s{30+m} offen offset:{1024*j} {HSC}")
        if j == 0:
            for m in range(2):
                glu(m, 6, FB + 2 * m)
            k("s_nop 1")
            k(f"v_permlane16_swap_b32 v{FB}, v{FB+2}")
            k(f"v_permlane16_swap_b32 v{FB+1}, v{FB+3}")
            k(f"buffer_store_dwordx4 {vr(FB,4)}, v9, s[8:11], s29 offen {HSC}")
            k(f"s_cmp_eq_u32 s{S_CB}, 15")
            k("s_cbranch_scc1 L_c_gu_skip")
    k.label("L_c_gu_skip")
    ts(27)
    c_res_to_acc()
    lseam_pre(2, g_rb, g_cb, g_rs2)
    k("s_waitcnt vmcnt(0)")
    k("s_barrier")
    ts(28)
    lseam_post(16)

    k("s_barrier")
    ts(32)
    if POLL2:
        k("s_waitcnt vmcnt(0)")
    def down_b0():
        lab = k.newlabel()
        k(f"s_cmp_lg_u32 s{S_LAY}, 0")
        k(f"s_cbranch_scc1 {lab}")
        c_ext_loads(PH["qkv"])
        c_small_pre(XA, STA, LSTR)
        k.label(lab)
    c_mainloop(PH["down"], True, 32, (), down_b0)
    k(f"s_cmp_lg_u32 s{S_LAY}, 0")
    k("s_cbranch_scc1 L_c_final")
    k.nop(3)
    c_small_epilogue()
    ts(35)
    k("s_waitcnt vmcnt(4)")
    c_ext_build(PH["qkv"])
    lseam_pre(3, g_rs2, g_sm, g_rb)
    k("s_waitcnt vmcnt(0)")
    k("s_barrier")
    ts(36)
    lseam_post(16)
    k(f"s_mov_b32 s{S_LAY}, {LSTR:#x}")
    k(f"s_mov_b32 s{S_SEAM}, 20")
    k(f"s_add_u32 s{S_TS}, s{S_TS}, 320")
    k("s_branch L_c_layer")

    k.label("L_c_final")
    k("v_mul_u32_u24 v9, 1280, v7")
    k("v_and_b32 v10, 1, v8")
    k("v_lshl_add_u32 v9, v10, 5, v9")
    k("v_lshrrev_b32 v10, 1, v8")
    k("v_lshl_add_u32 v9, v10, 4, v9")
    k(f"s_lshl_b32 s28, s{S_RS}, 2")
    k(f"s_add_u32 s28, s28, s{S_W}")
    k(f"s_mul_i32 s28, s28, {16*1280}")
    k(f"s_mul_i32 s29, s{S_CS}, 160")
    k("s_add_u32 s28, s28, s29")
    for i in range(10):
        k(f"v_cvt_pk_bf16_f32 v{56+i}, v{ACC+2*i}, v{ACC+2*i+1}")
    k("v_mov_b32 v66, v64")
    k("v_mov_b32 v67, v65")
    for j in range(3):
        for i in range(2):
            k(f"v_permlane16_swap_b32 v{56+4*j+i}, v{58+4*j+i}")
        if j == 2:
            k("s_mov_b32 exec_lo, 0xffff")
            k("s_mov_b32 exec_hi, 0xffff")
        k(f"buffer_store_dwordx4 {vr(56+4*j,4)}, v9, s[24:27], s28 offen offset:{64*j}")
    if INSTR:
        ts(35)
        k("s_waitcnt vmcnt(0)")
        ts(36)
    k.label(L_end)
    k("s_endpgm")

    k.label("L_attn_ck")
    k(f"s_cmp_eq_u32 s{SSEG}, 0")
    k("s_cselect_b32 s36, 3, 12")
    k(f"s_add_u32 s{SSEG}, s{SSEG}, 1")
    k("s_barrier")
    k("s_branch L_attn_loop")

    k.label("L_l_attn")
    k("s_barrier")
    k(f"s_cmp_lg_u32 s{S_LAY}, 0")
    k("s_cbranch_scc1 L_l_havec")
    get_coords()
    k.label("L_l_havec")
    k(f"s_mul_i32 s28, s{S_HD}, {UNIT}")
    k(f"s_add_u32 s28, s28, s{S_LAY}")
    k(f"s_lshl_b32 s29, s{S_W}, 10")
    k("s_mov_b32 m0, s29")
    k("s_add_u32 s31, s28, s29")
    k(f"s_add_u32 s31, s31, {QKVI + 32*UNIT:#x}")
    k("s_mov_b32 s28, 0x100")
    k("s_mov_b32 s29, 0x10000")
    k("v_mov_b32 v8, 0x3f803f80")
    k("v_cndmask_b32 v8, 0, v8, s[28:29]")
    for i in range(1, 4):
        k(f"v_mov_b32 v{8+i}, v8")
    k("ds_write_b128 v3, v[8:11]")
    k("s_waitcnt lgkmcnt(0)")
    k(f"s_cmp_eq_u32 s{S_W}, 0")
    k(f"s_mov_b32 s36, {5 if KV5 else 8}")
    k("s_barrier")
    k("s_cbranch_scc1 L_l_skip0")
    def pieces(n, first=False):
        lab = k.newlabel()
        if not first:
            k(f"s_mov_b32 s36, {n}")
        k.label(lab)
        k(f"buffer_load_dwordx4 v3, s[8:11], s31 offen {LSC} lds")
        if first:
            k.label("L_l_skip0")
        k("s_add_u32 m0, m0, 4096")
        k("s_add_u32 s31, s31, 4096")
        k("s_sub_u32 s36, s36, 1")
        k("s_cmp_lg_u32 s36, 0")
        k(f"s_cbranch_scc1 {lab}")
    if KV5:
        pieces(5, True)
        k("s_waitcnt vmcnt(3)")
        pieces(6)
        k("s_waitcnt vmcnt(6)")
    else:
        pieces(8, True)
        k("s_waitcnt vmcnt(3)")
    k("s_barrier")
    k("s_setprio 3")
    pieces(11 if KV5 else 14)
    k("s_waitcnt vmcnt(9)")
    k("s_barrier")
    pieces(18)
    sb, vb = 56, 64
    k(f"s_lshl_b32 s28, s{S_W}, 8")
    k("s_add_u32 s28, s28, s2")
    k(f"s_cmp_lg_u32 s{S_LAY}, 0")
    k("s_cselect_b32 s28, 1000, s28")
    k("s_cmp_ge_u32 s28, 972")
    k("s_cbranch_scc1 L_attn_noprep")
    k(f"s_mov_b32 s{sb+27}, 0x00020000")
    k("s_and_b32 s37, s28, 31")
    k("s_cmp_lt_u32 s28, 732")
    k("s_cbranch_scc1 L_prep_notq")
    k("s_sub_u32 s28, s28, 732")
    k(f"s_and_b32 s{sb}, s28, 7")
    k("s_lshr_b32 s28, s28, 3")
    k("s_lshl_b32 s28, s28, 6")
    k("v_add_u32 v5, s28, v1")
    k(f"v_lshlrev_b32 v{vb}, 1, v5")
    k(f"s_mov_b32 s{sb+24}, s32")
    k(f"s_mov_b32 s{sb+25}, s33")
    k(f"s_mov_b32 s{sb+26}, {640*3840}")
    k(f"s_movk_i32 s{sb+20}, 3840")
    k("v_mul_u32_u24 v6, 3277, v5")
    k("v_lshrrev_b32 v6, 16, v6")
    k("v_mul_u32_u24 v7, 20, v6")
    k("v_sub_u32 v7, v5, v7")
    k("v_mul_u32_u24 v8, 43, v6")
    k("v_lshrrev_b32 v8, 8, v8")
    k("v_mul_u32_u24 v9, 6, v8")
    k("v_sub_u32 v9, v6, v9")
    k("v_and_b32 v10, 6, v9")
    k("v_bfe_u32 v11, v7, 2, 1")
    k("v_add_u32 v10, v10, v11")
    k("v_and_b32 v11, 1, v9")
    k("v_lshlrev_b32 v12, 3, v11")
    k("v_bfe_u32 v11, v7, 3, 1")
    k("v_lshl_add_u32 v12, v11, 2, v12")
    k("v_lshrrev_b32 v14, 2, v9")
    k("v_add_u32 v14, 6, v14")
    k("v_and_b32 v17, 3, v9")
    k("v_lshlrev_b32 v17, 2, v17")
    k("v_cmp_le_u32 s[30:31], 16, v7")
    k("s_nop 1")
    k("v_cndmask_b32 v10, v10, v14, s[30:31]")
    k("v_cndmask_b32 v12, v12, v17, s[30:31]")
    k("v_and_b32 v13, 3, v7")
    k("v_add_u32 v12, v12, v13")
    k("v_lshl_add_u32 v10, v8, 3, v10")
    k("v_lshrrev_b32 v14, 4, v5")
    k("v_add_u32 v14, 8, v14")
    k("v_and_b32 v17, 15, v5")
    k("s_movk_i32 s30, 1280")
    k("v_cmp_le_u32 s[30:31], s30, v5")
    k("s_nop 1")
    k("v_cndmask_b32 v10, v10, v14, s[30:31]")
    k("v_cndmask_b32 v12, v12, v17, s[30:31]")
    k("v_mov_b32 v9, v12")
    k("s_movk_i32 s31, 21504")
    k(f"s_mov_b32 s35, {WQKV_F:#x}")
    k("s_movk_i32 s38, 80")
    k("s_mov_b32 s39, 1")
    k("s_branch L_prep_go")
    k.label("L_prep_notq")
    k("s_cmp_ge_u32 s28, 432")
    k("s_cbranch_scc1 L_prep_small")
    k(f"s_and_b32 s{sb}, s28, 7")
    k("s_lshr_b32 s31, s28, 3")
    k("s_cmp_ge_u32 s31, 27")
    k(f"s_cselect_b32 s{sb+24}, s90, s88")
    k(f"s_cselect_b32 s{sb+25}, s91, s89")
    k("s_cselect_b32 s29, 21504, 0")
    k("s_cselect_b32 s30, 27, 0")
    k("s_sub_u32 s30, s31, s30")
    k(f"s_mov_b32 s{sb+26}, {640*3456}")
    k(f"s_movk_i32 s{sb+20}, 3456")
    k("s_lshl_b32 s30, s30, 6")
    k("v_add_u32 v9, s30, v1")
    k(f"v_lshlrev_b32 v{vb}, 1, v9")
    k("v_lshrrev_b32 v10, 4, v9")
    k("v_mov_b32 v11, 111")
    k("v_cmp_eq_u32 vcc, 107, v10")
    k(f"s_add_u32 s35, s29, {WGU_F:#x}")
    k("s_mov_b32 s31, 43008")
    k("v_cndmask_b32 v10, v10, v11, vcc")
    k("s_movk_i32 s38, 80")
    k("s_mov_b32 s39, 1")
    k("s_branch L_prep_go")
    k.label("L_prep_small")
    k(f"s_movk_i32 s{sb+20}, 1280")
    k("s_mov_b32 s39, 0")
    k(f"s_mov_b32 s29, {640*1280}")
    k("s_movk_i32 s30, 432")
    k("s_movk_i32 s38, 80")
    k("s_movk_i32 s31, 20480")
    k(f"s_mov_b32 s35, {WO_F:#x}")
    k("s_cmp_ge_u32 s28, 512")
    k(f"s_cselect_b32 s{sb+24}, s92, s86")
    k(f"s_cselect_b32 s{sb+25}, s93, s87")
    k(f"s_cselect_b32 s{sb+26}, {1728*1280}, s29")
    k("s_cselect_b32 s29, 512, s30")
    k("s_cselect_b32 s38, 216, s38")
    k("s_cselect_b32 s31, 55296, s31")
    k(f"s_cselect_b32 s35, {WD_F:#x}, s35")
    k("s_sub_u32 s28, s28, s29")
    k(f"s_mul_i32 s{sb}, s28, 205")
    k(f"s_lshr_b32 s{sb}, s{sb}, 11")
    k(f"s_mul_i32 s29, s{sb}, 10")
    k("s_sub_u32 s28, s28, s29")
    k("s_lshl_b32 s28, s28, 6")
    k("v_add_u32 v9, s28, v1")
    k(f"v_lshlrev_b32 v{vb}, 1, v9")
    k("v_lshrrev_b32 v10, 4, v9")
    k.label("L_prep_go")
    k("v_mul_u32_u24 v10, s31, v10")
    k("v_add_u32 v10, s35, v10")
    k("v_and_b32 v9, 15, v9")
    k(f"v_lshl_add_u32 v{vb+1}, v9, 4, v10")
    k(f"v_lshl_add_u32 v{vb+2}, v9, 3, v10")
    k(f"s_mul_i32 s{sb+1}, s{sb}, 10")
    k(f"s_mov_b32 s{sb+23}, s{sb+1}")
    k("s_mov_b32 s35, 0")
    k.label("L_prep_rows")
    k("s_cmp_lg_u32 s39, 0")
    k("s_cbranch_scc1 L_prep_rx")
    k("s_cmp_eq_u32 s38, 80")
    k("s_cbranch_scc1 L_prep_rwo")
    prep_rows(k, "wd", sb)
    k("s_branch L_prep_ld")
    k.label("L_prep_rwo")
    prep_rows(k, "wo", sb)
    k("s_branch L_prep_ld")
    k.label("L_prep_rx")
    prep_rows(k, "x", sb)
    k.label("L_prep_ld")
    k("s_cmp_lg_u32 s35, 0")
    k("s_cbranch_scc1 L_prep_ld2")
    prep_loads(k, sb, vb, vb + 16)
    k("s_mov_b32 s35, 1")
    k(f"s_add_u32 s{sb+23}, s{sb+23}, 5")
    k("s_branch L_prep_rows")
    k.label("L_prep_ld2")
    k("s_waitcnt vmcnt(40)")
    prep_loads(k, sb, vb, vb + 56)
    k("s_barrier")
    k("s_waitcnt vmcnt(0)")
    ts(5, 1)
    prep_finish(k, sb, vb, 10, SC, "s38", "s39")
    k("s_lshl_b32 s37, s37, 9")
    k(f"s_add_u32 s37, s37, {CNT + 384:#x}")
    ts(6, 1)
    k("s_waitcnt vmcnt(0)")
    k("s_mov_b64 exec, 1")
    k("buffer_atomic_add v15, off, s[8:11], s37 sc1")
    k("s_mov_b64 exec, -1")
    k("s_branch L_attn_Bgo")
    k.label("L_attn_noprep")
    k("s_waitcnt vmcnt(0)")
    k("s_barrier")
    k.label("L_attn_Bgo")
    ts(13, 1)
    ts(15, 1, 1)
    ts(7, 1, 2)
    k(f"s_cmp_lg_u32 s{S_LAY}, 0")
    k("s_cbranch_scc1 L_attn_prepok")
    if TOUCH & 1:
        l_touch_h()
    k.label("L_attn_prepok")
    if PFW:
        k(f"s_cmp_lg_u32 s{S_W}, 3")
        k("s_cbranch_scc1 L_attn_nopf")
        if PFW == 1:
            k(f"s_cmp_eq_u32 s{S_LAY}, 0")
            k("s_cbranch_scc1 L_attn_nopf")
        k(f"s_lshl_b32 s28, s{S_CS}, 2")
        k(f"s_and_b32 s29, s{S_RS}, 3")
        k("s_add_u32 s28, s28, s29")
        k("s_mul_i32 s29, s28, 25600")
        k(f"s_add_u32 s29, s29, {WO_F:#x}")
        k("s_mov_b32 s36, 25")
        k.label("L_pf_wo")
        k("buffer_load_dwordx4 v[20:23], v3, s[8:11], s29 offen")
        k("s_add_u32 s29, s29, 1024")
        k("s_sub_u32 s36, s36, 1")
        k("s_cmp_lg_u32 s36, 0")
        k("s_cbranch_scc1 L_pf_wo")
        k("s_min_u32 s28, s28, 29")
        k(f"s_mul_i32 s29, s28, {7*21504}")
        k(f"s_add_u32 s29, s29, {WGU_F:#x}")
        k("s_mov_b32 s36, 7")
        k.label("L_pf_gu")
        for st in eval(os.environ.get("PFST", "[0, 1, 2]")):
            k(f"s_add_u32 s30, s29, {st*2048}")
            k("buffer_load_dwordx4 v[20:23], v3, s[8:11], s30 offen")
            k("buffer_load_dwordx4 v[20:23], v3, s[8:11], s30 offen offset:1024")
        k("s_add_u32 s29, s29, 21504")
        k("s_sub_u32 s36, s36, 1")
        k("s_cmp_lg_u32 s36, 0")
        k("s_cbranch_scc1 L_pf_gu")
        k.label("L_attn_nopf")
    if TOUCH & 16:
        l_touch_x()
    ts(14, 1, 3)
    l_setup_w(PH["wo"])
    l_setup_x(PH["wo"])
    k(f"s_setprio {LPRIO}")
    k("s_barrier")
    k("s_branch L_l_after_attn")

    k.label("L_attn_slow")
    k(f"s_mov_b32 s{SPASS}, 1")
    k("v_mov_b32 v10, 0xff800000")
    k("v_mov_b32 v11, 0xff800000")
    k("s_mov_b32 s36, 0")
    k0_loads()
    k(rdH(1, 0))
    k("s_waitcnt vmcnt(0)")
    k("s_branch L_attn_slow_in")
    k.label("L_attn_slow_loop")
    k(rdH(0, 0))
    k(rdH(1, 0))
    for t in range(4):
        k(rdK(t & 1, t))
        if t == 0:
            k.label("L_attn_slow_in")
        k("s_waitcnt lgkmcnt(0)")
        for q in range(2):
            for x in smfma(q, t, q, "0"):
                k(x)
        k.nop(16)
        rowmax_into(10, 0, False)
        rowmax_into(11, 1, False)
    k(f"v_add_u32 v{A3}, s{SSTR}, v{A3}")
    k(f"v_add_u32 v{A4}, s{SSTR}, v{A4}")
    k("s_add_u32 s36, s36, 1")
    k("s_cmp_lg_u32 s36, 16")
    k("s_cbranch_scc1 L_attn_slow_loop")
    k(f"v_subrev_u32 v{A3}, {UNIT}, v{A3}")
    k(f"v_subrev_u32 v{A4}, {UNIT}, v{A4}")
    k0_loads()
    zero_o()
    k("s_waitcnt vmcnt(0)")
    k("s_branch L_attn_start")
    k.label("L_raw_qk")
    c_raw(True, c_stats_valu(False) + QKT, "L_join_qk")
    k.label("L_raw_v")
    c_raw(False, c_stats_valu(False) + VT, "L_join_v")
    k.label("L_mega_last")
    k("s_endpgm")
    return k.text(256, 102)


def main(out):
    hdr = open("cdna_kernels/" + NAME + ".s.ref").read().split("\n")
    hdr = [l for l in hdr if l.startswith(";") and "@launch" not in l and "Override launch" not in l and "grid=ceil" not in l]
    mega = gen_mega()
    L = [f"; @launch kernel=mega_kernel grid=(256,1,1) block=(512,1,1) lds={UNIT}"]
    txt = "\n".join(hdr + L) + "\n" + '.amdgcn_target "amdgcn-amd-amdhsa--gfx950"\n'
    txt += mega
    if os.environ.get("PLAIN", "0") == "1":
        txt = txt.replace("; @launch kernel=mega_kernel grid", "; @launch grid").replace("mega_kernel", NAME + "_kernel")
    open(out, "w").write(txt)


if __name__ == "__main__":
    main(sys.argv[1] if len(sys.argv) > 1 else "cdna_kernels/" + NAME + ".s")
```

```python
import math, struct, sys, os

NAME = "interleave_layers__mha_block__glu_gated_reglu__prompt"
INSTR = os.environ.get("INSTR", "0") == "1"

WQKV_F = 0x0001000
WGU_F  = 0x0300000
WO_F   = 0x0800000
WD_F   = 0x0900000
CNT    = 0x0C00000
LBASE  = 0x1000000
LSTR   = 0x2000000
XA     = LBASE + 0x0000000
STA    = LBASE + 0x0280000
XB     = XA
STB    = STA
QKVI   = LBASE + 0x0600000
OF     = LBASE + 0x1000000
HF     = LBASE + 0x1300000
TSBUF  = 0x8000000
WS_SIZE = 0x10000000
UNIT = 163840
SLOT = 49152
SCRATCH = 156 * 1024
SC = "sc0 sc1"
LSC = os.environ.get("LSC", "sc1")

def f2u(x):
    return struct.unpack("<I", struct.pack("<f", x))[0]

SQRTC = math.sqrt(math.log2(math.e) / math.sqrt(20.0))
MF = "v_mfma_f32_16x16x32_bf16"
ROT = int(os.environ.get("ROT", "0"))
CK2 = int(os.environ.get("CK2", "2"))
PF = int(os.environ.get("PF", "0"))
WARM = int(os.environ.get("WARM", "1"))
LPRIO = int(os.environ.get("LPRIO", "0"))
TOUCH = int(os.environ.get("TOUCH", "19"))
W2LATE = int(os.environ.get("W2LATE", "7"))
TLBW = int(os.environ.get("TLBW", "0"))
HEAD2 = int(os.environ.get("HEAD2", "1"))
PFW = int(os.environ.get("PFW", "0"))
SPF = int(os.environ.get("SPF", "0"))
SPS_ = int(os.environ.get("SPSTR", "128"))
WBL = int(os.environ.get("WBL", "0"))
HSC = os.environ.get("HSC", "")
XSC = os.environ.get("XSC", "")
SPT = eval(os.environ.get("SPT", "{}"))
SELFW = int(os.environ.get("SELFW", "0"))
KV5 = int(os.environ.get("KV5", "1"))
WOPRE = int(os.environ.get("WOPRE", "4"))
NT0 = int(os.environ.get("NT0", "5"))
NT1 = int(os.environ.get("NT1", "0"))
TGAP = int(os.environ.get("TGAP", "1"))
RAWW = int(os.environ.get("RAWW", "1"))
NTB = int(os.environ.get("NTB", "0"))
POLL2 = int(os.environ.get("POLL2", "0"))


class K:
    def __init__(self, name):
        self.name = name
        self.l = []
        self.nlab = 0
    def __call__(self, s):
        for x in s.split("\n"):
            x = x.strip()
            if x.startswith("LABEL "):
                self.l.append(x.split()[1] + ":")
            elif x:
                self.l.append("    " + x)
    def label(self, s):
        self.l.append(s + ":")
    def newlabel(self, p="L"):
        self.nlab += 1
        return f"{p}_{self.name}_{self.nlab}"
    def nop(self, n):
        while n > 0:
            m = min(n, 16)
            self(f"s_nop {m-1}")
            n -= m
    def text(self, vgpr, sgpr=96):
        acc = (vgpr + 3) // 4 * 4
        kn = self.name + "_kernel"
        t = [".text", f".globl {kn}", ".p2align 8", f".type {kn},@function", f"{kn}:"]
        t += self.l
        d = ['.section .rodata,"a"', ".p2align 6", f".amdhsa_kernel {kn}",
             f"  .amdhsa_next_free_vgpr {vgpr}", f"  .amdhsa_next_free_sgpr {sgpr}",
             f"  .amdhsa_accum_offset {acc}", "  .amdhsa_group_segment_fixed_size 0",
             "  .amdhsa_kernarg_size 80", "  .amdhsa_user_sgpr_count 2",
             "  .amdhsa_user_sgpr_kernarg_segment_ptr 1", "  .amdhsa_system_sgpr_workgroup_id_x 1",
             ".end_amdhsa_kernel"]
        return "\n".join(t + d) + "\n"


def vr(b, n):
    return f"v[{b}:{b+n-1}]" if n > 1 else f"v{b}"

def srd(k, d, base, size):
    k(f"s_mov_b32 s{d}, s{base}")
    k(f"s_mov_b32 s{d+1}, s{base+1}")
    k(f"s_mov_b32 s{d+2}, {size:#x}")
    k(f"s_mov_b32 s{d+3}, 0x00020000")


def prep_rows(k, kind, sb):
    t = lambda i: f"s{sb+2+i}"
    for i in range(5):
        P, G4, S_, r0, r1, u, w = t(0), t(1), t(2), t(3), t(4), t(5), t(6)
        k(f"s_add_u32 {P}, s{sb+23}, {i}")
        if kind == "wd":
            k(f"s_min_u32 {P}, {P}, 215")
        k(f"s_and_b32 {G4}, {P}, 3")
        k(f"s_lshl_b32 {G4}, {G4}, 2")
        k(f"s_lshr_b32 {S_}, {P}, 2")
        if kind in ("x", "wd"):
            if kind == "x":
                k(f"s_lshr_b32 {r0}, {S_}, 1")
                k(f"s_and_b32 {r1}, {S_}, 1")
                tw, lim, sub = 80, 16, 2560 - 64
            else:
                k(f"s_mul_i32 {r0}, {S_}, 86")
                k(f"s_lshr_b32 {r0}, {r0}, 8")
                k(f"s_mul_i32 {r1}, {r0}, 3")
                k(f"s_sub_u32 {r1}, {S_}, {r1}")
                tw, lim, sub = 112, 46, 224 * 46 - 96
            k(f"s_mul_i32 {r0}, {r0}, {tw}")
            k(f"s_lshl_b32 {r1}, {r1}, 5")
            k(f"s_add_u32 {r0}, {r0}, {r1}")
            k(f"s_add_u32 {r0}, {r0}, {G4}")
            k(f"s_lshr_b32 {u}, {P}, 1")
            k(f"s_mul_i32 {u}, {u}, {tw}")
            k(f"s_sub_u32 {u}, {u}, {sub}")
            if kind == "wd":
                k(f"s_min_u32 {u}, {u}, 1712")
            k(f"s_and_b32 {w}, {P}, 1")
            k(f"s_lshl_b32 {w}, {w}, 3")
            k(f"s_add_u32 {u}, {u}, {w}")
            k(f"s_cmp_ge_u32 {S_}, {lim}")
            k(f"s_cselect_b32 {r0}, {u}, {r0}")
            k(f"s_cselect_b32 {r1}, 4, 16")
            k(f"s_add_u32 {r1}, {r0}, {r1}")
        else:
            k(f"s_sub_u32 {S_}, {P}, 8")
            k(f"s_lshr_b32 {r0}, {S_}, 1")
            k(f"s_mul_i32 {r0}, {r0}, 20")
            k(f"s_and_b32 {r1}, {P}, 1")
            k(f"s_lshl_b32 {r1}, {r1}, 2")
            k(f"s_add_u32 {r0}, {r0}, {r1}")
            k(f"s_and_b32 {u}, {P}, 15")
            k(f"s_mul_i32 {u}, {u}, 40")
            k(f"s_add_u32 {u}, {u}, 16")
            k(f"s_cmp_ge_u32 {S_}, 64")
            k(f"s_cselect_b32 {r0}, {u}, {r0}")
            k(f"s_cselect_b32 {r1}, 20, 8")
            k(f"s_add_u32 {r1}, {r0}, {r1}")
        k(f"s_mul_i32 s{sb+10+2*i}, {r0}, s{sb+20}")
        k(f"s_mul_i32 s{sb+11+2*i}, {r1}, s{sb+20}")

def prep_loads(k, sb, vb, v0):
    for i in range(5):
        for j in range(8):
            sreg = f"s{sb+10+2*i+(j>>2)}"
            k(f"buffer_load_ushort v{v0+8*i+j}, v{vb}, s[{sb+24}:{sb+27}], {sreg} offen")
            if j not in (3, 7):
                k(f"s_add_u32 {sreg}, {sreg}, s{sb+20}")

def prep_finish(k, sb, vb, NP, sc, npieces_reg, colsum_reg):
    done, nocs = k.newlabel(), k.newlabel()
    k(f"s_lshl_b32 s{sb+2}, s{sb+1}, 8")
    for i in range(NP):
        a = vb + 16 + 8 * i
        o = vb + 8 + 4 * (i & 1)
        if i:
            k(f"s_add_u32 s{sb+3}, s{sb+1}, {i}")
            k(f"s_cmp_ge_u32 s{sb+3}, {npieces_reg}")
            k(f"s_cbranch_scc1 {done}")
        for j in range(4):
            k(f"v_lshl_or_b32 v{o+j}, v{a+2*j+1}, 16, v{a+2*j}")
        k(f"buffer_store_dwordx4 {vr(o,4)}, v{vb+1}, s[8:11], s{sb+2} offen offset:{i*256} {sc}")
    k.label(done)
    k(f"s_cmp_eq_u32 {colsum_reg}, 0")
    k(f"s_cbranch_scc1 {nocs}")
    e = vb + 16
    for r in range(0, 8 * NP, 2):
        k(f"v_lshlrev_b32 v{e+r}, 16, v{e+r}")
        k(f"v_lshlrev_b32 v{e+r+1}, 16, v{e+r+1}")
        if r:
            k(f"v_pk_add_f32 {vr(e,2)}, {vr(e,2)}, {vr(e+r,2)}")
    k(f"v_add_f32 v{e}, v{e}, v{e+1}")
    lg = 2 if NP == 5 else 1
    k(f"s_lshr_b32 s{sb+2}, s{sb}, {lg}")
    k(f"s_lshl_b32 s{sb+2}, s{sb+2}, {6+lg}")
    k(f"s_and_b32 s{sb+3}, s{sb}, {(1<<lg)-1}")
    k(f"s_lshl_b32 s{sb+3}, s{sb+3}, 2")
    k(f"s_add_u32 s{sb+2}, s{sb+2}, s{sb+3}")
    k(f"s_add_u32 s{sb+2}, s{sb+2}, {20*1024}")
    k(f"buffer_store_dword v{e}, v{vb+2}, s[8:11], s{sb+2} offen {sc}")
    k.label(nocs)


def gen_prep():
    k = K("prep")
    NWG = 246
    L_end = "L_prep_end"
    sb, vb = 40, 16
    if SELFW:
        k("s_getpc_b64 s[32:33]")
        k("v_and_b32 v1, 63, v0")
        k("v_lshlrev_b32 v4, 7, v1")
        k("global_load_dword v85, v4, s[32:33]")
    k(f"s_cmp_ge_u32 s2, {NWG}")
    k(f"s_cbranch_scc1 {L_end}")
    k("s_load_dwordx4 s[24:27], s[0:1], 0")
    k("s_load_dwordx2 s[4:5], s[0:1], 72")
    if TLBW:
        k("s_load_dwordx2 s[80:81], s[0:1], 16")
        k("s_load_dwordx4 s[84:87], s[0:1], 32")
        k("s_load_dwordx4 s[88:91], s[0:1], 48")
    k("v_and_b32 v1, 63, v0")
    k("v_lshrrev_b32 v2, 6, v0")
    k("s_nop 0")
    k("v_readfirstlane_b32 s12, v2")
    if WARM:
        k("s_getpc_b64 s[28:29]")
        k.label("L_prep_pc")
        k("s_add_u32 s28, s28, mega_kernel - L_prep_pc")
        k("s_addc_u32 s29, s29, 0")
        k("s_lshr_b32 s30, s2, 3")
        k("s_mul_i32 s30, s30, 3")
        k("s_add_u32 s30, s30, s12")
        k("s_lshl_b32 s30, s30, 9")
        k("s_min_u32 s30, s30, L_mega_last - mega_kernel - 512")
        k("v_lshl_add_u32 v4, v1, 3, s30")
        k("global_load_dwordx2 v[86:87], v4, s[28:29]")
    k(f"s_mul_i32 s12, s12, {NWG}")
    k("s_add_u32 s12, s12, s2")
    k("s_cmp_ge_u32 s12, 480")
    k("s_cbranch_scc1 L_prep_x")
    k(f"s_and_b32 s{sb}, s12, 15")
    k(f"s_mul_i32 s{sb+1}, s{sb}, 5")
    k(f"s_mov_b32 s{sb+23}, s{sb+1}")
    k("s_lshr_b32 s22, s12, 4")
    k("s_lshl_b32 s22, s22, 6")
    k(f"s_movk_i32 s{sb+20}, 3840")
    k("v_add_u32 v5, s22, v1")
    k(f"v_lshlrev_b32 v{vb}, 1, v5")
    prep_rows(k, "x", sb)
    k("s_waitcnt lgkmcnt(0)")
    srd(k, sb + 24, 26, 640 * 3840)
    srd(k, 8, 4, WS_SIZE)
    prep_loads(k, sb, vb, vb + 16)
    k("v_mul_u32_u24 v6, 3277, v5")
    k("v_lshrrev_b32 v6, 16, v6")
    k("v_mul_u32_u24 v7, 20, v6")
    k("v_sub_u32 v7, v5, v7")
    k("v_mul_u32_u24 v8, 43, v6")
    k("v_lshrrev_b32 v8, 8, v8")
    k("v_mul_u32_u24 v9, 6, v8")
    k("v_sub_u32 v9, v6, v9")
    k("v_and_b32 v10, 6, v9")
    k("v_bfe_u32 v11, v7, 2, 1")
    k("v_add_u32 v10, v10, v11")
    k("v_and_b32 v11, 1, v9")
    k("v_lshlrev_b32 v12, 3, v11")
    k("v_bfe_u32 v11, v7, 3, 1")
    k("v_lshl_add_u32 v12, v11, 2, v12")
    k("v_lshrrev_b32 v14, 2, v9")
    k("v_add_u32 v14, 6, v14")
    k("v_and_b32 v15, 3, v9")
    k("v_lshlrev_b32 v15, 2, v15")
    k("v_cmp_le_u32 s[30:31], 16, v7")
    k("s_nop 1")
    k("v_cndmask_b32 v10, v10, v14, s[30:31]")
    k("v_cndmask_b32 v12, v12, v15, s[30:31]")
    k("v_and_b32 v13, 3, v7")
    k("v_add_u32 v12, v12, v13")
    k("v_lshl_add_u32 v10, v8, 3, v10")
    k("v_lshrrev_b32 v14, 4, v5")
    k("v_add_u32 v14, 8, v14")
    k("v_and_b32 v15, 15, v5")
    k("s_movk_i32 s30, 1280")
    k("v_cmp_le_u32 s[30:31], s30, v5")
    k("s_nop 1")
    k("v_cndmask_b32 v10, v10, v14, s[30:31]")
    k("v_cndmask_b32 v12, v12, v15, s[30:31]")
    k(f"v_mul_u32_u24 v{vb+1}, 21504, v10")
    k(f"v_add_u32 v{vb+1}, {WQKV_F:#x}, v{vb+1}")
    k(f"v_lshl_add_u32 v{vb+1}, v12, 4, v{vb+1}")
    k(f"v_mov_b32 v{vb+2}, v{vb+1}")
    k("s_waitcnt vmcnt(0)")
    prep_finish(k, sb, vb, 5, "", "80", "1")
    k("s_endpgm")

    k.label("L_prep_x")
    k("s_sub_u32 s22, s12, 480")
    k("s_cmp_ge_u32 s22, 256")
    k(f"s_cbranch_scc1 {L_end}")
    k("s_and_b32 s23, s22, 1")
    k("s_lshl_b32 s23, s23, 3")
    k("v_lshrrev_b32 v5, 3, v1")
    k("v_add_u32 v5, s23, v5")
    k("v_and_b32 v6, 7, v1")
    k("v_mul_u32_u24 v3, 1280, v5")
    k("v_lshl_add_u32 v3, v6, 4, v3")
    k("s_lshr_b32 s23, s22, 1")
    k("s_mul_i32 s42, s23, 20480")
    k("s_waitcnt lgkmcnt(0)")
    srd(k, 16, 24, 2048 * 1280)
    srd(k, 8, 4, WS_SIZE)
    for i in range(10):
        k(f"buffer_load_dwordx4 {vr(16+4*i,4)}, v3, s[16:19], s42 offen offset:{128*i}")
    if TLBW:
        k("v_lshlrev_b32 v84, 20, v1")
        k("buffer_load_dword v85, v84, s[8:11], 0 offen")
        k(f"s_mov_b32 s70, {64<<20:#x}")
        k("s_mov_b64 exec, 0xffff")
        k("buffer_load_dword v85, v84, s[8:11], s70 offen")
        k("s_mov_b64 exec, 7")
        for (b_, n_) in ((84, 640*3456), (86, 640*3456), (88, 1728*1280), (90, 2048*1280), (80, 640*1280)):
            srd(k, 72, b_, n_)
            k("buffer_load_dword v85, v84, s[72:75], 0 offen")
        k("s_mov_b64 exec, -1")
    k("v_mov_b32 v8, 0")
    k("v_mov_b32 v9, 0")
    k("v_lshlrev_b32 v10, 3, v1")
    k("s_lshl_b32 s43, s22, 9")
    k(f"s_add_u32 s43, s43, {CNT:#x}")
    k("buffer_store_dwordx2 v[8:9], v10, s[8:11], s43 offen")
    k("v_lshlrev_b32 v4, 4, v5")
    k("v_and_b32 v15, 1, v6")
    k("v_lshrrev_b32 v7, 1, v6")
    k("v_mov_b32 v56, 0x100")
    for i in range(10):
        d = 64 + 2 * i
        k(f"v_add_u32 v10, {4*i}, v7")
        k("v_mul_u32_u24 v11, 52, v10")
        k("v_lshrrev_b32 v11, 8, v11")
        k("v_mul_u32_u24 v12, 5, v11")
        k("v_sub_u32 v12, v10, v12")
        k("v_lshrrev_b32 v13, 1, v12")
        k("v_lshl_add_u32 v13, v11, 1, v13")
        k("v_lshl_add_u32 v13, v13, 1, v15")
        k("v_lshlrev_b32 v13, 9, v13")
        k("v_and_b32 v14, 1, v12")
        k("v_lshl_add_u32 v13, v14, 3, v13")
        k("v_lshl_add_u32 v14, v11, 1, v15")
        k("v_lshlrev_b32 v14, 8, v14")
        k("v_add_u32 v14, 0x4000, v14")
        k("v_cmp_eq_u32 s[44:45], 4, v12")
        k("s_nop 1")
        k("v_cndmask_b32 v13, v13, v14, s[44:45]")
        k("v_cndmask_b32 v14, v56, 8, s[44:45]")
        k(f"v_add_u32 v{d}, v13, v4")
        k(f"v_add_u32 v{d+1}, v{d}, v14")
    k(f"s_add_u32 s43, s42, {XA:#x}")
    k("s_waitcnt vmcnt(0)")
    for i in range(10):
        k(f"buffer_store_dwordx2 {vr(16+4*i,2)}, v{64+2*i}, s[8:11], s43 offen")
        k(f"buffer_store_dwordx2 {vr(18+4*i,2)}, v{65+2*i}, s[8:11], s43 offen")
    k("v_mov_b64 v[12:13], 0")
    for r in range(40):
        k(f"v_lshlrev_b32 v10, 16, v{16+r}")
        k(f"v_and_b32 v11, 0xffff0000, v{16+r}")
        k("v_pk_add_f32 v[8:9], v[8:9], v[10:11]")
        k("v_pk_fma_f32 v[12:13], v[10:11], v[10:11], v[12:13]")
    k("v_add_f32 v8, v8, v9")
    k("v_add_f32 v9, v12, v13")
    k("v_lshlrev_b32 v4, 14, v6")
    k("v_lshl_add_u32 v4, v5, 3, v4")
    k("s_lshl_b32 s43, s23, 7")
    k(f"s_add_u32 s43, s43, {STA:#x}")
    k("buffer_store_dwordx2 v[8:9], v4, s[8:11], s43 offen")
    k.label(L_end)
    k("s_endpgm")
    return k.text(88, 96), NWG


class Ph:
    def __init__(s, name, big, NB, nsteps, xsrc, wsrc):
        s.name, s.big, s.NB, s.nsteps, s.xsrc, s.wsrc = name, big, NB, nsteps, xsrc, wsrc
        s.MX = 2 if big else 1
        s.NXF = 4 * s.MX
        s.SPS = 2 if big else 4
        s.STEP = (s.NXF + NB) * 1024
        s.XS = nsteps * 1024
        s.WS = (nsteps + 1) * 1024 if big else nsteps * 1024
        s.nst = (nsteps + s.SPS - 1) // s.SPS
        s.skip = s.SPS * s.nst - nsteps
        s.SL = [x * 1024 for x in {"wo": [108, 0, 36, 72], "gu": [0, 44, 88], "down": [88, 48, 124, 0], "qkv": [0, 124, 88, 48]}[name]]
        s.R = len(s.SL)
        s.EARLY = eval(os.environ.get("EARLY", '{"wo": {3: [0], 4: [1]}, "gu": {8: [1], 9: [0, 2]}, "down": {12: [0, 1], 13: [2]}, "qkv": {}}'))[name]
        s.nx = 4
        s.nw = NB // 2 if big else NB
        s.n = s.nx + s.nw
        assert s.SPS * s.STEP <= SLOT

PH = {
    "qkv": Ph("qkv", True, 8, 20, XA, WQKV_F),
    "wo": Ph("wo", False, 5, 20, OF, WO_F),
    "gu": Ph("gu", True, 14, 20, XB, WGU_F),
    "down": Ph("down", False, 5, 54, HF, WD_F),
}

S_W = 12
S_RB, S_CB = 13, 14
S_RS, S_CS = 15, 16
S_HD, S_QB = 17, 18
S_LAY = 19
S_SLOT = 20
S_SEAM = 21
S_TS = 22
S_ROLE = 23
S_FAST = 3
TK = CNT + 64*512 + 384
FL = CNT + 128*512 + 384
FORCE_SLOW = int(os.environ.get('FORCE_SLOW', '0'))
RES = 16


def gen_mega():
    k = K("mega")
    L_end = "L_mega_end"

    def ts(i, role=0, wave=0):
        if not INSTR:
            return
        lab = k.newlabel()
        k(f"s_xor_b32 s96, s{S_ROLE}, {role}")
        k(f"s_xor_b32 s97, s{S_W}, {wave}")
        k("s_or_b32 s96, s96, s97")
        k(f"s_cbranch_scc1 {lab}")
        k("s_memtime s[96:97]")
        k("s_memrealtime s[98:99]")
        k("s_waitcnt lgkmcnt(0)")
        k("s_mov_b64 s[100:101], exec")
        k("s_mov_b64 exec, 1")
        k("v_mov_b32 v0, s96")
        k(f"buffer_store_dword v0, off, s[8:11], s{S_TS} offset:{8*i}")
        k("s_nop 1")
        k("v_mov_b32 v0, s98")
        k(f"buffer_store_dword v0, off, s[8:11], s{S_TS} offset:{8*i+4}")
        k("s_mov_b64 exec, s[100:101]")
        k.label(lab)

    def get_coords():
        k(f"v_mov_b32 v9, {SCRATCH + 1024:#x}")
        k("ds_read_b32 v9, v9")
        k("s_waitcnt lgkmcnt(0)")
        k("v_readfirstlane_b32 s28, v9")
        k(f"s_lshr_b32 s{S_FAST}, s28, 8")
        k("s_bfe_u32 s30, s28, 0x30005")
        k(f"s_lshl_b32 s{S_RS}, s30, 2")
        k("s_and_b32 s29, s28, 3")
        k(f"s_add_u32 s{S_RS}, s{S_RS}, s29")
        k(f"s_bfe_u32 s{S_CS}, s28, 0x30002")
        k(f"s_lshl_b32 s{S_RB}, s30, 1")
        k("s_and_b32 s29, s28, 1")
        k(f"s_add_u32 s{S_RB}, s{S_RB}, s29")
        k(f"s_bfe_u32 s{S_CB}, s28, 0x40001")
        k(f"s_mov_b32 s{S_HD}, s{S_RS}")
        k(f"s_mov_b32 s{S_QB}, s{S_CS}")

    def next_slot(dst=S_SLOT):
        k(f"s_add_u32 s{dst}, s{dst}, {SLOT}")
        k(f"s_cmp_eq_u32 s{dst}, {3*SLOT}")
        k(f"s_cselect_b32 s{dst}, 0, s{dst}")

    k("s_cmp_ge_u32 s2, 256")
    k(f"s_cbranch_scc1 {L_end}")
    k("s_getpc_b64 s[30:31]")
    k("s_lshr_b32 s28, s2, 3")
    k("s_mul_i32 s28, s28, 1536")
    k("v_lshl_add_u32 v4, v0, 7, s28")
    k("v_min_u32 v4, L_mega_last - mega_kernel - 128, v4")
    k("v_cmp_gt_u32 vcc, 12, v0")
    k("s_and_saveexec_b64 s[28:29], vcc")
    k("s_cbranch_execz L_nocode")
    k("global_load_dword v16, v4, s[30:31]")
    k.label("L_nocode")
    k("s_mov_b64 exec, s[28:29]")
    k("s_load_dwordx2 s[4:5], s[0:1], 72")
    k("s_load_dwordx2 s[6:7], s[0:1], 56")
    k("s_load_dwordx2 s[86:87], s[0:1], 16")
    k("s_load_dwordx4 s[88:91], s[0:1], 32")
    k("s_load_dwordx2 s[92:93], s[0:1], 48")
    k("s_load_dwordx4 s[32:35], s[0:1], 0")
    k("s_load_dwordx2 s[36:37], s[0:1], 64")
    k("v_and_b32 v1, 63, v0")
    k("v_lshrrev_b32 v2, 6, v0")
    k("v_lshlrev_b32 v3, 4, v1")
    k(f"v_readfirstlane_b32 s{S_W}, v2")
    k(f"s_and_b32 s{S_RB}, s2, 1")
    k(f"s_lshl_b32 s{S_RB}, s{S_RB}, 3")
    k("s_bfe_u32 s28, s2, 0x30003")
    k(f"s_add_u32 s{S_RB}, s{S_RB}, s28")
    k(f"s_bfe_u32 s{S_CB}, s2, 0x20001")
    k(f"s_lshl_b32 s{S_CB}, s{S_CB}, 2")
    k("s_lshr_b32 s28, s2, 6")
    k(f"s_add_u32 s{S_CB}, s{S_CB}, s28")
    k(f"s_mov_b32 s{S_LAY}, 0")
    k(f"s_mov_b32 s{S_SEAM}, 0")
    k(f"s_lshl_b32 s{S_TS}, s2, 10")
    k(f"s_add_u32 s{S_TS}, s{S_TS}, {TSBUF:#x}")
    k("s_waitcnt lgkmcnt(0)")
    srd(k, 8, 4, WS_SIZE)
    srd(k, 24, 6, 2048 * 1280)
    srd(k, 68, 32, 2048 * 1280)
    srd(k, 72, 34, 640 * 3840)
    srd(k, 76, 36, 256)
    k("s_mov_b64 s[32:33], s[34:35]")
    k(f"s_mul_i32 s47, s{S_CB}, 240")
    k(f"s_lshl_b32 s28, s{S_CB}, 8")
    k("s_sub_u32 s28, s28, 256")
    k(f"s_cmp_ge_u32 s{S_CB}, 11")
    k("s_cselect_b32 s47, s28, s47")
    k("v_mov_b32 v15, 1")
    k(f"s_mov_b32 s{S_ROLE}, 0")
    k(f"s_cmp_lt_u32 s{S_W}, 4")
    k("s_cbranch_scc1 L_comp")
    k(f"s_mov_b32 s{S_ROLE}, 1")

    k(f"s_sub_u32 s{S_W}, s{S_W}, 4")
    k(f"s_setprio {LPRIO}")
    AX = {"qkv": 32, "wo": 48, "gu": 32, "down": 48}
    DUMMY = {"qkv": (10, 0xb0), "gu": (15, 0xff0)}
    def dummy_mask(p, dst):
        c, msk = DUMMY[p.name]
        k(f"s_cmp_eq_u32 s{S_CB}, {c}")
        k(f"s_cselect_b32 s{dst}, {msk:#x}, 0")
    def l_setup_w(p):
        a = AX[p.name] + 4
        rc = S_CB if p.big else S_CS
        k(f"s_mul_i32 s28, s{rc}, {p.NB*p.WS}")
        k(f"s_lshr_b32 s29, s{S_W}, {1 if p.big else 0}")
        k("s_lshl_b32 s29, s29, 10")
        k("s_add_u32 s28, s28, s29")
        k(f"s_add_u32 s28, s28, {p.wsrc - p.skip*1024:#x}")
        if not p.big:
            for j in range(p.nw):
                k(f"s_add_u32 s29, s28, {j*p.WS - (j&3)*1024}")
                k(f"v_add_u32 v{a+j}, s29, v3")
            return
        dummy_mask(p, 30)
        k(f"s_and_b32 s29, s{S_W}, 1")
        k(f"s_mul_i32 s29, s29, {p.nw}")
        for j in range(p.nw):
            k("s_bitcmp1_b32 s30, s29")
            k("s_cselect_b32 s31, 0, s29")
            k(f"s_mul_i32 s31, s31, {p.WS}")
            k("s_add_u32 s31, s31, s28")
            k(f"s_sub_u32 s31, s31, {(j&3)*1024}")
            k(f"v_add_u32 v{a+j}, s31, v3")
            k("s_add_u32 s29, s29, 1")
        if p.name == "qkv":
            k(f"s_cmp_lt_u32 s{S_CB}, 11")
            k("s_cselect_b32 s30, 0x80, 0")
            k("s_cmp_eq_u32 s29, 8")
            k("s_cselect_b32 s30, s30, 0")
            k("v_and_b32 v4, s30, v3")
            k(f"v_sub_u32 v{a+3}, v{a+3}, v4")
    def l_setup_x(p):
        a = AX[p.name]
        rr = S_RB if p.big else S_RS
        k(f"s_mul_i32 s28, s{rr}, {p.NXF*p.XS}")
        if p.big:
            k(f"s_and_b32 s29, s{S_W}, 1")
            k(f"s_mul_i32 s29, s29, {4*p.XS}")
            k("s_add_u32 s28, s28, s29")
            k(f"s_lshr_b32 s29, s{S_W}, 1")
        else:
            k(f"s_mov_b32 s29, s{S_W}")
        k("s_lshl_b32 s29, s29, 10")
        k("s_add_u32 s28, s28, s29")
        k(f"s_add_u32 s28, s28, {p.xsrc - p.skip*1024:#x}")
        if p.name == "wo":
            k(f"s_add_u32 s28, s28, s{S_LAY}")
        for j in range(4):
            k(f"v_add_u32 v{a+j}, s28, v3")
            if j < 3:
                k(f"s_add_u32 s28, s28, {p.XS - 1024}")
    LOFF = {"qkv": 40, "wo": 42, "gu": 44, "down": 42}
    for nm in ("qkv", "wo", "gu"):
        p = PH[nm]
        r = LOFF[nm]
        if p.big:
            k(f"s_lshr_b32 s28, s{S_W}, 1")
            k(f"s_mul_i32 s28, s28, {p.STEP}")
            k(f"s_and_b32 s29, s{S_W}, 1")
            k(f"s_lshl_b32 s30, s29, 12")
            k(f"s_add_u32 s{r}, s28, s30")
            k(f"s_mul_i32 s30, s29, {p.nw*1024}")
            k(f"s_add_u32 s{r+1}, s28, s30")
            k(f"s_add_u32 s{r+1}, s{r+1}, {p.NXF*1024}")
        else:
            k(f"s_mul_i32 s{r}, s{S_W}, {p.STEP}")
            k(f"s_add_u32 s{r+1}, s{r}, 4096")
    class Trk:
        def __init__(t): t.ops = []
        def has(t, g): return any(x == g for x, n in t.ops)
        def allowed(t, tags):
            last = max(i for i, (g, n) in enumerate(t.ops) if g in tags)
            return sum(n for g, n in t.ops[last+1:])
    def l_issue(p, part, st, trk):
        a = AX[p.name] + (0 if part == "x" else 4)
        n = p.nx if part == "x" else p.nw
        r = LOFF[p.name] + (0 if part == "x" else 1)
        lds = p.SL[st % p.R]
        lab = None
        if st == 0 and p.skip:
            lab = k.newlabel()
            k(f"s_cmp_lt_u32 s{S_W}, {p.skip}")
            k(f"s_cbranch_scc1 {lab}")
        for j in range(n):
            if j % 4 == 0:
                k(f"s_add_u32 m0, s{r}, {lds + j*1024}")
                k(f"s_mov_b32 s35, {st*p.SPS*1024}")
            k(f"buffer_load_dwordx4 v{a+j}, s[8:11], s35 offen offset:{(j&3)*1024} {LSC if part == 'x' else ''} lds")
        if lab:
            k.label(lab)
        trk.ops.append(((p.name, part, st), 0 if lab else n))
    def l_touch_h():
        k(f"s_lshl_b32 s28, s{S_RB}, 2")
        k(f"s_add_u32 s28, s28, s{S_W}")
        k(f"s_mul_i32 s28, s28, {2*55296}")
        k(f"s_add_u32 s28, s28, {HF:#x}")
        k(f"s_mul_i32 s29, s{S_CB}, 3072")
        k("s_add_u32 s30, s28, s29")
        k(f"s_lshl_b32 s29, s{S_CB}, 9")
        k("s_add_u32 s29, s28, s29")
        k(f"s_add_u32 s29, s29, {46*1024}")
        k(f"s_cmp_eq_u32 s{S_CB}, 15")
        k("s_cselect_b32 s31, 0, 1024")
        k("v_add_u32 v24, s31, v3")
        k("v_add_u32 v25, s31, v24")
        for m in range(2):
            for j in range(3):
                k(f"buffer_load_dwordx4 v[20:23], v{3 if j == 0 else 23+j}, s[8:11], s30 offen sc1")
            k("s_mov_b32 exec_hi, 0")
            k("buffer_load_dwordx4 v[20:23], v3, s[8:11], s29 offen sc1")
            k("s_mov_b64 exec, -1")
            if m == 0:
                k("s_add_u32 s30, s30, 55296")
                k("s_add_u32 s29, s29, 55296")
    def l_touch_x():
        k(f"s_lshl_b32 s28, s{S_RS}, 2")
        k(f"s_add_u32 s28, s28, s{S_W}")
        k("s_mul_i32 s29, s28, 20480")
        k(f"s_add_u32 s29, s29, {XA:#x}")
        k(f"s_lshl_b32 s30, s{S_CS}, 11")
        k("s_add_u32 s30, s30, s29")
        k(f"s_lshl_b32 s31, s{S_CS}, 9")
        k("s_add_u32 s31, s31, s29")
        k("s_add_u32 s31, s31, 16384")
        k("buffer_load_dwordx4 v[20:23], v3, s[8:11], s30 offen sc1")
        k("buffer_load_dwordx4 v[20:23], v3, s[8:11], s30 offen offset:1024 sc1")
        k("s_mov_b32 exec_hi, 0")
        k("buffer_load_dwordx4 v[20:23], v3, s[8:11], s31 offen sc1")
        k(f"s_lshl_b32 s29, s{S_CS}, 14")
        k("s_lshl_b32 s28, s28, 7")
        k("s_add_u32 s29, s29, s28")
        k(f"s_add_u32 s29, s29, {STA:#x}")
        k("s_mov_b64 exec, 1")
        k("buffer_load_dwordx4 v[20:23], v3, s[8:11], s29 offen sc1")
        k("s_mov_b64 exec, -1")
    def l_gemm(p, nxt, trk):
        def need(st):
            return trk.allowed({(p.name, "x", st), (p.name, "w", st)})
        def fill(st):
            for part in ("w", "x"):
                if not trk.has((p.name, part, st)):
                    l_issue(p, part, st, trk)
        fill(0)
        fill(1)
        for st in range(p.nst):
            k(f"s_waitcnt vmcnt({need(st)})")
            k("s_barrier")
            if st == 0:
                for i in range(2, p.R):
                    fill(i)
                if nxt:
                    l_setup_w(nxt)
                if p.name == "down" and TOUCH & 16:
                    lab = k.newlabel()
                    k(f"s_cmp_lg_u32 s{S_LAY}, 0")
                    k(f"s_cbranch_scc1 {lab}")
                    l_touch_x()
                    k.label(lab)
            elif st - 1 + p.R < p.nst:
                fill(st - 1 + p.R)
            if st in SPT.get(p.name, []):
                i_ = SPT[p.name].index(st)
                base, size = (WD_F, 40*55296) if p.name == "gu" else (WQKV_F, 128*21504)
                k(f"s_lshl_b32 s28, s{S_CS}, 2")
                k(f"s_and_b32 s29, s{S_RS}, 3")
                k("s_add_u32 s28, s28, s29")
                k("s_lshl_b32 s28, s28, 2")
                k(f"s_add_u32 s28, s28, s{S_W}")
                k("s_lshl_b32 s28, s28, 13")
                k(f"s_add_u32 s28, s28, {i_ << 20}")
                k(f"s_min_u32 s28, s28, {size - 8192}")
                k(f"s_add_u32 s28, s28, {base:#x}")
                k("v_lshlrev_b32 v24, 7, v1")
                k("buffer_load_dword v20, v24, s[8:11], s28 offen")
                trk.ops.append(("t", 1))
            if p.name == "gu" and st == p.nst - 1 and TOUCH & 2:
                l_touch_h()
                trk.ops.append(("t", 8))
            if p.name == "down" and st == min(p.EARLY):
                assert st == p.nst - 2
                lab = k.newlabel()
                k(f"s_cmp_eq_u32 s{S_LAY}, 0")
                k(f"s_cbranch_scc1 {lab}")
                k("s_waitcnt vmcnt(0)")
                k("s_barrier")
                k("s_endpgm")
                k.label(lab)
            for i in p.EARLY.get(st, []):
                l_issue(nxt, "w", i, trk)
        return trk

    k("v_lshrrev_b32 v8, 3, v1")
    k("v_and_b32 v9, 7, v1")
    k("v_lshrrev_b32 v10, 4, v1")
    k("v_xor_b32 v9, v9, v10")
    k("v_mul_u32_u24 v8, 1280, v8")
    k(f"s_lshl_b32 s28, s{S_RB}, 2")
    k(f"s_add_u32 s28, s28, s{S_W}")
    k(f"s_mul_i32 s28, s28, {32*1280}")
    for j in range(4):
        k(f"v_xor_b32 v11, {4*(j&1)}, v9")
        k("v_lshl_add_u32 v11, v11, 4, v8")
        k(f"s_add_u32 s29, s28, {j*(8*1280-1024)}")
        k(f"v_add_u32 v{32+j}, s29, v11")
    k("v_and_b32 v9, 15, v1")
    k("v_lshlrev_b32 v11, 1, v10")
    k("v_xor_b32 v9, v9, v11")
    k("v_mul_u32_u24 v8, 3840, v10")
    k(f"s_mul_i32 s28, s{S_W}, {16*3840}")
    k("s_add_u32 s28, s28, s47")
    for j in range(4):
        k(f"v_xor_b32 v11, {8*(j>>1)}, v9")
        k("v_lshl_add_u32 v11, v11, 4, v8")
        k(f"s_add_u32 s29, s28, {j*(4*3840-1024)}")
        k(f"v_add_u32 v{36+j}, s29, v11")
    k(f"s_lshl_b32 s30, s{S_W}, 12")
    def raw_issue(st):
        k(f"s_add_u32 m0, s30, {(st%4)*32768 + 16384}")
        k(f"s_mov_b32 s35, {st*64*3840}")
        for j in range(4):
            k(f"buffer_load_dwordx4 v{36+j}, s[72:75], s35 offen offset:{1024*j} lds")
        k(f"s_add_u32 m0, s30, {(st%4)*32768}")
        k(f"s_movk_i32 s35, {st*128}")
        for j in range(4):
            k(f"buffer_load_dwordx4 v{32+j}, s[68:71], s35 offen offset:{1024*j} lds")
    raw_issue(0)
    raw_issue(1)
    issued = 2
    for st in range(10):
        k(f"s_waitcnt vmcnt({8*(issued-1-st)})")
        k("s_barrier")
        hi = 4 if st == 0 else min(10, st + 4)
        while issued < hi:
            raw_issue(issued)
            issued += 1
    k("s_barrier")
    k("s_branch L_l_attn")
    k.label("L_l_after_attn")
    t = Trk()
    for i in range(WOPRE):
        l_issue(PH["wo"], "w", i, t)
    k("s_barrier")
    for (nm, nx) in (("wo", "gu"), ("gu", "down"), ("down", "qkv")):
        t = l_gemm(PH[nm], PH[nx], t)
        if nm == "down":
            k(f"s_mov_b32 s{S_LAY}, {LSTR:#x}")
            k(f"s_add_u32 s{S_TS}, s{S_TS}, 320")
        l_setup_x(PH[nx])
        k("s_barrier")
        k("s_barrier")
    l_gemm(PH["qkv"], None, t)
    k("s_branch L_l_attn")
    k.label("L_l_done")
    k("s_waitcnt vmcnt(0)")
    k("s_endpgm")

    k.label("L_comp")
    k("v_and_b32 v7, 15, v1")
    k("v_lshrrev_b32 v8, 4, v1")
    k("v_lshlrev_b32 v2, 7, v1")

    def small_addr():
        k(f"s_lshl_b32 s28, s{S_RS}, 2")
        k(f"s_add_u32 s28, s28, s{S_W}")
        k("s_mul_i32 s29, s28, 20480")
        k(f"s_lshl_b32 s30, s{S_CS}, 11")
        k("s_add_u32 s30, s30, s29")
        k(f"s_lshl_b32 s31, s{S_CS}, 9")
        k("s_add_u32 s31, s31, s29")
        k("s_add_u32 s31, s31, 16384")
        k("v_lshrrev_b32 v9, 1, v8")
        k("v_lshlrev_b32 v9, 8, v9")
        k("v_lshl_add_u32 v9, v7, 4, v9")
    def res_load():
        k("v_mul_u32_u24 v9, 1280, v7")
        k("v_lshl_add_u32 v9, v8, 3, v9")
        k(f"s_lshl_b32 s28, s{S_RS}, 2")
        k(f"s_add_u32 s28, s28, s{S_W}")
        k(f"s_mul_i32 s28, s28, {16*1280}")
        k(f"s_mul_i32 s29, s{S_CS}, 160")
        k("s_add_u32 s28, s28, s29")
        for j in range(5):
            k(f"buffer_load_dwordx2 {vr(RES+2*j,2)}, v9, s[68:71], s28 offen offset:{32*j}")

    SSIG, SSO, SPO = 54, 53, 94
    def seam_pre(seam, idx_setup):
        idx_setup()
        k("s_lshl_b32 s28, s28, 9")
        k(f"s_add_u32 s{SSO}, s{S_SEAM}, {CNT + 4*seam:#x}")
        k(f"s_add_u32 s{SPO}, s28, s{SSO}")
    def seam_post(both_roles=False, filler=None):
        lab, l1, lp = k.newlabel(), k.newlabel(), k.newlabel()
        if both_roles:
            k(f"s_cmp_lg_u32 s{S_ROLE}, 0")
            k(f"s_cbranch_scc1 {lab}")
        k(f"s_cmp_lg_u32 s{S_W}, 0")
        k(f"s_cbranch_scc1 {l1}")
        k(f"s_mov_b64 exec, s[{SSIG}:{SSIG+1}]")
        k(f"buffer_atomic_add v15, v12, s[8:11], s{SSO} offen sc1")
        k("s_mov_b64 exec, -1")
        k.label(l1)
        if filler:
            filler()
        k(f"s_cmp_lg_u32 s{S_W}, 1")
        k(f"s_cbranch_scc1 {lab}")
        k("s_mov_b32 s95, 0x40000")
        k(f"s_add_u32 s66, s{SPO}, 128")
        k(f"s_add_u32 s67, s{SPO}, 256")
        k.label(lp)
        k(f"s_load_dword s63, s[4:5], s{SPO} glc")
        k("s_load_dword s64, s[4:5], s66 glc")
        k("s_load_dword s65, s[4:5], s67 glc")
        k("s_sub_u32 s95, s95, 1")
        k(f"s_cbranch_scc1 {lp}_x")
        k("s_waitcnt lgkmcnt(0)")
        k("s_xor_b32 s63, s63, s60")
        k("s_xor_b32 s64, s64, s61")
        k("s_xor_b32 s65, s65, s62")
        k("s_or_b32 s63, s63, s64")
        k("s_or_b32 s63, s63, s65")
        k(f"s_cbranch_scc1 {lp}")
        k.label(lp + "_x")
        k("s_waitcnt lgkmcnt(0)")
        k.label(lab)
    def lseam_pre(seam, sig_group, sig_member, poll_group):
        k(f"s_lshr_b32 s28, s{S_LAY}, {25 - 15}")
        k(f"s_add_u32 s28, s28, {FL + seam*16*512:#x}")
        sig_group()
        k("s_lshl_b32 s29, s29, 9")
        k(f"s_add_u32 s{SSO}, s28, s29")
        sig_member()
        k("s_lshl_b32 s29, s29, 2")
        k(f"s_add_u32 s{SSO}, s{SSO}, s29")
        poll_group()
        k("s_lshl_b32 s29, s29, 9")
        k(f"s_add_u32 s{SPO}, s28, s29")
        k("v_lshlrev_b32 v13, 2, v1")
    def lseam_post(nprod, filler=None):
        lab, l1, l2, lp = k.newlabel(), k.newlabel(), k.newlabel(), k.newlabel()
        k(f"s_cmp_lg_u32 s{S_W}, 0")
        k(f"s_cbranch_scc1 {l1}")
        k("s_mov_b64 exec, 1")
        k(f"s_cmp_lg_u32 s{S_FAST}, 0")
        k(f"s_cbranch_scc1 {l2}")
        k("buffer_wbl2 sc1")
        k("s_waitcnt vmcnt(0)")
        k(f"buffer_store_dword v15, off, s[8:11], s{SSO} sc0 sc1")
        k("s_mov_b64 exec, -1")
        k(f"s_branch {l1}")
        k.label(l2)
        k(f"buffer_store_dword v15, off, s[8:11], s{SSO}")
        k("s_mov_b64 exec, -1")
        k.label(l1)
        if filler:
            filler()
        k(f"s_cmp_lg_u32 s{S_W}, 1")
        k(f"s_cbranch_scc1 {lab}")
        k("s_mov_b32 s95, 0x40000")
        k(f"s_mov_b64 exec, {(1 << nprod) - 1:#x}")
        k.label(lp)
        k(f"buffer_load_dword v14, v13, s[8:11], s{SPO} offen sc1")
        k("s_waitcnt vmcnt(0)")
        k("v_cmp_ne_u32 vcc, 1, v14")
        k("s_sub_u32 s95, s95, 1")
        k(f"s_cbranch_vccz {lp}_x")
        k(f"s_cbranch_scc0 {lp}")
        k.label(lp + "_x")
        k("s_mov_b64 exec, -1")
        k.label(lab)
    g_qb = lambda: k(f"s_mov_b32 s29, s{S_QB}")
    g_hd = lambda: k(f"s_mov_b32 s29, s{S_HD}")
    g_rb = lambda: k(f"s_mov_b32 s29, s{S_RB}")
    g_cb = lambda: k(f"s_mov_b32 s29, s{S_CB}")
    g_rs2 = lambda: k(f"s_lshr_b32 s29, s{S_RS}, 1")
    def g_sm():
        k(f"s_and_b32 s29, s{S_RS}, 1")
        k("s_lshl_b32 s29, s29, 3")
        k(f"s_add_u32 s29, s29, s{S_CS}")
    def targets(t):
        for i in range(3):
            k(f"s_mov_b32 s{60+i}, {t[i] if i < len(t) else 0}")

    ACC = 32
    def c_layout(p):
        FB = ACC + p.MX * p.NB * 4
        if p.name == "gu":
            XBUF = [FB, FB + 8]; WBUF = [FB + 16, FB + 44]; top = FB + 72
        elif p.name == "qkv":
            XBUF = [FB, FB + 8]; WBUF = [FB + 16, FB + 48]; top = FB + 80
        else:
            XBUF = [FB, FB + 8]; WBUF = [FB + 16, FB + 56]; top = FB + 96
        return FB, XBUF, WBUF, top
    def acc(p, m, j):
        return ACC + (m * p.NB + j) * 4
    def c_units(p):
        FB, XBUF, WBUF, top = c_layout(p)
        U = []
        if p.name == "gu":
            for u in range(4):
                st, h = u >> 1, u & 1
                rd = []
                if h == 0:
                    rd += [(XBUF[st] + 4 * m, 5, st * p.STEP + 1024 * m) for m in range(2)]
                rd += [(WBUF[h] + 4 * j, 6, st * p.STEP + (8 + 7 * h + j) * 1024) for j in range(7)]
                mm = [(acc(p, m, 7 * h + j), WBUF[h] + 4 * j, XBUF[st] + 4 * m) for j in range(7) for m in range(2)]
                U.append((rd, mm))
        elif p.name == "qkv":
            for st in range(2):
                rd = [(XBUF[st] + 4 * m, 5, st * p.STEP + 1024 * m) for m in range(2)]
                rd += [(WBUF[st] + 4 * j, 6, st * p.STEP + (8 + j) * 1024) for j in range(8)]
                mm = [(acc(p, m, j), WBUF[st] + 4 * j, XBUF[st] + 4 * m) for j in range(8) for m in range(2)]
                U.append((rd, mm))
        else:
            for u in range(2):
                rd, mm = [], []
                for s_ in range(2):
                    st = 2 * u + s_
                    rd += [(XBUF[u] + 4 * s_, 5, st * p.STEP)]
                    rd += [(WBUF[u] + 20 * s_ + 4 * j, 6, st * p.STEP + (4 + j) * 1024) for j in range(5)]
                    mm += [(acc(p, 0, j), WBUF[u] + 20 * s_ + 4 * j, XBUF[u] + 4 * s_) for j in range(5)]
                U.append((rd, mm))
        return U
    AXR, AWR = [4, 5, 6, 30], [27, 28, 29, 31]
    def c_addr(p):
        k(f"s_mul_i32 s28, s{S_W}, {p.MX*1024}")
        for i in range(p.R):
            k(f"v_add_u32 v{AWR[i]}, {p.SL[i]:#x}, v3")
            k(f"v_add_u32 v{AXR[i]}, s28, v{AWR[i]}")
    def c_mainloop(p, swap, tag, tail_extra=(), after_b0=None):
        U = c_units(p)
        NUS = len(U)
        def rdi(r, slot, sp=False):
            if sp and r[1] == 5:
                return f"ds_read2st64_b64 {vr(r[0],4)}, v9 offset0:{r[2]//512} offset1:{r[2]//512+1}"
            return f"ds_read_b128 {vr(r[0],4)}, v{(AXR if r[1] == 5 else AWR)[slot]} offset:{r[2]}"
        def special(slot):
            if p.name != "wo":
                return False
            k("v_lshlrev_b32 v9, 3, v1")
            k(f"v_sub_u32 v9, v{AXR[slot]}, v9")
            return True
        extra = list(tail_extra)
        seen = set()
        def run(mm, rd, nex=0, mid=(), z=False):
            rd = list(rd)
            mid = list(mid)
            per = 1 if len(rd) <= len(mm) else 2
            for i, (a, w, x) in enumerate(mm):
                a_, b_ = (w, x) if swap else (x, w)
                c_ = "0" if z and a not in seen else vr(a, 4)
                seen.add(a)
                k(f"{MF} {vr(a,4)}, {vr(a_,4)}, {vr(b_,4)}, {c_}")
                if not rd and mid:
                    k(mid.pop(0))
                for _ in range(per):
                    if rd:
                        k(rd.pop(0))
                for _ in range(nex):
                    if extra:
                        k(extra.pop(0))
            for r in rd + mid:
                k(r)
        R = p.R
        def stage(slot, mid=(), z=False, nex=0, entry=None):
            for u in range(NUS):
                last = u == NUS - 1
                if entry and u == entry[0]:
                    k.label(entry[1])
                k("s_waitcnt lgkmcnt(0)")
                if last:
                    k("s_barrier")
                ns = (slot + 1) % R if last else slot
                run(U[u][1], [rdi(r, ns) for r in U[(u + 1) % NUS][0]], nex, mid if last else (), z)
        c_addr(p)
        nfull = p.nst - 1
        sp = special(0)
        npeel = 1 if p.big else 0
        u0 = NUS * p.skip // p.SPS
        k(f"s_mov_b32 s36, {(nfull - npeel + R - 1) // R}")
        k("s_barrier")
        ts(tag + 1)
        for r in U[u0][0]:
            k(rdi(r, 0, sp))
        if after_b0:
            after_b0()
        if p.name == "wo":
            for st in range(nfull):
                stage(st % R, nex=1 if st else 0)
        else:
            L = k.newlabel()
            if npeel:
                stage(0, (), True)
            p0 = (R - (nfull - npeel) % R) % R
            if p0 or u0:
                k(f"s_branch {L}_mid")
            k(".p2align 4")
            k.label(L)
            for pos in range(R):
                stage((npeel + pos - p0) % R, ["s_sub_u32 s36, s36, 1", "s_cmp_lg_u32 s36, 0"] if pos == R - 1 else (),
                      entry=(u0, L + "_mid") if pos == p0 and (p0 or u0) else None)
            k(f"s_cbranch_scc1 {L}")
        sl = nfull % R
        nt = NUS
        nm_ = sum(len(U[u][1]) for u in range(nt))
        nex = (len(extra) + nm_ - 1) // nm_
        for u in range(nt):
            sp = special(sl) if u < nt - 1 else False
            k("s_waitcnt lgkmcnt(0)")
            run(U[u][1], [rdi(r, sl, sp) for r in U[u + 1][0]] if u < nt - 1 else [], nex)
        assert not extra
        k.nop(3)
        ts(tag + 2)

    EXT = 216
    STR = 248
    def ext_reg(p, j):
        return EXT + 2 * j
    def c_ext_loads(p):
        npl = 2
        k(f"s_mul_i32 s28, s{S_CB}, {p.NB*p.WS}")
        k(f"s_add_u32 s28, s28, {p.wsrc + p.nsteps*1024:#x}")
        c, msk = DUMMY[p.name]
        k(f"s_cmp_eq_u32 s{S_CB}, {c}")
        k(f"s_cselect_b32 s30, 0, {p.WS}")
        k(f"v_lshlrev_b32 v9, {3 if npl == 2 else 4}, v1")
        for j in range(p.NB):
            if (msk >> j) & 1:
                k(f"s_mul_i32 s29, s30, {j}")
                k("s_add_u32 s29, s29, s28")
            else:
                k(f"s_add_u32 s29, s28, {j*p.WS}")
            k(f"buffer_load_dwordx{npl} {vr(ext_reg(p,j),npl)}, v9, s[8:11], s29 offen")
    def c_ext_build(p, k=k):
        for j in range(p.NB):
            r = ext_reg(p, j)
            k(f"v_add_f32 v10, v{r}, v{r+1}")
            k("v_cvt_pk_bf16_f32 v11, v10, v10")
            k("v_and_b32 v11, 0xffff0000, v11")
            k("v_sub_f32 v11, v10, v11")
            k(f"v_cvt_pk_bf16_f32 v{r}, v10, v11")
            k(f"v_cvt_pk_bf16_f32 v{r+1}, v10, v11")
    def c_zero_acc(p):
        for i in range(0, p.MX * p.NB * 4, 2):
            k(f"v_mov_b64 {vr(ACC+i,2)}, 0")
    def c_stats_loads(stats):
        T = STR
        k("v_lshlrev_b32 v9, 15, v8")
        k("v_lshl_add_u32 v9, v7, 3, v9")
        k(f"s_lshl_b32 s28, s{S_RB}, 2")
        k(f"s_add_u32 s28, s28, s{S_W}")
        k("s_lshl_b32 s28, s28, 8")
        k(f"s_add_u32 s28, s28, {stats:#x}")
        k("s_add_u32 s29, s28, 16384")
        for m in range(2):
            k(f"buffer_load_dwordx2 {vr(T+4*m,2)}, v9, s[8:11], s28 offen offset:{128*m} {LSC}")
            k(f"buffer_load_dwordx2 {vr(T+4*m+2,2)}, v9, s[8:11], s29 offen offset:{128*m} {LSC}")
    def c_stats_valu(wait=True):
        T = STR
        L = ["s_waitcnt vmcnt(0)"] if wait else []
        add = [f"v_add_f32 v{T+4*m+i}, v{T+4*m+i}, v{T+4*m+2+i}" for m in range(2) for i in range(2)]
        L += add
        for sw in ("v_permlane32_swap_b32", "v_permlane16_swap_b32"):
            L += [f"v_mov_b32 v{T+4*m+2+i}, v{T+4*m+i}" for m in range(2) for i in range(2)]
            L += ["s_nop 1"]
            L += [f"{sw} v{T+4*m+i}, v{T+4*m+2+i}" for m in range(2) for i in range(2)]
            L += ["s_nop 0"]
            L += add
        for m in range(2):
            t = T + 4 * m
            L += [f"v_mul_f32 v{t}, {f2u(-1.0/640):#x}, v{t}",
                  f"v_mul_f32 v{t+1}, {f2u(1.0/640):#x}, v{t+1}",
                  f"v_cvt_pk_bf16_f32 v{t+2}, v{t}, v{t}",
                  f"v_fma_f32 v{t+1}, -v{t}, v{t}, v{t+1}",
                  f"v_and_b32 v{t+3}, 0xffff0000, v{t+2}",
                  f"v_max_f32 v{t+1}, 0, v{t+1}",
                  f"v_sub_f32 v{t+3}, v{t}, v{t+3}",
                  f"v_add_f32 v{t+1}, {f2u(1e-5):#x}, v{t+1}",
                  f"v_cvt_pk_bf16_f32 v{t+3}, v{t+3}, v{t+3}",
                  f"v_rsq_f32 v{10+m}, v{t+1}"]
        return L
    def ext_mfma(p, j, swap):
        for m in range(2):
            x, r = STR + 4 * m + 2, ext_reg(p, j)
            a_, b_ = (r, x) if swap else (x, r)
            k(f"v_mfma_f32_16x16x16_bf16 {vr(acc(p,m,j),4)}, {vr(a_,2)}, {vr(b_,2)}, {vr(acc(p,m,j),4)}")

    def c_res_to_acc():
        for i in range(10):
            k(f"v_lshlrev_b32 v{ACC+2*i}, 16, v{RES+i}")
            k(f"v_and_b32 v{ACC+2*i+1}, 0xffff0000, v{RES+i}")

    def c_small_pre(xdst, sdst, layadd):
        small_addr()
        k("v_mov_b32 v14, v9")
        k(f"s_mov_b32 s29, {xdst:#x}")
        k("s_add_u32 s30, s30, s29")
        k("s_add_u32 s31, s31, s29")
        k("v_lshlrev_b32 v26, 3, v7")
        k(f"s_lshl_b32 s29, s{S_CS}, 14")
        k("s_lshl_b32 s28, s28, 7")
        k("s_add_u32 s29, s29, s28")
        k(f"s_add_u32 s29, s29, {sdst:#x}")
    def c_small_touch():
        if not TOUCH & 4:
            return
        k("buffer_load_dwordx4 v[200:203], v3, s[8:11], s30 offen sc1")
        k("buffer_load_dwordx4 v[200:203], v3, s[8:11], s30 offen offset:1024 sc1")
        k("buffer_load_dwordx4 v[200:203], v14, s[8:11], s31 offen sc1")
        k("buffer_load_dwordx2 v[200:201], v26, s[8:11], s29 offen sc1")
    def c_small_epilogue():
        T = 56
        for i in range(4):
            k(f"v_cvt_pk_bf16_f32 v{RES+i}, v{ACC+2*i}, v{ACC+2*i+1}")
        k(f"buffer_store_dwordx4 {vr(RES,4)}, v3, s[8:11], s30 offen {XSC}")
        for i in (8, 9):
            k(f"v_cvt_pk_bf16_f32 v{RES+i}, v{ACC+2*i}, v{ACC+2*i+1}")
            k(f"v_cvt_pk_bf16_f32 v{T+i-8}, v{ACC+2*i}, v{ACC+2*i+1}")
            k(f"v_cvt_pk_bf16_f32 v{T+i-6}, v{ACC+2*i}, v{ACC+2*i+1}")
        for i in range(4, 8):
            k(f"v_cvt_pk_bf16_f32 v{RES+i}, v{ACC+2*i}, v{ACC+2*i+1}")
        k(f"buffer_store_dwordx4 {vr(RES+4,4)}, v3, s[8:11], s30 offen offset:1024 {XSC}")
        k(f"v_permlane16_swap_b32 v{T}, v{T+2}")
        k(f"v_permlane16_swap_b32 v{T+1}, v{T+3}")
        k("s_mov_b32 exec_lo, 0xffff")
        k("s_mov_b32 exec_hi, 0xffff")
        k(f"buffer_store_dwordx4 {vr(T,4)}, v14, s[8:11], s31 offen {XSC}")
        k("s_mov_b64 exec, -1")
        k(f"v_pk_add_f32 v[10:11], {vr(ACC,2)}, {vr(ACC+2,2)}")
        k(f"v_pk_mul_f32 v[12:13], {vr(ACC,2)}, {vr(ACC,2)}")
        for i in range(2, 20, 2):
            if i >= 4:
                k(f"v_pk_add_f32 v[10:11], v[10:11], {vr(ACC+i,2)}")
            k(f"v_pk_fma_f32 v[12:13], {vr(ACC+i,2)}, {vr(ACC+i,2)}, v[12:13]")
        k("v_add_f32 v10, v10, v11")
        k("v_add_f32 v11, v12, v13")
        for sw in ("v_permlane32_swap_b32", "v_permlane16_swap_b32"):
            k("v_mov_b32 v12, v10")
            k("v_mov_b32 v13, v11")
            k("s_nop 1")
            k(f"{sw} v10, v12")
            k(f"{sw} v11, v13")
            k("s_nop 0")
            k("v_pk_add_f32 v[10:11], v[10:11], v[12:13]")
        k("s_mov_b64 exec, 0xffff")
        k(f"buffer_store_dwordx2 v[10:11], v26, s[8:11], s29 offen {XSC}")
        k("s_mov_b64 exec, -1")
        k("s_nop 1")

    def sig_rows_big():
        k(f"s_lshr_b32 s28, s{S_RS}, 1")
        k("s_lshl_b32 s28, s28, 13")
        k("v_lshl_add_u32 v12, v1, 9, s28")
        k(f"s_mov_b64 s[{SSIG}:{SSIG+1}], 0xffff")
    def idx_big():
        k(f"s_lshl_b32 s28, s{S_RB}, 4")
        k(f"s_add_u32 s28, s28, s{S_CB}")
    def idx_small():
        k(f"s_lshl_b32 s28, s{S_RS}, 3")
        k(f"s_add_u32 s28, s28, s{S_CS}")

    def c_raw(swap, tail, join):
        p = PH["qkv"]
        FB, XBUF, WBUF, top = c_layout(p)
        AW, AXx, AC = 192, 200, 202
        CB_, ONE, CS, SX, GR = [232, 240], 204, 208, 216, 224
        k("v_and_b32 v4, 3, v1")
        k("v_bfe_u32 v5, v1, 2, 2")
        k("v_lshlrev_b32 v6, 1, v5")
        k("v_and_b32 v27, 1, v8")
        k("v_lshl_add_u32 v6, v27, 3, v6")
        k("v_lshl_add_u32 v5, v8, 3, v5")
        k("v_lshlrev_b32 v5, 8, v5")
        k("v_add_u32 v5, 0x4000, v5")
        if swap:
            k("v_lshrrev_b32 v27, 1, v4")
            k("v_mul_u32_u24 v27, 40, v27")
            k("v_and_b32 v28, 1, v4")
            k("v_lshl_add_u32 v27, v28, 4, v27")
            k("v_mul_u32_u24 v28, 40, v4")
            k("v_and_b32 v29, 1, v4")
            k("v_mul_u32_u24 v29, 40, v29")
            src = [(27, 80 * (b >> 1) + 8 * (b & 1)) for b in range(6)] + [(28, 32), (29, 192)]
        else:
            k("v_lshlrev_b32 v27, 3, v4")
            src = [(27, 32 * b) for b in range(8)]
        for b, (rg, off) in enumerate(src):
            k(f"v_add_u32 v30, {off}, v{rg}")
            k("v_lshrrev_b32 v31, 4, v30")
            k("v_xor_b32 v31, v31, v6")
            k("v_and_b32 v30, 8, v30")
            k("v_lshl_add_u32 v30, v31, 4, v30")
            k(f"v_add_u32 v{AW+b}, v30, v5")
        for i in range(2):
            k(f"v_mov_b32 v{AC+i}, v{AW+i}")
            for w_ in range(1, 4):
                k(f"s_cmp_eq_u32 s{S_W}, {w_}")
                k("s_cselect_b64 vcc, -1, 0")
                k(f"v_cndmask_b32 v{AC+i}, v{AC+i}, v{AW+2*w_+i}, vcc")
        k("v_lshrrev_b32 v4, 1, v7")
        k("v_xor_b32 v4, v4, v8")
        k("v_lshlrev_b32 v4, 4, v4")
        k("v_lshl_add_u32 v4, v7, 7, v4")
        k(f"s_lshl_b32 s28, s{S_W}, 12")
        k(f"v_add_u32 v{AXx}, s28, v4")
        k(f"v_xor_b32 v{AXx+1}, 64, v{AXx}")
        for i in range(4):
            k(f"v_mov_b32 v{ONE+i}, 0x3f803f80")
        for i in list(range(ACC, ACC + 64, 2)) + list(range(CS, CS + 24, 2)):
            k(f"v_mov_b64 {vr(i,2)}, 0")
        def reads(u):
            so, st = (u >> 1) * 32768, u & 1
            r = [f"ds_read_b128 {vr(XBUF[st]+4*m,4)}, v{AXx+st} offset:{so + 2048*m}" for m in range(2)]
            for b in range(8):
                for h in range(2):
                    r.append(f"ds_read_b64_tr_b16 {vr(WBUF[st]+4*b+2*h,2)}, v{AW+b} offset:{so + 8192*st + 1024*h}")
            for i in range(2):
                for h in range(2):
                    r.append(f"ds_read_b64_tr_b16 {vr(CB_[st]+4*i+2*h,2)}, v{AC+i} offset:{so + 8192*st + 1024*h}")
            return r
        def mfmas(st):
            mm = []
            for j in range(8):
                for m in range(2):
                    w_, x_ = WBUF[st] + 4 * j, XBUF[st] + 4 * m
                    a_, b_ = (w_, x_) if swap else (x_, w_)
                    mm.append((acc(p, m, j), a_, b_))
            for m in range(2):
                mm.append((SX + 4 * m, ONE, XBUF[st] + 4 * m))
                mm.append((GR + 4 * m, XBUF[st] + 4 * m, XBUF[st] + 4 * m))
                mm.append((CS + 4 * m, ONE, CB_[st] + 4 * m))
            return [f"{MF} {vr(a,4)}, {vr(x,4)}, {vr(y,4)}, {vr(a,4)}" for a, x, y in mm]
        tog = [f"v_xor_b32 v{r}, 0x10000, v{r}" for r in range(AW, AW + 12)]
        def unit(u, nxt, pre=()):
            for x in pre:
                k(x)
            rd = reads(nxt) if nxt is not None else []
            if RAWW:
                k("s_waitcnt lgkmcnt(8)")
                late = u & 1 and nxt is not None
                n = 0
                for i, m_ in enumerate(mfmas(u & 1)):
                    if late and i == 4:
                        k("s_waitcnt lgkmcnt(0)")
                        k("s_barrier")
                    if not late and i == 12:
                        k(f"s_waitcnt lgkmcnt({n})")
                    k(m_)
                    if late and i < 4:
                        continue
                    for _ in range(2 if late and i < 8 else 1):
                        if rd:
                            k(rd.pop(0))
                            n += 1
                assert not rd
                return
            k("s_waitcnt lgkmcnt(0)")
            if u & 1 and nxt is not None:
                k("s_barrier")
            for m_ in mfmas(u & 1):
                k(m_)
                for _ in range(2):
                    if rd:
                        k(rd.pop(0))
        k("s_mov_b32 s36, 4")
        k("s_barrier")
        ts(1)
        for x in reads(0):
            k(x)
        for _ in range(NTB):
            touch()
        L = k.newlabel()
        k.label(L)
        touch()
        unit(0, 1)
        unit(1, 2)
        if TGAP:
            touch()
        unit(2, 3)
        unit(3, 0, tog + ["s_sub_u32 s36, s36, 1", "s_cmp_lg_u32 s36, 0"])
        k(f"s_cbranch_scc1 {L}")
        unit(0, 1)
        unit(1, 2)
        unit(2, 3)
        unit(3, None)
        k(f"s_lshl_b32 s28, s{S_W}, 10")
        k(f"s_add_u32 s28, s28, {140*1024}")
        k("v_lshl_add_u32 v4, v1, 3, s28")
        k(f"v_mov_b32 v5, {140*1024:#x}")
        k("v_lshl_add_u32 v5, v1, 3, v5")
        k("v_lshrrev_b32 v6, 2, v7")
        k("v_and_b32 v27, 3, v7")
        k("v_cmp_eq_u32 s[56:57], v6, v8")
        k("v_cmp_eq_u32 s[58:59], 0, v8")
        k("s_nop 1")
        for i in range(2):
            c = CS + 4 * i
            k(f"v_cndmask_b32 v{c}, 0, v{c}, s[58:59]")
            k(f"v_cvt_pk_bf16_f32 v{c+1}, v{c}, v{c}")
            k(f"v_and_b32 v{c+1}, 0xffff0000, v{c+1}")
            k(f"v_sub_f32 v{c+1}, v{c}, v{c+1}")
            k(f"v_cvt_pk_bf16_f32 v{c+2}, v{c}, v{c+1}")
            k(f"v_cvt_pk_bf16_f32 v{c+3}, v{c}, v{c+1}")
            k(f"ds_write_b64 v4, {vr(c+2,2)} offset:{512*i}")
        for m in range(2):
            t, g_ = STR + 4 * m, GR + 4 * m
            for i in range(1, 4):
                k(f"v_cmp_eq_u32 vcc, {i}, v27")
                k("s_nop 1")
                k(f"v_cndmask_b32 v{g_}, v{g_}, v{g_+i}, vcc")
            k(f"v_cndmask_b32 v{t}, 0, v{SX+4*m}, s[58:59]")
            k(f"v_cndmask_b32 v{t+1}, 0, v{g_}, s[56:57]")
            k(f"v_mov_b64 {vr(t+2,2)}, 0")
        k("s_waitcnt lgkmcnt(0)")
        k("s_barrier")
        for j in range(8):
            k(f"ds_read_b64 {vr(ext_reg(p,j),2)}, v5 offset:{512*j}")
        lab = k.newlabel()
        k("v_lshlrev_b32 v198, 5, v1")
        k(f"s_cmp_lg_u32 s{S_W}, 3")
        k(f"s_cbranch_scc1 {lab}")
        k("s_mov_b64 exec, 0xff")
        k("buffer_load_dword v199, v198, s[76:79], 0 offen sc1")
        k("s_mov_b64 exec, -1")
        k.label(lab)
        for x in tail:
            k(x)
        k("s_waitcnt lgkmcnt(0)")
        ts(2)
        k(f"s_branch {join}")

    def scale_pack(a, o, r):
        rr = vr(r & ~1, 2)
        k(f"v_pk_mul_f32 {vr(a,2)}, {vr(a,2)}, {rr} op_sel:[0,{r&1}] op_sel_hi:[1,{r&1}]")
        k(f"v_pk_mul_f32 {vr(a+2,2)}, {vr(a+2,2)}, {rr} op_sel:[0,{r&1}] op_sel_hi:[1,{r&1}]")
        k(f"v_cvt_pk_bf16_f32 v{o}, v{a}, v{a+1}")
        k(f"v_cvt_pk_bf16_f32 v{o+1}, v{a+2}, v{a+3}")
    p = PH["qkv"]
    FB, XBUF, WBUF, top_qkv = c_layout(p)
    def touch():
        if NT0 >= 5:
            return
        lab = k.newlabel()
        k("s_cmp_eq_u32 s39, 0")
        k(f"s_cbranch_scc1 {lab}")
        k("s_mov_b64 exec, s[84:85]")
        k("buffer_load_dword v16, v17, s[80:83], s37 offen")
        k("s_mov_b64 exec, -1")
        k("s_add_u32 s37, s37, s38")
        k("s_sub_u32 s39, s39, 1")
        k.label(lab)
    if NT0 < 5:
        k("s_lshr_b32 s28, s2, 3")
        k("v_and_b32 v9, 31, v1")
        k("v_mul_u32_u24 v9, 1280, v9")
        k("v_lshrrev_b32 v10, 5, v1")
        k("v_lshl_add_u32 v9, v10, 7, v9")
        k("s_and_b32 s29, s2, 1")
        k("s_lshl_b32 s29, s29, 5")
        k("s_add_u32 s29, s29, s28")
        k(f"s_mul_i32 s29, s29, {32*1280}")
        k("v_mul_u32_u24 v10, 7282, v1")
        k("v_lshrrev_b32 v10, 16, v10")
        k("v_mul_u32_u24 v11, 9, v10")
        k("v_sub_u32 v11, v1, v11")
        k("v_mul_u32_u24 v10, 3840, v10")
        k("v_lshl_add_u32 v10, v11, 7, v10")
        k(f"s_lshr_b32 s30, s{S_CB}, 2")
        k("s_mul_i32 s30, s30, 896")
        k(f"s_mul_i32 s28, s28, {4*3840}")
        k("s_add_u32 s30, s30, s28")
        k(f"s_mov_b32 s31, {128*3840}")
        k(f"s_cmp_eq_u32 s{S_W}, 0")
        k("s_cselect_b64 s[80:81], s[68:69], s[72:73]")
        k("s_cselect_b32 s82, s70, s74")
        k("s_mov_b32 s83, 0x00020000")
        k("s_cselect_b32 s37, s29, s30")
        k("s_cselect_b32 s38, 256, s31")
        k("s_mov_b32 s84, -1")
        k("s_cselect_b32 s85, -1, 15")
        k("s_cselect_b64 vcc, -1, 0")
        k("v_cndmask_b32 v17, v10, v9, vcc")
        k(f"s_mul_i32 s28, s38, {NT0}")
        k("s_add_u32 s37, s37, s28")
        k(f"s_cmp_lt_u32 s{S_W}, 2")
        k(f"s_cselect_b32 s39, {5 - NT0}, 0")
    for _ in range(NT1):
        touch()
    k(f"s_cmp_lg_u32 s{S_W}, 3")
    k("s_cbranch_scc1 L_c_layer2")
    k("v_mov_b64 v[10:11], 0")
    k("v_lshlrev_b32 v9, 3, v1")
    k("s_lshl_b32 s28, s2, 9")
    k(f"s_add_u32 s28, s28, {CNT:#x}")
    k(f"buffer_store_dwordx2 v[10:11], v9, s[8:11], s28 offen {SC}")
    k("s_getreg_b32 s46, hwreg(HW_REG_XCC_ID)")
    k("s_and_b32 s46, s46, 7")
    k("s_lshl_b32 s28, s46, 5")
    k("v_mov_b32 v2, 1")
    k("s_waitcnt vmcnt(0)")
    k("s_mov_b64 exec, 1")
    k("buffer_atomic_add v2, off, s[76:79], s28 sc0 sc1")
    k("s_mov_b64 exec, -1")
    k("s_branch L_c_layer2")
    k.label("L_c_layer")
    k("s_barrier")
    c_stats_loads(STA)
    k.label("L_c_layer2")
    ts(0)
    k(f"s_cmp_ge_u32 s{S_CB}, 11")
    k("s_cbranch_scc1 L_c_v")
    k("v_and_b32 v9, 7, v7")
    k("v_lshrrev_b32 v12, 3, v7")
    k("v_lshl_add_u32 v9, v12, 4, v9")
    k("v_lshrrev_b32 v12, 1, v8")
    k(f"v_mul_u32_u24 v12, {UNIT}, v12")
    k("v_and_b32 v13, 1, v8")
    k("v_lshl_add_u32 v12, v13, 9, v12")
    k("v_lshl_add_u32 v12, v9, 4, v12")
    k(f"v_mul_u32_u24 v13, {UNIT}, v8")
    k("v_lshl_add_u32 v13, v7, 4, v13")
    k(f"s_mul_i32 s28, s{S_CB}, {6*UNIT}")
    k(f"s_mul_i32 s29, s{S_RB}, 10240")
    k("s_add_u32 s28, s28, s29")
    k(f"s_add_u32 s28, s28, s{S_LAY}")
    k(f"s_add_u32 s28, s28, {QKVI:#x}")
    k(f"s_lshl_b32 s29, s{S_W}, 10")
    k("s_add_u32 s30, s28, s29")
    k(f"s_and_b32 s29, s{S_W}, 1")
    k("s_lshl_b32 s29, s29, 9")
    k("s_add_u32 s31, s28, s29")
    k(f"s_lshr_b32 s29, s{S_W}, 1")
    k("s_lshl_b32 s29, s29, 8")
    k("s_add_u32 s31, s31, s29")
    k("s_add_u32 s31, s31, 4096")
    k(f"s_add_u32 s29, s31, {4*UNIT}")
    QKT = ["s_nop 0", f"v_mul_f32 v10, {f2u(SQRTC):#x}, v10", f"v_mul_f32 v11, {f2u(SQRTC):#x}, v11"]
    k(f"s_cmp_eq_u32 s{S_LAY}, 0")
    k("s_cbranch_scc1 L_raw_qk")
    c_mainloop(p, True, 0, c_stats_valu() + QKT)
    k.label("L_join_qk")
    for j in (0, 1, 2, 3, 6):
        ext_mfma(p, j, True)
    for b in range(3):
        if b == 2:
            for m in range(2):
                scale_pack(acc(p, m, 6), FB + 24 + 2 * m, 10 + m)
            k(f"buffer_store_dwordx4 {vr(FB+24,4)}, v13, s[8:11], s31 offen {SC}")
            k(f"s_cmp_eq_u32 s{S_CB}, 10")
            k("s_cbranch_scc1 L_c_qk_skip")
        for m in range(2):
            o = FB + 8 * b + 4 * m
            scale_pack(acc(p, m, 2 * b), o, 10 + m)
            scale_pack(acc(p, m, 2 * b + 1), o + 2, 10 + m)
            k(f"buffer_store_dwordx4 {vr(o,4)}, v12, s[8:11], s30 offen offset:{128*m} {SC}")
            if b == 0:
                for j in ((4, 5), (7,))[m]:
                    ext_mfma(p, j, True)
        k(f"s_add_u32 s30, s30, {2*UNIT}")
    for m in range(2):
        scale_pack(acc(p, m, 7), FB + 28 + 2 * m, 10 + m)
    k("s_mov_b64 exec, 0xffffffff")
    k(f"buffer_store_dwordx4 {vr(FB+28,4)}, v13, s[8:11], s29 offen {SC}")
    k("s_mov_b64 exec, -1")
    k.label("L_c_qk_skip")
    k("v_lshrrev_b32 v9, 3, v1")
    k("v_and_b32 v10, 7, v1")
    k(f"s_mul_i32 s28, s{S_CB}, 6")
    k("v_add_u32 v14, s28, v9")
    k("v_and_b32 v12, 31, v14")
    k("v_lshl_add_u32 v12, v12, 3, v10")
    k("v_lshlrev_b32 v12, 9, v12")
    k(f"s_lshr_b32 s28, s{S_RB}, 1")
    k("v_cmp_eq_u32 s[30:31], s28, v10")
    k("v_cmp_le_u32 vcc, 32, v14")
    k("s_or_b64 s[30:31], s[30:31], vcc")
    k("v_cmp_gt_u32 vcc, 64, v14")
    k("s_and_b64 s[30:31], s[30:31], vcc")
    k("v_cmp_gt_u32 vcc, 6, v9")
    k(f"s_and_b64 s[{SSIG}:{SSIG+1}], s[30:31], vcc")
    k("s_branch L_c_attn")

    k.label("L_c_v")
    RSV = top_qkv
    VAD = RSV + 8
    k(f"s_mul_i32 s30, s{S_RB}, 10240")
    k(f"s_mul_i32 s29, s{S_W}, 1280")
    k("s_add_u32 s30, s30, s29")
    k(f"s_add_u32 s30, s30, s{S_LAY}")
    k(f"s_add_u32 s30, s30, {QKVI + 32*UNIT + 5120:#x}")
    k(f"s_sub_u32 s29, s{S_CB}, 11")
    k("s_lshl_b32 s29, s29, 7")
    k("v_mul_u32_u24 v9, 320, v8")
    k("v_add_u32 v10, s29, v7")
    for j in range(8):
        k("v_mul_u32_u24 v12, 3277, v10")
        k("v_lshrrev_b32 v12, 16, v12")
        k(f"v_mul_u32_u24 v13, {UNIT-320}, v12")
        k("v_lshl_add_u32 v13, v10, 4, v13")
        k(f"v_add_u32 v{VAD+j}, v13, v9")
        k("v_add_u32 v10, 16, v10")
    k(f"s_lshl_b32 s28, s{S_W}, 7")
    k(f"s_add_u32 s28, s28, {SCRATCH}")
    k("v_lshl_add_u32 v12, v7, 2, s28")
    k("v_lshl_add_u32 v13, v8, 4, s28")
    VT = ["s_nop 0", "ds_write_b32 v12, v10", "ds_write_b32 v12, v11 offset:64"]
    k(f"s_cmp_eq_u32 s{S_LAY}, 0")
    k("s_cbranch_scc1 L_raw_v")
    c_mainloop(p, False, 0, c_stats_valu() + VT)
    k.label("L_join_v")
    k("s_waitcnt lgkmcnt(0)")
    k(f"ds_read_b128 {vr(RSV,4)}, v13")
    k(f"ds_read_b128 {vr(RSV+4,4)}, v13 offset:64")
    for j in range(8):
        ext_mfma(p, j, False)
    k("s_waitcnt lgkmcnt(0)")
    for j in range(8):
        o = FB + 4 * j
        for m in range(2):
            a = acc(p, m, j)
            k(f"v_pk_mul_f32 {vr(a,2)}, {vr(a,2)}, {vr(RSV+4*m,2)}")
            k(f"v_pk_mul_f32 {vr(a+2,2)}, {vr(a+2,2)}, {vr(RSV+4*m+2,2)}")
            k(f"v_cvt_pk_bf16_f32 v{o+2*m}, v{a}, v{a+1}")
            k(f"v_cvt_pk_bf16_f32 v{o+2*m+1}, v{a+2}, v{a+3}")
        k(f"buffer_store_dwordx4 {vr(o,4)}, v{VAD+j}, s[8:11], s30 offen {SC}")
    k(f"s_sub_u32 s28, s{S_CB}, 11")
    k("s_lshl_b32 s30, s28, 7")
    k("s_mul_i32 s31, s30, 3277")
    k("s_lshr_b32 s31, s31, 16")
    k("s_add_u32 s30, s30, 127")
    k("s_mul_i32 s30, s30, 3277")
    k("s_lshr_b32 s30, s30, 16")
    k("s_and_b32 s28, s28, 1")
    k("s_lshl_b32 s28, s28, 7")
    k("s_add_u32 s28, s28, 128")
    k("s_lshl_b32 s29, s31, 12")
    k("s_add_u32 s28, s28, s29")
    k("v_lshl_add_u32 v12, v1, 9, s28")
    k("v_lshrrev_b32 v9, 3, v1")
    k("v_add_u32 v9, s31, v9")
    k(f"v_cmp_ge_u32 s[{SSIG}:{SSIG+1}], s30, v9")

    k.label("L_c_attn")
    M16 = "v_mfma_f32_32x32x16_bf16"
    M8 = "v_mfma_f32_32x32x8_bf16"
    QL = [32, 36]; QHA = [40, 42]; QHB = [44, 46]
    S = [48, 64]; O = [80, 96]; NM = [112, 128]; P = 144
    KL = [152, 156]; KH = 160; V = [164, 172]
    A3, A4, A5, A6, A7, A8 = 26, 27, 28, 29, 30, 31
    VS1, VS2, VA0 = 180, 181, 182
    SUP, SPASS, SSEG, SSTR = 48, 50, 51, 52
    def idx_attn():
        k(f"s_mul_i32 s28, s{S_HD}, 20")
        k("s_add_u32 s29, s28, 19")
        k("s_lshr_b32 s28, s28, 7")
        k("s_lshr_b32 s29, s29, 7")
        k("s_and_b32 s30, s28, s29")
        k("s_or_b32 s31, s28, s29")
        k("s_and_b32 s30, s30, 1")
        k("s_xor_b32 s30, s30, 1")
        k("s_lshl_b32 s30, s30, 4")
        k("s_and_b32 s31, s31, 1")
        k("s_lshl_b32 s31, s31, 4")
        targets([18, "s30", "s31"])
        k(f"s_lshl_b32 s28, s{S_HD}, 3")
        k(f"s_add_u32 s28, s28, s{S_QB}")
    k(f"v_mov_b32 v{A3}, v3")
    k(f"v_and_b32 v{A6}, 31, v1")
    k(f"v_lshrrev_b32 v{A7}, 5, v1")
    k("v_and_b32 v9, 7, v1")
    k(f"v_lshlrev_b32 v{A8}, 4, v9")
    k("v_bfe_u32 v9, v1, 4, 1")
    k(f"v_lshl_add_u32 v{A8}, v9, 7, v{A8}")
    k("v_and_b32 v9, 8, v1")
    k(f"v_add_u32 v{A8}, v{A8}, v9")
    k(f"v_lshl_add_u32 v{A4}, v{A7}, 8, v{A8}")
    k(f"v_cmp_gt_u32 s[30:31], 28, v{A6}")
    k("s_mov_b32 s28, 0xfff00000")
    k("s_mov_b32 s29, 0xfff00000")
    k(f"v_mul_u32_u24 v9, 192, v{A7}")
    k("v_sub_u32 v9, 192, v9")
    k("v_mov_b32 v10, 144")
    k("v_cndmask_b32 v9, v9, v10, s[30:31]")
    k("s_mov_b32 s30, 0x01100000")
    k("s_mov_b32 s31, 0x01100000")
    k("v_mov_b32 v10, 128")
    k("v_cndmask_b32 v9, v9, v10, s[30:31]")
    k(f"v_mul_u32_u24 v{VA0}, 320, v{A7}")
    k(f"v_lshl_add_u32 v{VA0}, v{A6}, 4, v{VA0}")
    k(f"v_add_u32 v{VA0}, 5120, v{VA0}")
    k(f"v_cndmask_b32 v{VA0}, v{VA0}, v9, s[28:29]")
    k("v_mov_b32 v9, 1280")
    k(f"v_cndmask_b32 v{VS1}, v9, 0, s[28:29]")
    k("v_mov_b32 v9, 6400")
    k(f"v_cndmask_b32 v{VS2}, v9, 0, s[28:29]")
    k(f"s_mov_b32 s{SUP}, 0")
    k(f"s_mov_b32 s{SUP+1}, -1")
    k(f"s_mov_b32 s{SPASS}, 0")
    k(f"s_movk_i32 s{SSTR}, 10240")
    ts(3)
    k(f"s_add_u32 s{SSO}, s{S_SEAM}, {CNT:#x}")
    def attn_dep():
        lab = k.newlabel()
        k(f"s_cmp_lg_u32 s{S_LAY}, 0")
        k(f"s_cbranch_scc1 {lab}")
        get_coords()
        res_load()
        k.label(lab)
        seam_pre(0, idx_attn)
        k(f"s_mul_i32 s28, s{S_HD}, {UNIT}")
        k(f"s_add_u32 s28, s28, s{S_LAY}")
        k(f"s_add_u32 s39, s28, {QKVI + 32*UNIT:#x}")
        k("s_add_u32 s38, s39, 4096")
        k(f"s_lshl_b32 s29, s{S_QB}, 1")
        k(f"s_lshr_b32 s30, s{S_W}, 1")
        k("s_add_u32 s29, s29, s30")
        k("s_mul_i32 s29, s29, 10240")
        k("s_add_u32 s28, s28, s29")
        k(f"s_add_u32 s28, s28, {QKVI:#x}")
        k(f"s_and_b32 s30, s{S_W}, 1")
        k("s_lshl_b32 s29, s30, 11")
        k("s_add_u32 s29, s29, s28")
        k("s_lshl_b32 s30, s30, 8")
        k("s_add_u32 s30, s30, s28")
        k("s_add_u32 s30, s30, 4096")
    def zero_o():
        for i in range(0, 32, 2):
            k(f"v_mov_b64 {vr(O[0]+i,2)}, 0")
        for i in (0, 2):
            k(f"v_mov_b64 {vr(P+4+i,2)}, 0")
            k(f"v_mov_b64 {vr(V[1]+4+i,2)}, 0")
    def k0_loads():
        k(f"buffer_load_dwordx4 {vr(KL[0],4)}, v3, s[8:11], s39 offen {LSC}")
        k(f"buffer_load_dwordx2 {vr(KH,2)}, v{A4}, s[8:11], s38 offen {LSC}")
    zero_o()
    k("s_waitcnt vmcnt(0)")
    k(f"s_xor_b32 s28, s{S_W}, 3")
    k(f"s_or_b32 s28, s28, s{S_LAY}")
    k("s_cbranch_scc1 L_c_tkdone")
    k("v_lshlrev_b32 v198, 5, v1")
    k("s_mov_b32 s29, 0x40000")
    k("s_mov_b64 exec, 0xff")
    k.label("L_c_tkl")
    k("s_mov_b32 s30, 0")
    for i in range(8):
        k(f"v_readlane_b32 s31, v199, {i}")
        k("s_add_u32 s30, s30, s31")
    k("s_cmp_ge_u32 s30, 256")
    k("s_cbranch_scc1 L_c_tkx")
    k("s_sub_u32 s29, s29, 1")
    k("s_cbranch_scc1 L_c_tkx")
    k("buffer_load_dword v199, v198, s[76:79], 0 offen sc1")
    k("s_waitcnt vmcnt(0)")
    k("s_branch L_c_tkl")
    k.label("L_c_tkx")
    k("v_cmp_ne_u32 vcc, 32, v199")
    k("v_readfirstlane_b32 s30, v2")
    k("s_lshl_b32 s31, s46, 5")
    k("s_add_u32 s30, s30, s31")
    k("s_add_u32 s30, s30, 256")
    k("s_and_b32 s28, s2, 7")
    k("s_lshl_b32 s28, s28, 5")
    k("s_lshr_b32 s29, s2, 3")
    k("s_add_u32 s28, s28, s29")
    if FORCE_SLOW:
        k("s_mov_b32 s28, s2")
        k("s_mov_b64 vcc, 1")
    k("s_cmp_eq_u64 vcc, 0")
    k("s_cselect_b32 s28, s30, s28")
    k("s_mov_b64 exec, -1")
    k("v_mov_b32 v198, s28")
    k(f"v_mov_b32 v199, {SCRATCH + 1024:#x}")
    k("ds_write_b32 v199, v198")
    k("s_waitcnt lgkmcnt(0)")
    k.label("L_c_tkdone")
    k("s_barrier")
    ts(4)
    seam_post(filler=attn_dep)
    k("s_barrier")
    ts(8)
    k0_loads()
    for q in range(2):
        k(f"buffer_load_dwordx4 {vr(QL[q],4)}, v3, s[8:11], s29 offen offset:{1024*q} {LSC}")
        k(f"buffer_load_dwordx2 {vr(QHA[q],2)}, v{A8}, s[8:11], s30 offen offset:{512*q} {LSC}")
    k("s_waitcnt vmcnt(0)")
    for q in range(2):
        for i in range(2):
            k(f"v_cndmask_b32 v{QHB[q]+i}, 0, v{QHA[q]+i}, s[{SUP}:{SUP+1}]")
            k(f"v_cndmask_b32 v{QHA[q]+i}, v{QHA[q]+i}, 0, s[{SUP}:{SUP+1}]")
    def rdK(b, t):
        c, tt = divmod(t, 4)
        return f"ds_read_b128 {vr(KL[b],4)}, v{A3} offset:{c*10240 + tt*1024}"
    def rdH(pp, c):
        return f"ds_read_b64 {vr(KH+2*pp,2)}, v{A4} offset:{c*10240 + 4096 + pp*512}"
    def rdV(b):
        return [f"ds_read_b128 {vr(V[b],4)}, v{A5}", f"ds_read_b128 {vr(V[b]+4,4)}, v{A5} offset:640"]
    def smfma(sb, t, q, c):
        qh = QHA[q] if (t & 3) < 2 else QHB[q]
        return [f"{M16} {vr(S[sb],16)}, {vr(KL[t&1],4)}, {vr(QL[q],4)}, {c}",
                f"{M8} {vr(S[sb],16)}, {vr(KH+2*(t&1),2)}, {vr(qh,2)}, {vr(S[sb],16)}"]
    def rowmax_into(dst, sb, first):
        s = S[sb]
        if first:
            k(f"v_max3_f32 v{dst}, v{s}, v{s+1}, v{s+2}")
            rest = list(range(3, 16))
        else:
            rest = list(range(16))
        while len(rest) >= 2:
            k(f"v_max3_f32 v{dst}, v{dst}, v{s+rest[0]}, v{s+rest[1]}")
            rest = rest[2:]
        if rest:
            k(f"v_max_f32 v{dst}, v{dst}, v{s+rest[0]}")
    f0, f1 = smfma(0, 0, 0, "0"), smfma(1, 0, 1, "0")
    for x in (f0[0], f1[0], f0[1], f1[1]):
        k(x)
    k.nop(11)
    rowmax_into(10, 0, True)
    rowmax_into(11, 1, True)
    k.label("L_attn_start")
    k("v_mov_b32 v12, v10")
    k("v_mov_b32 v13, v11")
    k("s_nop 1")
    k("v_permlane32_swap_b32 v10, v12")
    k("v_permlane32_swap_b32 v11, v13")
    k("s_nop 1")
    k("v_max_f32 v10, v10, v12")
    k("v_max_f32 v11, v11, v13")
    k("v_sub_f32 v10, 0, v10")
    k("v_sub_f32 v12, 0, v11")
    k("v_mov_b32 v11, v10")
    k("v_mov_b32 v13, v12")
    for i in range(0, 16, 2):
        k(f"v_mov_b64 {vr(NM[0]+i,2)}, v[10:11]")
    k(f"v_mov_b32 v{A5}, v{VA0}")
    k(f"s_cmp_lg_u32 s{SPASS}, 0")
    for x in smfma(0, 0, 0, vr(NM[0], 16)):
        k(x)
    for i in range(0, 16, 2):
        k(f"v_mov_b64 {vr(NM[1]+i,2)}, v[12:13]")
    k(f"s_cselect_b32 s{SSEG}, 2, 0")
    k("s_cselect_b32 s36, 16, 1")
    k("s_cbranch_scc1 L_attn_nock0")
    k("s_barrier")
    k.label("L_attn_nock0")
    ts(9)
    for x in rdV(0) + [rdK(1, 1), rdH(1, 0)]:
        k(x)
    k(f"v_add_u32 v{A5}, v{VS1}, v{A5}")
    k(f"v_exp_f32 v{S[0]}, v{S[0]}")
    k(f"v_exp_f32 v{S[0]+1}, v{S[0]+1}")
    k(".p2align 6")
    k.label("L_attn_loop")
    for t in range(4):
        for q in range(2):
            a = S[q]
            nt, nq = (t, 1) if q == 0 else (t + 1, 0)
            pt, pq = (t - 1, 1) if q == 0 else (t, 0)
            sm = smfma(nq, nt, nq, vr(NM[nq], 16))
            ex = [f"v_exp_f32 v{a+i}, v{a+i}" for i in range(16)]
            cv = [f"v_cvt_pk_bf16_f32 v{P+i}, v{a+2*i}, v{a+2*i+1}" for i in range(8)]
            nex = [f"v_exp_f32 v{S[nq]+i}, v{S[nq]+i}" for i in range(2)]
            pvb = f"{M16} {vr(O[pq],16)}, {vr(V[pt&1]+4,4)}, {vr(P+4,4)}, {vr(O[pq],16)}"
            pva = f"{M16} {vr(O[q],16)}, {vr(V[t&1],4)}, {vr(P,4)}, {vr(O[q],16)}"
            g1 = ex[2:6] + cv[0:2]
            g2 = ex[6:10] + cv[2:4]
            g3 = ex[10:14] + cv[4:6]
            g4 = ex[14:16] + cv[6:8] + nex
            if q == 0:
                g3[0:0] = ["s_waitcnt lgkmcnt(0)"] + rdV((t + 1) & 1) + [rdK(t & 1, t + 2)] + ([rdH(t & 1, 1)] if t >= 2 else [])
                g4 += [f"v_add_u32 v{A5}, v{VS2 if t == 2 else VS1}, v{A5}"]
            elif t == 3:
                g1[0:0] = ["s_sub_u32 s36, s36, 1"]
                g3[0:0] = ["s_cmp_lg_u32 s36, 0"]
                g3 += [f"v_add_u32 v{x}, s{SSTR}, v{x}" for x in (A3, A4)]
            for x in [sm[0]] + g1 + [sm[1]] + g2 + [pvb] + g3 + [pva] + g4:
                k(x)
    k("s_cbranch_scc1 L_attn_loop")
    k(f"s_cmp_lt_u32 s{SSEG}, 2")
    k("s_cbranch_scc1 L_attn_ck")
    k(f"{M16} {vr(O[1],16)}, {vr(V[1]+4,4)}, {vr(P+4,4)}, {vr(O[1],16)}")
    k("s_waitcnt lgkmcnt(0)")
    ts(10)
    k(f"s_xor_b32 s28, s{S_W}, 2")
    k(f"s_or_b32 s28, s28, s{S_LAY}")
    k("s_cbranch_scc1 L_attn_nopc")
    k("v_lshlrev_b32 v184, 9, v1")
    k(f"s_mov_b32 s28, {CNT + 384:#x}")
    k("s_mov_b32 exec_hi, 0")
    k("buffer_load_dword v185, v184, s[8:11], s28 offen sc1")
    k("s_mov_b64 exec, -1")
    k.label("L_attn_nopc")
    for x in (A3, A4):
        k(f"v_subrev_u32 v{x}, {UNIT}, v{x}")
    k(f"v_bfe_u32 v9, v{A6}, 3, 1")
    k("v_mul_u32_u24 v9, 20480, v9")
    k(f"v_and_b32 v12, 7, v{A6}")
    k(f"v_lshrrev_b32 v13, 4, v{A6}")
    k("v_lshl_add_u32 v12, v13, 3, v12")
    k("v_lshl_add_u32 v14, v12, 4, v9")
    k(f"v_lshl_add_u32 v14, v{A7}, 8, v14")
    k("v_lshl_add_u32 v9, v12, 3, v9")
    k(f"v_mul_u32_u24 v13, 40960, v{A7}")
    k("v_add_u32 v9, v9, v13")
    k(f"s_lshl_b32 s28, s{S_QB}, 2")
    k(f"s_add_u32 s28, s28, s{S_W}")
    k("s_mul_i32 s28, s28, 81920")
    k(f"s_add_u32 s28, s28, s{S_LAY}")
    k(f"s_add_u32 s28, s28, {OF:#x}")
    k(f"s_lshl_b32 s29, s{S_HD}, 9")
    k("s_add_u32 s29, s29, s28")
    k("s_add_u32 s29, s29, 2048")
    for q in range(2):
        k(f"v_cndmask_b32 v{10+q}, v{O[q]+12}, v{O[q]+8}, s[{SUP}:{SUP+1}]")
    k("v_add_f32 v12, v10, v11")
    k(f"v_cmp_ngt_f32 vcc, {f2u(2.0**30):#x}, v12")
    k("v_rcp_f32 v10, v10")
    k("v_rcp_f32 v11, v11")
    k(f"s_lshr_b32 s30, s{S_HD}, 3")
    k(f"s_and_b32 s31, s{S_HD}, 16")
    k("s_add_u32 s30, s30, s31")
    k("s_lshl_b32 s30, s30, 10")
    k(f"s_and_b32 s31, s{S_HD}, 1")
    k("s_lshl_b32 s31, s31, 9")
    k("s_add_u32 s30, s30, s31")
    k(f"s_and_b32 s31, s{S_HD}, 6")
    k("s_lshl_b32 s31, s31, 6")
    k("s_add_u32 s30, s30, s31")
    k("s_add_u32 s30, s30, s28")
    k("s_add_u32 s31, s29, 40960")
    k(f"s_cmp_lg_u32 s{SPASS}, 0")
    k("s_cbranch_scc1 L_attn_out")
    k("s_cbranch_vccnz L_attn_slow")
    k.label("L_attn_out")
    for q in range(2):
        o = S[q]
        for i in range(3):
            scale_pack(O[q] + 4 * i, o + 2 * i, 10 + q)
        k(f"buffer_store_dwordx4 {vr(o,4)}, v14, s[8:11], s{29+2*q} offen {SC}")
    k("s_nop 0")
    for i in range(2):
        k(f"v_permlane32_swap_b32 v{S[0]+4+i}, v{S[1]+4+i}")
    k(f"buffer_store_dwordx2 {vr(S[0]+4,2)}, v9, s[8:11], s30 offen {SC}")
    ts(11)
    k(f"s_lshl_b32 s28, s{S_QB}, 14")
    k(f"s_and_b32 s29, s{S_HD}, 1")
    k("s_lshl_b32 s29, s29, 7")
    k("s_add_u32 s28, s28, s29")
    k("v_lshl_add_u32 v12, v1, 9, s28")
    k(f"s_mov_b64 s[{SSIG}:{SSIG+1}], 0xffffffff")
    targets([16, 16])
    seam_pre(1, idx_small)
    c_res_to_acc()
    k("s_waitcnt vmcnt(0)")
    k(f"s_xor_b32 s28, s{S_W}, 2")
    k(f"s_or_b32 s28, s28, s{S_LAY}")
    k("s_cbranch_scc1 L_attn_pcok")
    k("v_lshlrev_b32 v184, 9, v1")
    k("v_mov_b32 v186, 31")
    k("v_mov_b32 v187, 30")
    k("v_cmp_lt_u32 vcc, 11, v1")
    k(f"s_mov_b32 s28, {CNT + 384:#x}")
    k("s_mov_b32 s29, 0x40000")
    k("v_cndmask_b32 v186, v186, v187, vcc")
    k("s_mov_b32 exec_hi, 0")
    k.label("L_attn_pchk")
    k("v_cmp_ne_u32 vcc, v186, v185")
    k("s_sub_u32 s29, s29, 1")
    k("s_cbranch_scc1 L_attn_pcx")
    k("s_cbranch_vccz L_attn_pcx")
    k("s_sleep 8")
    k("buffer_load_dword v185, v184, s[8:11], s28 offen sc1")
    k("s_waitcnt vmcnt(0)")
    k("s_branch L_attn_pchk")
    k.label("L_attn_pcx")
    k("s_mov_b64 exec, -1")
    k.label("L_attn_pcok")
    k("s_barrier")
    ts(12)
    seam_post(filler=lambda: c_ext_loads(PH["gu"]))

    k("s_barrier")
    ts(16)
    if POLL2:
        k("s_waitcnt vmcnt(0)")
    c_small_pre(XB, STB, 0)
    eb = ["s_waitcnt vmcnt(0)"]
    c_ext_build(PH["gu"], eb.append)
    c_mainloop(PH["wo"], True, 16, eb)
    k.nop(5)
    c_small_epilogue()
    ts(19)
    lseam_pre(1, g_rs2, g_sm, g_rb)
    k("s_waitcnt vmcnt(0)")
    k("s_barrier")
    ts(20)
    lseam_post(16)

    p = PH["gu"]
    FB, XBUF, WBUF, top_gu = c_layout(p)
    k("s_barrier")
    ts(24)
    if POLL2:
        k("s_waitcnt vmcnt(0)")
    c_stats_loads(STB)
    k(f"s_lshl_b32 s28, s{S_RB}, 2")
    k(f"s_add_u32 s28, s28, s{S_W}")
    k(f"s_mul_i32 s28, s28, {2*55296}")
    k(f"s_add_u32 s28, s28, {HF:#x}")
    k(f"s_mul_i32 s29, s{S_CB}, 3072")
    k("s_add_u32 s30, s28, s29")
    k("s_add_u32 s31, s30, 55296")
    k(f"s_lshl_b32 s29, s{S_CB}, 9")
    k("s_add_u32 s29, s28, s29")
    k(f"s_add_u32 s29, s29, {46*1024}")
    k("v_and_b32 v9, 1, v8")
    k("v_mul_u32_u24 v9, 55296, v9")
    k("v_lshrrev_b32 v12, 1, v8")
    k("v_lshl_add_u32 v9, v12, 8, v9")
    k("v_lshl_add_u32 v9, v7, 4, v9")
    if TOUCH & 8:
        k("buffer_load_dwordx4 v[244:247], v9, s[8:11], s29 offen sc1")
        for j in range(3):
            for m in range(2):
                k(f"buffer_load_dwordx4 v[244:247], v3, s[8:11], s{30+m} offen offset:{1024*j} sc1")
    c_mainloop(p, True, 24, c_stats_valu() + ["s_nop 0", "v_mul_f32 v10, v10, v10", "v_mul_f32 v11, v11, v11"])
    def glu(m, b, o):
        g_, u_ = acc(p, m, 2 * b), acc(p, m, 2 * b + 1)
        for i in range(4):
            k(f"v_max_f32 v{g_+i}, 0, v{g_+i}")
        for i in (0, 2):
            k(f"v_pk_mul_f32 {vr(g_+i,2)}, {vr(g_+i,2)}, {vr(u_+i,2)}")
        scale_pack(g_, o, 10 + m)
    for j in (0, 1, 2, 3, 12, 13):
        ext_mfma(p, j, True)
    later = [4, 5, 6, 7, 8, 9, 10, 11]
    for j in range(3):
        for m in range(2):
            o = FB + 4 + 8 * j + 4 * m
            for h in range(2):
                glu(m, 2 * j + h, o + 2 * h)
                for _ in range(2):
                    if later:
                        ext_mfma(p, later.pop(0), True)
            k(f"buffer_store_dwordx4 {vr(o,4)}, v3, s[8:11], s{30+m} offen offset:{1024*j} {HSC}")
        if j == 0:
            for m in range(2):
                glu(m, 6, FB + 2 * m)
            k("s_nop 1")
            k(f"v_permlane16_swap_b32 v{FB}, v{FB+2}")
            k(f"v_permlane16_swap_b32 v{FB+1}, v{FB+3}")
            k(f"buffer_store_dwordx4 {vr(FB,4)}, v9, s[8:11], s29 offen {HSC}")
            k(f"s_cmp_eq_u32 s{S_CB}, 15")
            k("s_cbranch_scc1 L_c_gu_skip")
    k.label("L_c_gu_skip")
    ts(27)
    c_res_to_acc()
    lseam_pre(2, g_rb, g_cb, g_rs2)
    k("s_waitcnt vmcnt(0)")
    k("s_barrier")
    ts(28)
    lseam_post(16)

    k("s_barrier")
    ts(32)
    if POLL2:
        k("s_waitcnt vmcnt(0)")
    def down_b0():
        lab = k.newlabel()
        k(f"s_cmp_lg_u32 s{S_LAY}, 0")
        k(f"s_cbranch_scc1 {lab}")
        c_ext_loads(PH["qkv"])
        c_small_pre(XA, STA, LSTR)
        k.label(lab)
    c_mainloop(PH["down"], True, 32, (), down_b0)
    k(f"s_cmp_lg_u32 s{S_LAY}, 0")
    k("s_cbranch_scc1 L_c_final")
    k.nop(3)
    c_small_epilogue()
    ts(35)
    k("s_waitcnt vmcnt(4)")
    c_ext_build(PH["qkv"])
    lseam_pre(3, g_rs2, g_sm, g_rb)
    k("s_waitcnt vmcnt(0)")
    k("s_barrier")
    ts(36)
    lseam_post(16)
    k(f"s_mov_b32 s{S_LAY}, {LSTR:#x}")
    k(f"s_mov_b32 s{S_SEAM}, 20")
    k(f"s_add_u32 s{S_TS}, s{S_TS}, 320")
    k("s_branch L_c_layer")

    k.label("L_c_final")
    k("v_mul_u32_u24 v9, 1280, v7")
    k("v_and_b32 v10, 1, v8")
    k("v_lshl_add_u32 v9, v10, 5, v9")
    k("v_lshrrev_b32 v10, 1, v8")
    k("v_lshl_add_u32 v9, v10, 4, v9")
    k(f"s_lshl_b32 s28, s{S_RS}, 2")
    k(f"s_add_u32 s28, s28, s{S_W}")
    k(f"s_mul_i32 s28, s28, {16*1280}")
    k(f"s_mul_i32 s29, s{S_CS}, 160")
    k("s_add_u32 s28, s28, s29")
    for i in range(10):
        k(f"v_cvt_pk_bf16_f32 v{56+i}, v{ACC+2*i}, v{ACC+2*i+1}")
    k("v_mov_b32 v66, v64")
    k("v_mov_b32 v67, v65")
    for j in range(3):
        for i in range(2):
            k(f"v_permlane16_swap_b32 v{56+4*j+i}, v{58+4*j+i}")
        if j == 2:
            k("s_mov_b32 exec_lo, 0xffff")
            k("s_mov_b32 exec_hi, 0xffff")
        k(f"buffer_store_dwordx4 {vr(56+4*j,4)}, v9, s[24:27], s28 offen offset:{64*j}")
    if INSTR:
        ts(35)
        k("s_waitcnt vmcnt(0)")
        ts(36)
    k.label(L_end)
    k("s_endpgm")

    k.label("L_attn_ck")
    k(f"s_cmp_eq_u32 s{SSEG}, 0")
    k("s_cselect_b32 s36, 3, 12")
    k(f"s_add_u32 s{SSEG}, s{SSEG}, 1")
    k("s_barrier")
    k("s_branch L_attn_loop")

    k.label("L_l_attn")
    k("s_barrier")
    k(f"s_cmp_lg_u32 s{S_LAY}, 0")
    k("s_cbranch_scc1 L_l_havec")
    get_coords()
    k.label("L_l_havec")
    k(f"s_mul_i32 s28, s{S_HD}, {UNIT}")
    k(f"s_add_u32 s28, s28, s{S_LAY}")
    k(f"s_lshl_b32 s29, s{S_W}, 10")
    k("s_mov_b32 m0, s29")
    k("s_add_u32 s31, s28, s29")
    k(f"s_add_u32 s31, s31, {QKVI + 32*UNIT:#x}")
    k("s_mov_b32 s28, 0x100")
    k("s_mov_b32 s29, 0x10000")
    k("v_mov_b32 v8, 0x3f803f80")
    k("v_cndmask_b32 v8, 0, v8, s[28:29]")
    for i in range(1, 4):
        k(f"v_mov_b32 v{8+i}, v8")
    k("ds_write_b128 v3, v[8:11]")
    k("s_waitcnt lgkmcnt(0)")
    k(f"s_cmp_eq_u32 s{S_W}, 0")
    k(f"s_mov_b32 s36, {5 if KV5 else 8}")
    k("s_barrier")
    k("s_cbranch_scc1 L_l_skip0")
    def pieces(n, first=False):
        lab = k.newlabel()
        if not first:
            k(f"s_mov_b32 s36, {n}")
        k.label(lab)
        k(f"buffer_load_dwordx4 v3, s[8:11], s31 offen {LSC} lds")
        if first:
            k.label("L_l_skip0")
        k("s_add_u32 m0, m0, 4096")
        k("s_add_u32 s31, s31, 4096")
        k("s_sub_u32 s36, s36, 1")
        k("s_cmp_lg_u32 s36, 0")
        k(f"s_cbranch_scc1 {lab}")
    if KV5:
        pieces(5, True)
        k("s_waitcnt vmcnt(3)")
        pieces(6)
        k("s_waitcnt vmcnt(6)")
    else:
        pieces(8, True)
        k("s_waitcnt vmcnt(3)")
    k("s_barrier")
    k("s_setprio 3")
    pieces(11 if KV5 else 14)
    k("s_waitcnt vmcnt(9)")
    k("s_barrier")
    pieces(18)
    sb, vb = 56, 64
    k(f"s_lshl_b32 s28, s{S_W}, 8")
    k("s_add_u32 s28, s28, s2")
    k(f"s_cmp_lg_u32 s{S_LAY}, 0")
    k("s_cselect_b32 s28, 1000, s28")
    k("s_cmp_ge_u32 s28, 972")
    k("s_cbranch_scc1 L_attn_noprep")
    k(f"s_mov_b32 s{sb+27}, 0x00020000")
    k("s_and_b32 s37, s28, 31")
    k("s_cmp_lt_u32 s28, 732")
    k("s_cbranch_scc1 L_prep_notq")
    k("s_sub_u32 s28, s28, 732")
    k(f"s_and_b32 s{sb}, s28, 7")
    k("s_lshr_b32 s28, s28, 3")
    k("s_lshl_b32 s28, s28, 6")
    k("v_add_u32 v5, s28, v1")
    k(f"v_lshlrev_b32 v{vb}, 1, v5")
    k(f"s_mov_b32 s{sb+24}, s32")
    k(f"s_mov_b32 s{sb+25}, s33")
    k(f"s_mov_b32 s{sb+26}, {640*3840}")
    k(f"s_movk_i32 s{sb+20}, 3840")
    k("v_mul_u32_u24 v6, 3277, v5")
    k("v_lshrrev_b32 v6, 16, v6")
    k("v_mul_u32_u24 v7, 20, v6")
    k("v_sub_u32 v7, v5, v7")
    k("v_mul_u32_u24 v8, 43, v6")
    k("v_lshrrev_b32 v8, 8, v8")
    k("v_mul_u32_u24 v9, 6, v8")
    k("v_sub_u32 v9, v6, v9")
    k("v_and_b32 v10, 6, v9")
    k("v_bfe_u32 v11, v7, 2, 1")
    k("v_add_u32 v10, v10, v11")
    k("v_and_b32 v11, 1, v9")
    k("v_lshlrev_b32 v12, 3, v11")
    k("v_bfe_u32 v11, v7, 3, 1")
    k("v_lshl_add_u32 v12, v11, 2, v12")
    k("v_lshrrev_b32 v14, 2, v9")
    k("v_add_u32 v14, 6, v14")
    k("v_and_b32 v17, 3, v9")
    k("v_lshlrev_b32 v17, 2, v17")
    k("v_cmp_le_u32 s[30:31], 16, v7")
    k("s_nop 1")
    k("v_cndmask_b32 v10, v10, v14, s[30:31]")
    k("v_cndmask_b32 v12, v12, v17, s[30:31]")
    k("v_and_b32 v13, 3, v7")
    k("v_add_u32 v12, v12, v13")
    k("v_lshl_add_u32 v10, v8, 3, v10")
    k("v_lshrrev_b32 v14, 4, v5")
    k("v_add_u32 v14, 8, v14")
    k("v_and_b32 v17, 15, v5")
    k("s_movk_i32 s30, 1280")
    k("v_cmp_le_u32 s[30:31], s30, v5")
    k("s_nop 1")
    k("v_cndmask_b32 v10, v10, v14, s[30:31]")
    k("v_cndmask_b32 v12, v12, v17, s[30:31]")
    k("v_mov_b32 v9, v12")
    k("s_movk_i32 s31, 21504")
    k(f"s_mov_b32 s35, {WQKV_F:#x}")
    k("s_movk_i32 s38, 80")
    k("s_mov_b32 s39, 1")
    k("s_branch L_prep_go")
    k.label("L_prep_notq")
    k("s_cmp_ge_u32 s28, 432")
    k("s_cbranch_scc1 L_prep_small")
    k(f"s_and_b32 s{sb}, s28, 7")
    k("s_lshr_b32 s31, s28, 3")
    k("s_cmp_ge_u32 s31, 27")
    k(f"s_cselect_b32 s{sb+24}, s90, s88")
    k(f"s_cselect_b32 s{sb+25}, s91, s89")
    k("s_cselect_b32 s29, 21504, 0")
    k("s_cselect_b32 s30, 27, 0")
    k("s_sub_u32 s30, s31, s30")
    k(f"s_mov_b32 s{sb+26}, {640*3456}")
    k(f"s_movk_i32 s{sb+20}, 3456")
    k("s_lshl_b32 s30, s30, 6")
    k("v_add_u32 v9, s30, v1")
    k(f"v_lshlrev_b32 v{vb}, 1, v9")
    k("v_lshrrev_b32 v10, 4, v9")
    k("v_mov_b32 v11, 111")
    k("v_cmp_eq_u32 vcc, 107, v10")
    k(f"s_add_u32 s35, s29, {WGU_F:#x}")
    k("s_mov_b32 s31, 43008")
    k("v_cndmask_b32 v10, v10, v11, vcc")
    k("s_movk_i32 s38, 80")
    k("s_mov_b32 s39, 1")
    k("s_branch L_prep_go")
    k.label("L_prep_small")
    k(f"s_movk_i32 s{sb+20}, 1280")
    k("s_mov_b32 s39, 0")
    k(f"s_mov_b32 s29, {640*1280}")
    k("s_movk_i32 s30, 432")
    k("s_movk_i32 s38, 80")
    k("s_movk_i32 s31, 20480")
    k(f"s_mov_b32 s35, {WO_F:#x}")
    k("s_cmp_ge_u32 s28, 512")
    k(f"s_cselect_b32 s{sb+24}, s92, s86")
    k(f"s_cselect_b32 s{sb+25}, s93, s87")
    k(f"s_cselect_b32 s{sb+26}, {1728*1280}, s29")
    k("s_cselect_b32 s29, 512, s30")
    k("s_cselect_b32 s38, 216, s38")
    k("s_cselect_b32 s31, 55296, s31")
    k(f"s_cselect_b32 s35, {WD_F:#x}, s35")
    k("s_sub_u32 s28, s28, s29")
    k(f"s_mul_i32 s{sb}, s28, 205")
    k(f"s_lshr_b32 s{sb}, s{sb}, 11")
    k(f"s_mul_i32 s29, s{sb}, 10")
    k("s_sub_u32 s28, s28, s29")
    k("s_lshl_b32 s28, s28, 6")
    k("v_add_u32 v9, s28, v1")
    k(f"v_lshlrev_b32 v{vb}, 1, v9")
    k("v_lshrrev_b32 v10, 4, v9")
    k.label("L_prep_go")
    k("v_mul_u32_u24 v10, s31, v10")
    k("v_add_u32 v10, s35, v10")
    k("v_and_b32 v9, 15, v9")
    k(f"v_lshl_add_u32 v{vb+1}, v9, 4, v10")
    k(f"v_lshl_add_u32 v{vb+2}, v9, 3, v10")
    k(f"s_mul_i32 s{sb+1}, s{sb}, 10")
    k(f"s_mov_b32 s{sb+23}, s{sb+1}")
    k("s_mov_b32 s35, 0")
    k.label("L_prep_rows")
    k("s_cmp_lg_u32 s39, 0")
    k("s_cbranch_scc1 L_prep_rx")
    k("s_cmp_eq_u32 s38, 80")
    k("s_cbranch_scc1 L_prep_rwo")
    prep_rows(k, "wd", sb)
    k("s_branch L_prep_ld")
    k.label("L_prep_rwo")
    prep_rows(k, "wo", sb)
    k("s_branch L_prep_ld")
    k.label("L_prep_rx")
    prep_rows(k, "x", sb)
    k.label("L_prep_ld")
    k("s_cmp_lg_u32 s35, 0")
    k("s_cbranch_scc1 L_prep_ld2")
    prep_loads(k, sb, vb, vb + 16)
    k("s_mov_b32 s35, 1")
    k(f"s_add_u32 s{sb+23}, s{sb+23}, 5")
    k("s_branch L_prep_rows")
    k.label("L_prep_ld2")
    k("s_waitcnt vmcnt(40)")
    prep_loads(k, sb, vb, vb + 56)
    k("s_barrier")
    k("s_waitcnt vmcnt(0)")
    ts(5, 1)
    prep_finish(k, sb, vb, 10, SC, "s38", "s39")
    k("s_lshl_b32 s37, s37, 9")
    k(f"s_add_u32 s37, s37, {CNT + 384:#x}")
    ts(6, 1)
    k("s_waitcnt vmcnt(0)")
    k("s_mov_b64 exec, 1")
    k("buffer_atomic_add v15, off, s[8:11], s37 sc1")
    k("s_mov_b64 exec, -1")
    k("s_branch L_attn_Bgo")
    k.label("L_attn_noprep")
    k("s_waitcnt vmcnt(0)")
    k("s_barrier")
    k.label("L_attn_Bgo")
    ts(13, 1)
    ts(15, 1, 1)
    ts(7, 1, 2)
    k(f"s_cmp_lg_u32 s{S_LAY}, 0")
    k("s_cbranch_scc1 L_attn_prepok")
    if TOUCH & 1:
        l_touch_h()
    k.label("L_attn_prepok")
    if PFW:
        k(f"s_cmp_lg_u32 s{S_W}, 3")
        k("s_cbranch_scc1 L_attn_nopf")
        if PFW == 1:
            k(f"s_cmp_eq_u32 s{S_LAY}, 0")
            k("s_cbranch_scc1 L_attn_nopf")
        k(f"s_lshl_b32 s28, s{S_CS}, 2")
        k(f"s_and_b32 s29, s{S_RS}, 3")
        k("s_add_u32 s28, s28, s29")
        k("s_mul_i32 s29, s28, 25600")
        k(f"s_add_u32 s29, s29, {WO_F:#x}")
        k("s_mov_b32 s36, 25")
        k.label("L_pf_wo")
        k("buffer_load_dwordx4 v[20:23], v3, s[8:11], s29 offen")
        k("s_add_u32 s29, s29, 1024")
        k("s_sub_u32 s36, s36, 1")
        k("s_cmp_lg_u32 s36, 0")
        k("s_cbranch_scc1 L_pf_wo")
        k("s_min_u32 s28, s28, 29")
        k(f"s_mul_i32 s29, s28, {7*21504}")
        k(f"s_add_u32 s29, s29, {WGU_F:#x}")
        k("s_mov_b32 s36, 7")
        k.label("L_pf_gu")
        for st in eval(os.environ.get("PFST", "[0, 1, 2]")):
            k(f"s_add_u32 s30, s29, {st*2048}")
            k("buffer_load_dwordx4 v[20:23], v3, s[8:11], s30 offen")
            k("buffer_load_dwordx4 v[20:23], v3, s[8:11], s30 offen offset:1024")
        k("s_add_u32 s29, s29, 21504")
        k("s_sub_u32 s36, s36, 1")
        k("s_cmp_lg_u32 s36, 0")
        k("s_cbranch_scc1 L_pf_gu")
        k.label("L_attn_nopf")
    if TOUCH & 16:
        l_touch_x()
    ts(14, 1, 3)
    l_setup_w(PH["wo"])
    l_setup_x(PH["wo"])
    k(f"s_setprio {LPRIO}")
    k("s_barrier")
    k("s_branch L_l_after_attn")

    k.label("L_attn_slow")
    k(f"s_mov_b32 s{SPASS}, 1")
    k("v_mov_b32 v10, 0xff800000")
    k("v_mov_b32 v11, 0xff800000")
    k("s_mov_b32 s36, 0")
    k0_loads()
    k(rdH(1, 0))
    k("s_waitcnt vmcnt(0)")
    k("s_branch L_attn_slow_in")
    k.label("L_attn_slow_loop")
    k(rdH(0, 0))
    k(rdH(1, 0))
    for t in range(4):
        k(rdK(t & 1, t))
        if t == 0:
            k.label("L_attn_slow_in")
        k("s_waitcnt lgkmcnt(0)")
        for q in range(2):
            for x in smfma(q, t, q, "0"):
                k(x)
        k.nop(16)
        rowmax_into(10, 0, False)
        rowmax_into(11, 1, False)
    k(f"v_add_u32 v{A3}, s{SSTR}, v{A3}")
    k(f"v_add_u32 v{A4}, s{SSTR}, v{A4}")
    k("s_add_u32 s36, s36, 1")
    k("s_cmp_lg_u32 s36, 16")
    k("s_cbranch_scc1 L_attn_slow_loop")
    k(f"v_subrev_u32 v{A3}, {UNIT}, v{A3}")
    k(f"v_subrev_u32 v{A4}, {UNIT}, v{A4}")
    k0_loads()
    zero_o()
    k("s_waitcnt vmcnt(0)")
    k("s_branch L_attn_start")
    k.label("L_raw_qk")
    c_raw(True, c_stats_valu(False) + QKT, "L_join_qk")
    k.label("L_raw_v")
    c_raw(False, c_stats_valu(False) + VT, "L_join_v")
    k.label("L_mega_last")
    k("s_endpgm")
    return k.text(256, 102)


def main(out):
    hdr = open("cdna_kernels/" + NAME + ".s.ref").read().split("\n")
    hdr = [l for l in hdr if l.startswith(";") and "@launch" not in l and "Override launch" not in l and "grid=ceil" not in l]
    mega = gen_mega()
    L = [f"; @launch kernel=mega_kernel grid=(256,1,1) block=(512,1,1) lds={UNIT}"]
    txt = "\n".join(hdr + L) + "\n" + '.amdgcn_target "amdgcn-amd-amdhsa--gfx950"\n'
    txt += mega
    if os.environ.get("PLAIN", "0") == "1":
        txt = txt.replace("; @launch kernel=mega_kernel grid", "; @launch grid").replace("mega_kernel", NAME + "_kernel")
    open(out, "w").write(txt)


if __name__ == "__main__":
    main(sys.argv[1] if len(sys.argv) > 1 else "cdna_kernels/" + NAME + ".s")
```

```python
import math, struct, sys, os

NAME = "interleave_layers__mha_block__glu_gated_reglu__prompt"
INSTR = os.environ.get("INSTR", "0") == "1"

WQKV_F = 0x0001000
WGU_F  = 0x0300000
WO_F   = 0x0800000
WD_F   = 0x0900000
CNT    = 0x0C00000
LBASE  = 0x1000000
LSTR   = 0x2000000
XA     = LBASE + 0x0000000
STA    = LBASE + 0x0280000
XB     = XA
STB    = STA
QKVI   = LBASE + 0x0600000
OF     = LBASE + 0x1000000
HF     = LBASE + 0x1300000
TSBUF  = 0x8000000
WS_SIZE = 0x10000000
UNIT = 163840
USTR = UNIT + int(os.environ.get('UPAD', '0'))
SLOT = 49152
SCRATCH = 156 * 1024
SC = "sc0 sc1"
LSC = os.environ.get("LSC", "sc1")

def f2u(x):
    return struct.unpack("<I", struct.pack("<f", x))[0]

SQRTC = math.sqrt(math.log2(math.e) / math.sqrt(20.0))
MF = "v_mfma_f32_16x16x32_bf16"
ROT = int(os.environ.get("ROT", "0"))
CK2 = int(os.environ.get("CK2", "2"))
PF = int(os.environ.get("PF", "0"))
WARM = int(os.environ.get("WARM", "1"))
LPRIO = int(os.environ.get("LPRIO", "0"))
TOUCH = int(os.environ.get("TOUCH", "19"))
W2LATE = int(os.environ.get("W2LATE", "7"))
TLBW = int(os.environ.get("TLBW", "0"))
HEAD2 = int(os.environ.get("HEAD2", "1"))
PFW = int(os.environ.get("PFW", "0"))
SPF = int(os.environ.get("SPF", "0"))
SPS_ = int(os.environ.get("SPSTR", "128"))
WBL = int(os.environ.get("WBL", "0"))
HSC = os.environ.get("HSC", "")
XSC = os.environ.get("XSC", "")
SPT = eval(os.environ.get("SPT", "{}"))
SELFW = int(os.environ.get("SELFW", "0"))
KV5 = int(os.environ.get("KV5", "1"))
WOPRE = int(os.environ.get("WOPRE", "4"))
NT0 = int(os.environ.get("NT0", "5"))
NT1 = int(os.environ.get("NT1", "0"))
TGAP = int(os.environ.get("TGAP", "1"))
RAWW = int(os.environ.get("RAWW", "1"))
NTB = int(os.environ.get("NTB", "0"))
TLBT = int(os.environ.get("TLBT", "0"))
POLL2 = int(os.environ.get("POLL2", "0"))


class K:
    def __init__(self, name):
        self.name = name
        self.l = []
        self.nlab = 0
    def __call__(self, s):
        for x in s.split("\n"):
            x = x.strip()
            if x.startswith("LABEL "):
                self.l.append(x.split()[1] + ":")
            elif x:
                self.l.append("    " + x)
    def label(self, s):
        self.l.append(s + ":")
    def newlabel(self, p="L"):
        self.nlab += 1
        return f"{p}_{self.name}_{self.nlab}"
    def nop(self, n):
        while n > 0:
            m = min(n, 16)
            self(f"s_nop {m-1}")
            n -= m
    def text(self, vgpr, sgpr=96):
        acc = (vgpr + 3) // 4 * 4
        kn = self.name + "_kernel"
        t = [".text", f".globl {kn}", ".p2align 8", f".type {kn},@function", f"{kn}:"]
        t += self.l
        d = ['.section .rodata,"a"', ".p2align 6", f".amdhsa_kernel {kn}",
             f"  .amdhsa_next_free_vgpr {vgpr}", f"  .amdhsa_next_free_sgpr {sgpr}",
             f"  .amdhsa_accum_offset {acc}", "  .amdhsa_group_segment_fixed_size 0",
             "  .amdhsa_kernarg_size 80", "  .amdhsa_user_sgpr_count 2",
             "  .amdhsa_user_sgpr_kernarg_segment_ptr 1", "  .amdhsa_system_sgpr_workgroup_id_x 1",
             ".end_amdhsa_kernel"]
        return "\n".join(t + d) + "\n"


def vr(b, n):
    return f"v[{b}:{b+n-1}]" if n > 1 else f"v{b}"

def srd(k, d, base, size):
    k(f"s_mov_b32 s{d}, s{base}")
    k(f"s_mov_b32 s{d+1}, s{base+1}")
    k(f"s_mov_b32 s{d+2}, {size:#x}")
    k(f"s_mov_b32 s{d+3}, 0x00020000")


def prep_rows(k, kind, sb):
    t = lambda i: f"s{sb+2+i}"
    for i in range(5):
        P, G4, S_, r0, r1, u, w = t(0), t(1), t(2), t(3), t(4), t(5), t(6)
        k(f"s_add_u32 {P}, s{sb+23}, {i}")
        if kind == "wd":
            k(f"s_min_u32 {P}, {P}, 215")
        k(f"s_and_b32 {G4}, {P}, 3")
        k(f"s_lshl_b32 {G4}, {G4}, 2")
        k(f"s_lshr_b32 {S_}, {P}, 2")
        if kind in ("x", "wd"):
            if kind == "x":
                k(f"s_lshr_b32 {r0}, {S_}, 1")
                k(f"s_and_b32 {r1}, {S_}, 1")
                tw, lim, sub = 80, 16, 2560 - 64
            else:
                k(f"s_mul_i32 {r0}, {S_}, 86")
                k(f"s_lshr_b32 {r0}, {r0}, 8")
                k(f"s_mul_i32 {r1}, {r0}, 3")
                k(f"s_sub_u32 {r1}, {S_}, {r1}")
                tw, lim, sub = 112, 46, 224 * 46 - 96
            k(f"s_mul_i32 {r0}, {r0}, {tw}")
            k(f"s_lshl_b32 {r1}, {r1}, 5")
            k(f"s_add_u32 {r0}, {r0}, {r1}")
            k(f"s_add_u32 {r0}, {r0}, {G4}")
            k(f"s_lshr_b32 {u}, {P}, 1")
            k(f"s_mul_i32 {u}, {u}, {tw}")
            k(f"s_sub_u32 {u}, {u}, {sub}")
            if kind == "wd":
                k(f"s_min_u32 {u}, {u}, 1712")
            k(f"s_and_b32 {w}, {P}, 1")
            k(f"s_lshl_b32 {w}, {w}, 3")
            k(f"s_add_u32 {u}, {u}, {w}")
            k(f"s_cmp_ge_u32 {S_}, {lim}")
            k(f"s_cselect_b32 {r0}, {u}, {r0}")
            k(f"s_cselect_b32 {r1}, 4, 16")
            k(f"s_add_u32 {r1}, {r0}, {r1}")
        else:
            k(f"s_sub_u32 {S_}, {P}, 8")
            k(f"s_lshr_b32 {r0}, {S_}, 1")
            k(f"s_mul_i32 {r0}, {r0}, 20")
            k(f"s_and_b32 {r1}, {P}, 1")
            k(f"s_lshl_b32 {r1}, {r1}, 2")
            k(f"s_add_u32 {r0}, {r0}, {r1}")
            k(f"s_and_b32 {u}, {P}, 15")
            k(f"s_mul_i32 {u}, {u}, 40")
            k(f"s_add_u32 {u}, {u}, 16")
            k(f"s_cmp_ge_u32 {S_}, 64")
            k(f"s_cselect_b32 {r0}, {u}, {r0}")
            k(f"s_cselect_b32 {r1}, 20, 8")
            k(f"s_add_u32 {r1}, {r0}, {r1}")
        k(f"s_mul_i32 s{sb+10+2*i}, {r0}, s{sb+20}")
        k(f"s_mul_i32 s{sb+11+2*i}, {r1}, s{sb+20}")

def prep_loads(k, sb, vb, v0):
    for i in range(5):
        for j in range(8):
            sreg = f"s{sb+10+2*i+(j>>2)}"
            k(f"buffer_load_ushort v{v0+8*i+j}, v{vb}, s[{sb+24}:{sb+27}], {sreg} offen")
            if j not in (3, 7):
                k(f"s_add_u32 {sreg}, {sreg}, s{sb+20}")

def prep_finish(k, sb, vb, NP, sc, npieces_reg, colsum_reg):
    done, nocs = k.newlabel(), k.newlabel()
    k(f"s_lshl_b32 s{sb+2}, s{sb+1}, 8")
    for i in range(NP):
        a = vb + 16 + 8 * i
        o = vb + 8 + 4 * (i & 1)
        if i:
            k(f"s_add_u32 s{sb+3}, s{sb+1}, {i}")
            k(f"s_cmp_ge_u32 s{sb+3}, {npieces_reg}")
            k(f"s_cbranch_scc1 {done}")
        for j in range(4):
            k(f"v_lshl_or_b32 v{o+j}, v{a+2*j+1}, 16, v{a+2*j}")
        k(f"buffer_store_dwordx4 {vr(o,4)}, v{vb+1}, s[8:11], s{sb+2} offen offset:{i*256} {sc}")
    k.label(done)
    k(f"s_cmp_eq_u32 {colsum_reg}, 0")
    k(f"s_cbranch_scc1 {nocs}")
    e = vb + 16
    for r in range(0, 8 * NP, 2):
        k(f"v_lshlrev_b32 v{e+r}, 16, v{e+r}")
        k(f"v_lshlrev_b32 v{e+r+1}, 16, v{e+r+1}")
        if r:
            k(f"v_pk_add_f32 {vr(e,2)}, {vr(e,2)}, {vr(e+r,2)}")
    k(f"v_add_f32 v{e}, v{e}, v{e+1}")
    lg = 2 if NP == 5 else 1
    k(f"s_lshr_b32 s{sb+2}, s{sb}, {lg}")
    k(f"s_lshl_b32 s{sb+2}, s{sb+2}, {6+lg}")
    k(f"s_and_b32 s{sb+3}, s{sb}, {(1<<lg)-1}")
    k(f"s_lshl_b32 s{sb+3}, s{sb+3}, 2")
    k(f"s_add_u32 s{sb+2}, s{sb+2}, s{sb+3}")
    k(f"s_add_u32 s{sb+2}, s{sb+2}, {20*1024}")
    k(f"buffer_store_dword v{e}, v{vb+2}, s[8:11], s{sb+2} offen {sc}")
    k.label(nocs)


def gen_prep():
    k = K("prep")
    NWG = 246
    L_end = "L_prep_end"
    sb, vb = 40, 16
    if SELFW:
        k("s_getpc_b64 s[32:33]")
        k("v_and_b32 v1, 63, v0")
        k("v_lshlrev_b32 v4, 7, v1")
        k("global_load_dword v85, v4, s[32:33]")
    k(f"s_cmp_ge_u32 s2, {NWG}")
    k(f"s_cbranch_scc1 {L_end}")
    k("s_load_dwordx4 s[24:27], s[0:1], 0")
    k("s_load_dwordx2 s[4:5], s[0:1], 72")
    if TLBW:
        k("s_load_dwordx2 s[80:81], s[0:1], 16")
        k("s_load_dwordx4 s[84:87], s[0:1], 32")
        k("s_load_dwordx4 s[88:91], s[0:1], 48")
    k("v_and_b32 v1, 63, v0")
    k("v_lshrrev_b32 v2, 6, v0")
    k("s_nop 0")
    k("v_readfirstlane_b32 s12, v2")
    if WARM:
        k("s_getpc_b64 s[28:29]")
        k.label("L_prep_pc")
        k("s_add_u32 s28, s28, mega_kernel - L_prep_pc")
        k("s_addc_u32 s29, s29, 0")
        k("s_lshr_b32 s30, s2, 3")
        k("s_mul_i32 s30, s30, 3")
        k("s_add_u32 s30, s30, s12")
        k("s_lshl_b32 s30, s30, 9")
        k("s_min_u32 s30, s30, L_mega_last - mega_kernel - 512")
        k("v_lshl_add_u32 v4, v1, 3, s30")
        k("global_load_dwordx2 v[86:87], v4, s[28:29]")
    k(f"s_mul_i32 s12, s12, {NWG}")
    k("s_add_u32 s12, s12, s2")
    k("s_cmp_ge_u32 s12, 480")
    k("s_cbranch_scc1 L_prep_x")
    k(f"s_and_b32 s{sb}, s12, 15")
    k(f"s_mul_i32 s{sb+1}, s{sb}, 5")
    k(f"s_mov_b32 s{sb+23}, s{sb+1}")
    k("s_lshr_b32 s22, s12, 4")
    k("s_lshl_b32 s22, s22, 6")
    k(f"s_movk_i32 s{sb+20}, 3840")
    k("v_add_u32 v5, s22, v1")
    k(f"v_lshlrev_b32 v{vb}, 1, v5")
    prep_rows(k, "x", sb)
    k("s_waitcnt lgkmcnt(0)")
    srd(k, sb + 24, 26, 640 * 3840)
    srd(k, 8, 4, WS_SIZE)
    prep_loads(k, sb, vb, vb + 16)
    k("v_mul_u32_u24 v6, 3277, v5")
    k("v_lshrrev_b32 v6, 16, v6")
    k("v_mul_u32_u24 v7, 20, v6")
    k("v_sub_u32 v7, v5, v7")
    k("v_mul_u32_u24 v8, 43, v6")
    k("v_lshrrev_b32 v8, 8, v8")
    k("v_mul_u32_u24 v9, 6, v8")
    k("v_sub_u32 v9, v6, v9")
    k("v_and_b32 v10, 6, v9")
    k("v_bfe_u32 v11, v7, 2, 1")
    k("v_add_u32 v10, v10, v11")
    k("v_and_b32 v11, 1, v9")
    k("v_lshlrev_b32 v12, 3, v11")
    k("v_bfe_u32 v11, v7, 3, 1")
    k("v_lshl_add_u32 v12, v11, 2, v12")
    k("v_lshrrev_b32 v14, 2, v9")
    k("v_add_u32 v14, 6, v14")
    k("v_and_b32 v15, 3, v9")
    k("v_lshlrev_b32 v15, 2, v15")
    k("v_cmp_le_u32 s[30:31], 16, v7")
    k("s_nop 1")
    k("v_cndmask_b32 v10, v10, v14, s[30:31]")
    k("v_cndmask_b32 v12, v12, v15, s[30:31]")
    k("v_and_b32 v13, 3, v7")
    k("v_add_u32 v12, v12, v13")
    k("v_lshl_add_u32 v10, v8, 3, v10")
    k("v_lshrrev_b32 v14, 4, v5")
    k("v_add_u32 v14, 8, v14")
    k("v_and_b32 v15, 15, v5")
    k("s_movk_i32 s30, 1280")
    k("v_cmp_le_u32 s[30:31], s30, v5")
    k("s_nop 1")
    k("v_cndmask_b32 v10, v10, v14, s[30:31]")
    k("v_cndmask_b32 v12, v12, v15, s[30:31]")
    k(f"v_mul_u32_u24 v{vb+1}, 21504, v10")
    k(f"v_add_u32 v{vb+1}, {WQKV_F:#x}, v{vb+1}")
    k(f"v_lshl_add_u32 v{vb+1}, v12, 4, v{vb+1}")
    k(f"v_mov_b32 v{vb+2}, v{vb+1}")
    k("s_waitcnt vmcnt(0)")
    prep_finish(k, sb, vb, 5, "", "80", "1")
    k("s_endpgm")

    k.label("L_prep_x")
    k("s_sub_u32 s22, s12, 480")
    k("s_cmp_ge_u32 s22, 256")
    k(f"s_cbranch_scc1 {L_end}")
    k("s_and_b32 s23, s22, 1")
    k("s_lshl_b32 s23, s23, 3")
    k("v_lshrrev_b32 v5, 3, v1")
    k("v_add_u32 v5, s23, v5")
    k("v_and_b32 v6, 7, v1")
    k("v_mul_u32_u24 v3, 1280, v5")
    k("v_lshl_add_u32 v3, v6, 4, v3")
    k("s_lshr_b32 s23, s22, 1")
    k("s_mul_i32 s42, s23, 20480")
    k("s_waitcnt lgkmcnt(0)")
    srd(k, 16, 24, 2048 * 1280)
    srd(k, 8, 4, WS_SIZE)
    for i in range(10):
        k(f"buffer_load_dwordx4 {vr(16+4*i,4)}, v3, s[16:19], s42 offen offset:{128*i}")
    if TLBW:
        k("v_lshlrev_b32 v84, 20, v1")
        k("buffer_load_dword v85, v84, s[8:11], 0 offen")
        k(f"s_mov_b32 s70, {64<<20:#x}")
        k("s_mov_b64 exec, 0xffff")
        k("buffer_load_dword v85, v84, s[8:11], s70 offen")
        k("s_mov_b64 exec, 7")
        for (b_, n_) in ((84, 640*3456), (86, 640*3456), (88, 1728*1280), (90, 2048*1280), (80, 640*1280)):
            srd(k, 72, b_, n_)
            k("buffer_load_dword v85, v84, s[72:75], 0 offen")
        k("s_mov_b64 exec, -1")
    k("v_mov_b32 v8, 0")
    k("v_mov_b32 v9, 0")
    k("v_lshlrev_b32 v10, 3, v1")
    k("s_lshl_b32 s43, s22, 9")
    k(f"s_add_u32 s43, s43, {CNT:#x}")
    k("buffer_store_dwordx2 v[8:9], v10, s[8:11], s43 offen")
    k("v_lshlrev_b32 v4, 4, v5")
    k("v_and_b32 v15, 1, v6")
    k("v_lshrrev_b32 v7, 1, v6")
    k("v_mov_b32 v56, 0x100")
    for i in range(10):
        d = 64 + 2 * i
        k(f"v_add_u32 v10, {4*i}, v7")
        k("v_mul_u32_u24 v11, 52, v10")
        k("v_lshrrev_b32 v11, 8, v11")
        k("v_mul_u32_u24 v12, 5, v11")
        k("v_sub_u32 v12, v10, v12")
        k("v_lshrrev_b32 v13, 1, v12")
        k("v_lshl_add_u32 v13, v11, 1, v13")
        k("v_lshl_add_u32 v13, v13, 1, v15")
        k("v_lshlrev_b32 v13, 9, v13")
        k("v_and_b32 v14, 1, v12")
        k("v_lshl_add_u32 v13, v14, 3, v13")
        k("v_lshl_add_u32 v14, v11, 1, v15")
        k("v_lshlrev_b32 v14, 8, v14")
        k("v_add_u32 v14, 0x4000, v14")
        k("v_cmp_eq_u32 s[44:45], 4, v12")
        k("s_nop 1")
        k("v_cndmask_b32 v13, v13, v14, s[44:45]")
        k("v_cndmask_b32 v14, v56, 8, s[44:45]")
        k(f"v_add_u32 v{d}, v13, v4")
        k(f"v_add_u32 v{d+1}, v{d}, v14")
    k(f"s_add_u32 s43, s42, {XA:#x}")
    k("s_waitcnt vmcnt(0)")
    for i in range(10):
        k(f"buffer_store_dwordx2 {vr(16+4*i,2)}, v{64+2*i}, s[8:11], s43 offen")
        k(f"buffer_store_dwordx2 {vr(18+4*i,2)}, v{65+2*i}, s[8:11], s43 offen")
    k("v_mov_b64 v[12:13], 0")
    for r in range(40):
        k(f"v_lshlrev_b32 v10, 16, v{16+r}")
        k(f"v_and_b32 v11, 0xffff0000, v{16+r}")
        k("v_pk_add_f32 v[8:9], v[8:9], v[10:11]")
        k("v_pk_fma_f32 v[12:13], v[10:11], v[10:11], v[12:13]")
    k("v_add_f32 v8, v8, v9")
    k("v_add_f32 v9, v12, v13")
    k("v_lshlrev_b32 v4, 14, v6")
    k("v_lshl_add_u32 v4, v5, 3, v4")
    k("s_lshl_b32 s43, s23, 7")
    k(f"s_add_u32 s43, s43, {STA:#x}")
    k("buffer_store_dwordx2 v[8:9], v4, s[8:11], s43 offen")
    k.label(L_end)
    k("s_endpgm")
    return k.text(88, 96), NWG


class Ph:
    def __init__(s, name, big, NB, nsteps, xsrc, wsrc):
        s.name, s.big, s.NB, s.nsteps, s.xsrc, s.wsrc = name, big, NB, nsteps, xsrc, wsrc
        s.MX = 2 if big else 1
        s.NXF = 4 * s.MX
        s.SPS = 2 if big else 4
        s.STEP = (s.NXF + NB) * 1024
        s.XS = nsteps * 1024
        s.WS = (nsteps + 1) * 1024 if big else nsteps * 1024
        s.nst = (nsteps + s.SPS - 1) // s.SPS
        s.skip = s.SPS * s.nst - nsteps
        s.SL = [x * 1024 for x in {"wo": [108, 0, 36, 72], "gu": [0, 44, 88], "down": [88, 48, 124, 0], "qkv": [0, 124, 88, 48]}[name]]
        s.R = len(s.SL)
        s.EARLY = eval(os.environ.get("EARLY", '{"wo": {3: [0], 4: [1]}, "gu": {8: [1], 9: [0, 2]}, "down": {12: [0, 1], 13: [2]}, "qkv": {}}'))[name]
        s.nx = 4
        s.nw = NB // 2 if big else NB
        s.n = s.nx + s.nw
        assert s.SPS * s.STEP <= SLOT

PH = {
    "qkv": Ph("qkv", True, 8, 20, XA, WQKV_F),
    "wo": Ph("wo", False, 5, 20, OF, WO_F),
    "gu": Ph("gu", True, 14, 20, XB, WGU_F),
    "down": Ph("down", False, 5, 54, HF, WD_F),
}

S_W = 12
S_RB, S_CB = 13, 14
S_RS, S_CS = 15, 16
S_HD, S_QB = 17, 18
S_LAY = 19
S_SLOT = 20
S_SEAM = 21
S_TS = 22
S_ROLE = 23
S_FAST = 3
TK = CNT + 64*512 + 384
FL = CNT + 128*512 + 384
FORCE_SLOW = int(os.environ.get('FORCE_SLOW', '0'))
RES = 16


def gen_mega():
    k = K("mega")
    L_end = "L_mega_end"

    def ts(i, role=0, wave=0):
        if not INSTR:
            return
        lab = k.newlabel()
        k(f"s_xor_b32 s96, s{S_ROLE}, {role}")
        k(f"s_xor_b32 s97, s{S_W}, {wave}")
        k("s_or_b32 s96, s96, s97")
        k(f"s_cbranch_scc1 {lab}")
        k("s_memtime s[96:97]")
        k("s_memrealtime s[98:99]")
        k("s_waitcnt lgkmcnt(0)")
        k("s_mov_b64 s[100:101], exec")
        k("s_mov_b64 exec, 1")
        k("v_mov_b32 v0, s96")
        k(f"buffer_store_dword v0, off, s[8:11], s{S_TS} offset:{8*i}")
        k("s_nop 1")
        k("v_mov_b32 v0, s98")
        k(f"buffer_store_dword v0, off, s[8:11], s{S_TS} offset:{8*i+4}")
        k("s_mov_b64 exec, s[100:101]")
        k.label(lab)

    def get_coords():
        k(f"v_mov_b32 v9, {SCRATCH + 1024:#x}")
        k("ds_read_b32 v9, v9")
        k("s_waitcnt lgkmcnt(0)")
        k("v_readfirstlane_b32 s28, v9")
        k(f"s_lshr_b32 s{S_FAST}, s28, 8")
        k("s_bfe_u32 s30, s28, 0x30005")
        k(f"s_lshl_b32 s{S_RS}, s30, 2")
        k("s_and_b32 s29, s28, 3")
        k(f"s_add_u32 s{S_RS}, s{S_RS}, s29")
        k(f"s_bfe_u32 s{S_CS}, s28, 0x30002")
        k(f"s_lshl_b32 s{S_RB}, s30, 1")
        k("s_and_b32 s29, s28, 1")
        k(f"s_add_u32 s{S_RB}, s{S_RB}, s29")
        k(f"s_bfe_u32 s{S_CB}, s28, 0x40001")
        k(f"s_mov_b32 s{S_HD}, s{S_RS}")
        k(f"s_mov_b32 s{S_QB}, s{S_CS}")

    def next_slot(dst=S_SLOT):
        k(f"s_add_u32 s{dst}, s{dst}, {SLOT}")
        k(f"s_cmp_eq_u32 s{dst}, {3*SLOT}")
        k(f"s_cselect_b32 s{dst}, 0, s{dst}")

    k("s_cmp_ge_u32 s2, 256")
    k(f"s_cbranch_scc1 {L_end}")
    k("s_getpc_b64 s[30:31]")
    k("s_lshr_b32 s28, s2, 3")
    k("s_mul_i32 s28, s28, 1536")
    k("v_lshl_add_u32 v4, v0, 7, s28")
    k("v_min_u32 v4, L_mega_last - mega_kernel - 128, v4")
    k("v_cmp_gt_u32 vcc, 12, v0")
    k("s_and_saveexec_b64 s[28:29], vcc")
    k("s_cbranch_execz L_nocode")
    k("global_load_dword v16, v4, s[30:31]")
    k.label("L_nocode")
    k("s_mov_b64 exec, s[28:29]")
    k("s_load_dwordx2 s[4:5], s[0:1], 72")
    k("s_load_dwordx2 s[6:7], s[0:1], 56")
    k("s_load_dwordx2 s[86:87], s[0:1], 16")
    k("s_load_dwordx4 s[88:91], s[0:1], 32")
    k("s_load_dwordx2 s[92:93], s[0:1], 48")
    k("s_load_dwordx4 s[32:35], s[0:1], 0")
    k("s_load_dwordx2 s[36:37], s[0:1], 64")
    k("v_and_b32 v1, 63, v0")
    k("v_lshrrev_b32 v2, 6, v0")
    k("v_lshlrev_b32 v3, 4, v1")
    k(f"v_readfirstlane_b32 s{S_W}, v2")
    k(f"s_and_b32 s{S_RB}, s2, 1")
    k(f"s_lshl_b32 s{S_RB}, s{S_RB}, 3")
    k("s_bfe_u32 s28, s2, 0x30003")
    k(f"s_add_u32 s{S_RB}, s{S_RB}, s28")
    k(f"s_bfe_u32 s{S_CB}, s2, 0x20001")
    k(f"s_lshl_b32 s{S_CB}, s{S_CB}, 2")
    k("s_lshr_b32 s28, s2, 6")
    k(f"s_add_u32 s{S_CB}, s{S_CB}, s28")
    k(f"s_mov_b32 s{S_LAY}, 0")
    k(f"s_mov_b32 s{S_SEAM}, 0")
    k(f"s_lshl_b32 s{S_TS}, s2, 10")
    k(f"s_add_u32 s{S_TS}, s{S_TS}, {TSBUF:#x}")
    k("s_waitcnt lgkmcnt(0)")
    srd(k, 8, 4, WS_SIZE)
    srd(k, 24, 6, 2048 * 1280)
    srd(k, 68, 32, 2048 * 1280)
    srd(k, 72, 34, 640 * 3840)
    srd(k, 76, 36, 256)
    k("s_mov_b64 s[32:33], s[34:35]")
    k(f"s_mul_i32 s47, s{S_CB}, 240")
    k(f"s_lshl_b32 s28, s{S_CB}, 8")
    k("s_sub_u32 s28, s28, 256")
    k(f"s_cmp_ge_u32 s{S_CB}, 11")
    k("s_cselect_b32 s47, s28, s47")
    k("v_mov_b32 v15, 1")
    k(f"s_mov_b32 s{S_ROLE}, 0")
    k(f"s_cmp_lt_u32 s{S_W}, 4")
    k("s_cbranch_scc1 L_comp")
    k(f"s_mov_b32 s{S_ROLE}, 1")

    k(f"s_sub_u32 s{S_W}, s{S_W}, 4")
    k(f"s_setprio {LPRIO}")
    AX = {"qkv": 32, "wo": 48, "gu": 32, "down": 48}
    DUMMY = {"qkv": (10, 0xb0), "gu": (15, 0xff0)}
    def dummy_mask(p, dst):
        c, msk = DUMMY[p.name]
        k(f"s_cmp_eq_u32 s{S_CB}, {c}")
        k(f"s_cselect_b32 s{dst}, {msk:#x}, 0")
    def l_setup_w(p):
        a = AX[p.name] + 4
        rc = S_CB if p.big else S_CS
        k(f"s_mul_i32 s28, s{rc}, {p.NB*p.WS}")
        k(f"s_lshr_b32 s29, s{S_W}, {1 if p.big else 0}")
        k("s_lshl_b32 s29, s29, 10")
        k("s_add_u32 s28, s28, s29")
        k(f"s_add_u32 s28, s28, {p.wsrc - p.skip*1024:#x}")
        if not p.big:
            for j in range(p.nw):
                k(f"s_add_u32 s29, s28, {j*p.WS - (j&3)*1024}")
                k(f"v_add_u32 v{a+j}, s29, v3")
            return
        dummy_mask(p, 30)
        k(f"s_and_b32 s29, s{S_W}, 1")
        k(f"s_mul_i32 s29, s29, {p.nw}")
        for j in range(p.nw):
            k("s_bitcmp1_b32 s30, s29")
            k("s_cselect_b32 s31, 0, s29")
            k(f"s_mul_i32 s31, s31, {p.WS}")
            k("s_add_u32 s31, s31, s28")
            k(f"s_sub_u32 s31, s31, {(j&3)*1024}")
            k(f"v_add_u32 v{a+j}, s31, v3")
            k("s_add_u32 s29, s29, 1")
        if p.name == "qkv":
            k(f"s_cmp_lt_u32 s{S_CB}, 11")
            k("s_cselect_b32 s30, 0x80, 0")
            k("s_cmp_eq_u32 s29, 8")
            k("s_cselect_b32 s30, s30, 0")
            k("v_and_b32 v4, s30, v3")
            k(f"v_sub_u32 v{a+3}, v{a+3}, v4")
    def l_setup_x(p):
        a = AX[p.name]
        rr = S_RB if p.big else S_RS
        k(f"s_mul_i32 s28, s{rr}, {p.NXF*p.XS}")
        if p.big:
            k(f"s_and_b32 s29, s{S_W}, 1")
            k(f"s_mul_i32 s29, s29, {4*p.XS}")
            k("s_add_u32 s28, s28, s29")
            k(f"s_lshr_b32 s29, s{S_W}, 1")
        else:
            k(f"s_mov_b32 s29, s{S_W}")
        k("s_lshl_b32 s29, s29, 10")
        k("s_add_u32 s28, s28, s29")
        k(f"s_add_u32 s28, s28, {p.xsrc - p.skip*1024:#x}")
        if p.name == "wo":
            k(f"s_add_u32 s28, s28, s{S_LAY}")
        for j in range(4):
            k(f"v_add_u32 v{a+j}, s28, v3")
            if j < 3:
                k(f"s_add_u32 s28, s28, {p.XS - 1024}")
    LOFF = {"qkv": 40, "wo": 42, "gu": 44, "down": 42}
    for nm in ("qkv", "wo", "gu"):
        p = PH[nm]
        r = LOFF[nm]
        if p.big:
            k(f"s_lshr_b32 s28, s{S_W}, 1")
            k(f"s_mul_i32 s28, s28, {p.STEP}")
            k(f"s_and_b32 s29, s{S_W}, 1")
            k(f"s_lshl_b32 s30, s29, 12")
            k(f"s_add_u32 s{r}, s28, s30")
            k(f"s_mul_i32 s30, s29, {p.nw*1024}")
            k(f"s_add_u32 s{r+1}, s28, s30")
            k(f"s_add_u32 s{r+1}, s{r+1}, {p.NXF*1024}")
        else:
            k(f"s_mul_i32 s{r}, s{S_W}, {p.STEP}")
            k(f"s_add_u32 s{r+1}, s{r}, 4096")
    class Trk:
        def __init__(t): t.ops = []
        def has(t, g): return any(x == g for x, n in t.ops)
        def allowed(t, tags):
            last = max(i for i, (g, n) in enumerate(t.ops) if g in tags)
            return sum(n for g, n in t.ops[last+1:])
    def l_issue(p, part, st, trk):
        a = AX[p.name] + (0 if part == "x" else 4)
        n = p.nx if part == "x" else p.nw
        r = LOFF[p.name] + (0 if part == "x" else 1)
        lds = p.SL[st % p.R]
        lab = None
        if st == 0 and p.skip:
            lab = k.newlabel()
            k(f"s_cmp_lt_u32 s{S_W}, {p.skip}")
            k(f"s_cbranch_scc1 {lab}")
        for j in range(n):
            if j % 4 == 0:
                k(f"s_add_u32 m0, s{r}, {lds + j*1024}")
                k(f"s_mov_b32 s35, {st*p.SPS*1024}")
            k(f"buffer_load_dwordx4 v{a+j}, s[8:11], s35 offen offset:{(j&3)*1024} {LSC if part == 'x' else ''} lds")
        if lab:
            k.label(lab)
        trk.ops.append(((p.name, part, st), 0 if lab else n))
    def l_touch_h():
        k(f"s_lshl_b32 s28, s{S_RB}, 2")
        k(f"s_add_u32 s28, s28, s{S_W}")
        k(f"s_mul_i32 s28, s28, {2*55296}")
        k(f"s_add_u32 s28, s28, {HF:#x}")
        k(f"s_mul_i32 s29, s{S_CB}, 3072")
        k("s_add_u32 s30, s28, s29")
        k(f"s_lshl_b32 s29, s{S_CB}, 9")
        k("s_add_u32 s29, s28, s29")
        k(f"s_add_u32 s29, s29, {46*1024}")
        k(f"s_cmp_eq_u32 s{S_CB}, 15")
        k("s_cselect_b32 s31, 0, 1024")
        k("v_add_u32 v24, s31, v3")
        k("v_add_u32 v25, s31, v24")
        for m in range(2):
            for j in range(3):
                k(f"buffer_load_dwordx4 v[20:23], v{3 if j == 0 else 23+j}, s[8:11], s30 offen sc1")
            k("s_mov_b32 exec_hi, 0")
            k("buffer_load_dwordx4 v[20:23], v3, s[8:11], s29 offen sc1")
            k("s_mov_b64 exec, -1")
            if m == 0:
                k("s_add_u32 s30, s30, 55296")
                k("s_add_u32 s29, s29, 55296")
    def l_touch_x():
        k(f"s_lshl_b32 s28, s{S_RS}, 2")
        k(f"s_add_u32 s28, s28, s{S_W}")
        k("s_mul_i32 s29, s28, 20480")
        k(f"s_add_u32 s29, s29, {XA:#x}")
        k(f"s_lshl_b32 s30, s{S_CS}, 11")
        k("s_add_u32 s30, s30, s29")
        k(f"s_lshl_b32 s31, s{S_CS}, 9")
        k("s_add_u32 s31, s31, s29")
        k("s_add_u32 s31, s31, 16384")
        k("buffer_load_dwordx4 v[20:23], v3, s[8:11], s30 offen sc1")
        k("buffer_load_dwordx4 v[20:23], v3, s[8:11], s30 offen offset:1024 sc1")
        k("s_mov_b32 exec_hi, 0")
        k("buffer_load_dwordx4 v[20:23], v3, s[8:11], s31 offen sc1")
        k(f"s_lshl_b32 s29, s{S_CS}, 14")
        k("s_lshl_b32 s28, s28, 7")
        k("s_add_u32 s29, s29, s28")
        k(f"s_add_u32 s29, s29, {STA:#x}")
        k("s_mov_b64 exec, 1")
        k("buffer_load_dwordx4 v[20:23], v3, s[8:11], s29 offen sc1")
        k("s_mov_b64 exec, -1")
    def l_gemm(p, nxt, trk):
        def need(st):
            return trk.allowed({(p.name, "x", st), (p.name, "w", st)})
        def fill(st):
            for part in ("w", "x"):
                if not trk.has((p.name, part, st)):
                    l_issue(p, part, st, trk)
        fill(0)
        fill(1)
        for st in range(p.nst):
            k(f"s_waitcnt vmcnt({need(st)})")
            k("s_barrier")
            if st == 0:
                for i in range(2, p.R):
                    fill(i)
                if nxt:
                    l_setup_w(nxt)
                if p.name == "down" and TOUCH & 16:
                    lab = k.newlabel()
                    k(f"s_cmp_lg_u32 s{S_LAY}, 0")
                    k(f"s_cbranch_scc1 {lab}")
                    l_touch_x()
                    k.label(lab)
            elif st - 1 + p.R < p.nst:
                fill(st - 1 + p.R)
            if st in SPT.get(p.name, []):
                i_ = SPT[p.name].index(st)
                base, size = (WD_F, 40*55296) if p.name == "gu" else (WQKV_F, 128*21504)
                k(f"s_lshl_b32 s28, s{S_CS}, 2")
                k(f"s_and_b32 s29, s{S_RS}, 3")
                k("s_add_u32 s28, s28, s29")
                k("s_lshl_b32 s28, s28, 2")
                k(f"s_add_u32 s28, s28, s{S_W}")
                k("s_lshl_b32 s28, s28, 13")
                k(f"s_add_u32 s28, s28, {i_ << 20}")
                k(f"s_min_u32 s28, s28, {size - 8192}")
                k(f"s_add_u32 s28, s28, {base:#x}")
                k("v_lshlrev_b32 v24, 7, v1")
                k("buffer_load_dword v20, v24, s[8:11], s28 offen")
                trk.ops.append(("t", 1))
            if p.name == "gu" and st == p.nst - 1 and TOUCH & 2:
                l_touch_h()
                trk.ops.append(("t", 8))
            if p.name == "down" and st == min(p.EARLY):
                assert st == p.nst - 2
                lab = k.newlabel()
                k(f"s_cmp_eq_u32 s{S_LAY}, 0")
                k(f"s_cbranch_scc1 {lab}")
                k("s_waitcnt vmcnt(0)")
                k("s_barrier")
                k("s_endpgm")
                k.label(lab)
            for i in p.EARLY.get(st, []):
                l_issue(nxt, "w", i, trk)
        return trk

    k("v_lshrrev_b32 v8, 3, v1")
    k("v_and_b32 v9, 7, v1")
    k("v_lshrrev_b32 v10, 4, v1")
    k("v_xor_b32 v9, v9, v10")
    k("v_mul_u32_u24 v8, 1280, v8")
    k(f"s_lshl_b32 s28, s{S_RB}, 2")
    k(f"s_add_u32 s28, s28, s{S_W}")
    k(f"s_mul_i32 s28, s28, {32*1280}")
    for j in range(4):
        k(f"v_xor_b32 v11, {4*(j&1)}, v9")
        k("v_lshl_add_u32 v11, v11, 4, v8")
        k(f"s_add_u32 s29, s28, {j*(8*1280-1024)}")
        k(f"v_add_u32 v{32+j}, s29, v11")
    k("v_and_b32 v9, 15, v1")
    k("v_lshlrev_b32 v11, 1, v10")
    k("v_xor_b32 v9, v9, v11")
    k("v_mul_u32_u24 v8, 3840, v10")
    k(f"s_mul_i32 s28, s{S_W}, {16*3840}")
    k("s_add_u32 s28, s28, s47")
    for j in range(4):
        k(f"v_xor_b32 v11, {8*(j>>1)}, v9")
        k("v_lshl_add_u32 v11, v11, 4, v8")
        k(f"s_add_u32 s29, s28, {j*(4*3840-1024)}")
        k(f"v_add_u32 v{36+j}, s29, v11")
    k(f"s_lshl_b32 s30, s{S_W}, 12")
    rots = eval(os.environ.get("ROTS", "[0, 5, 3, 8, 5, 0, 8, 3]"))
    k(f"s_mov_b32 s38, {sum(r << (4*i) for i, r in enumerate(rots)):#x}")
    k("s_and_b32 s28, s2, 7")
    k("s_lshl_b32 s28, s28, 2")
    k("s_lshr_b32 s38, s38, s28")
    k("s_and_b32 s38, s38, 15")
    rb, rs, rm = eval(os.environ.get("ROT2", "(1, 3, 1)"))
    if rb:
        k(f"s_bfe_u32 s28, s2, {(rb << 16) | rs:#x}")
        k(f"s_mul_i32 s28, s28, {rm}")
        k("s_add_u32 s38, s38, s28")
        k("s_sub_u32 s28, s38, 10")
        k("s_cmp_ge_u32 s38, 10")
        k("s_cselect_b32 s38, s28, s38")
    def raw_issue(st):
        k(f"s_add_u32 m0, s30, {(st%4)*32768 + 16384}")
        k(f"s_mul_i32 s35, s38, {64*3840}")
        for j in range(4):
            k(f"buffer_load_dwordx4 v{36+j}, s[72:75], s35 offen offset:{1024*j} lds")
        k(f"s_add_u32 m0, s30, {(st%4)*32768}")
        k("s_lshl_b32 s35, s38, 7")
        for j in range(4):
            k(f"buffer_load_dwordx4 v{32+j}, s[68:71], s35 offen offset:{1024*j} lds")
        k("s_add_u32 s38, s38, 1")
        k("s_cmp_eq_u32 s38, 10")
        k("s_cselect_b32 s38, 0, s38")
    raw_issue(0)
    raw_issue(1)
    issued = 2
    for st in range(10):
        k(f"s_waitcnt vmcnt({8*(issued-1-st)})")
        k("s_barrier")
        hi = 4 if st == 0 else min(10, st + 4)
        while issued < hi:
            raw_issue(issued)
            issued += 1
    k("s_barrier")
    k("s_branch L_l_attn")
    k.label("L_l_after_attn")
    t = Trk()
    for i in range(WOPRE):
        l_issue(PH["wo"], "w", i, t)
    k("s_barrier")
    for (nm, nx) in (("wo", "gu"), ("gu", "down"), ("down", "qkv")):
        t = l_gemm(PH[nm], PH[nx], t)
        if nm == "down":
            k(f"s_mov_b32 s{S_LAY}, {LSTR:#x}")
            k(f"s_add_u32 s{S_TS}, s{S_TS}, 320")
        l_setup_x(PH[nx])
        k("s_barrier")
        k("s_barrier")
    l_gemm(PH["qkv"], None, t)
    k("s_branch L_l_attn")
    k.label("L_l_done")
    k("s_waitcnt vmcnt(0)")
    k("s_endpgm")

    k.label("L_comp")
    k("v_and_b32 v7, 15, v1")
    k("v_lshrrev_b32 v8, 4, v1")
    k("v_lshlrev_b32 v2, 7, v1")

    def small_addr():
        k(f"s_lshl_b32 s28, s{S_RS}, 2")
        k(f"s_add_u32 s28, s28, s{S_W}")
        k("s_mul_i32 s29, s28, 20480")
        k(f"s_lshl_b32 s30, s{S_CS}, 11")
        k("s_add_u32 s30, s30, s29")
        k(f"s_lshl_b32 s31, s{S_CS}, 9")
        k("s_add_u32 s31, s31, s29")
        k("s_add_u32 s31, s31, 16384")
        k("v_lshrrev_b32 v9, 1, v8")
        k("v_lshlrev_b32 v9, 8, v9")
        k("v_lshl_add_u32 v9, v7, 4, v9")
    def res_load():
        k("v_mul_u32_u24 v9, 1280, v7")
        k("v_lshl_add_u32 v9, v8, 3, v9")
        k(f"s_lshl_b32 s28, s{S_RS}, 2")
        k(f"s_add_u32 s28, s28, s{S_W}")
        k(f"s_mul_i32 s28, s28, {16*1280}")
        k(f"s_mul_i32 s29, s{S_CS}, 160")
        k("s_add_u32 s28, s28, s29")
        for j in range(5):
            k(f"buffer_load_dwordx2 {vr(RES+2*j,2)}, v9, s[68:71], s28 offen offset:{32*j}")

    SSIG, SSO, SPO = 54, 53, 94
    def seam_pre(seam, idx_setup):
        idx_setup()
        k("s_lshl_b32 s28, s28, 9")
        k(f"s_add_u32 s{SSO}, s{S_SEAM}, {CNT + 4*seam:#x}")
        k(f"s_add_u32 s{SPO}, s28, s{SSO}")
    def seam_post(both_roles=False, filler=None):
        lab, l1, lp = k.newlabel(), k.newlabel(), k.newlabel()
        if both_roles:
            k(f"s_cmp_lg_u32 s{S_ROLE}, 0")
            k(f"s_cbranch_scc1 {lab}")
        k(f"s_cmp_lg_u32 s{S_W}, 0")
        k(f"s_cbranch_scc1 {l1}")
        k(f"s_mov_b64 exec, s[{SSIG}:{SSIG+1}]")
        k(f"buffer_atomic_add v15, v12, s[8:11], s{SSO} offen sc1")
        k("s_mov_b64 exec, -1")
        k.label(l1)
        if filler:
            filler()
        k(f"s_cmp_lg_u32 s{S_W}, 1")
        k(f"s_cbranch_scc1 {lab}")
        k("s_mov_b32 s95, 0x40000")
        k(f"s_add_u32 s66, s{SPO}, 128")
        k(f"s_add_u32 s67, s{SPO}, 256")
        k.label(lp)
        k(f"s_load_dword s63, s[4:5], s{SPO} glc")
        k("s_load_dword s64, s[4:5], s66 glc")
        k("s_load_dword s65, s[4:5], s67 glc")
        k("s_sub_u32 s95, s95, 1")
        k(f"s_cbranch_scc1 {lp}_x")
        k("s_waitcnt lgkmcnt(0)")
        k("s_xor_b32 s63, s63, s60")
        k("s_xor_b32 s64, s64, s61")
        k("s_xor_b32 s65, s65, s62")
        k("s_or_b32 s63, s63, s64")
        k("s_or_b32 s63, s63, s65")
        k(f"s_cbranch_scc1 {lp}")
        k.label(lp + "_x")
        k("s_waitcnt lgkmcnt(0)")
        k.label(lab)
    def lseam_pre(seam, sig_group, sig_member, poll_group):
        k(f"s_lshr_b32 s28, s{S_LAY}, {25 - 15}")
        k(f"s_add_u32 s28, s28, {FL + seam*16*512:#x}")
        sig_group()
        k("s_lshl_b32 s29, s29, 9")
        k(f"s_add_u32 s{SSO}, s28, s29")
        sig_member()
        k("s_lshl_b32 s29, s29, 2")
        k(f"s_add_u32 s{SSO}, s{SSO}, s29")
        poll_group()
        k("s_lshl_b32 s29, s29, 9")
        k(f"s_add_u32 s{SPO}, s28, s29")
        k("v_lshlrev_b32 v13, 2, v1")
    def lseam_post(nprod, filler=None):
        lab, l1, l2, lp = k.newlabel(), k.newlabel(), k.newlabel(), k.newlabel()
        k(f"s_cmp_lg_u32 s{S_W}, 0")
        k(f"s_cbranch_scc1 {l1}")
        k("s_mov_b64 exec, 1")
        k(f"s_cmp_lg_u32 s{S_FAST}, 0")
        k(f"s_cbranch_scc1 {l2}")
        k("buffer_wbl2 sc1")
        k("s_waitcnt vmcnt(0)")
        k(f"buffer_store_dword v15, off, s[8:11], s{SSO} sc0 sc1")
        k("s_mov_b64 exec, -1")
        k(f"s_branch {l1}")
        k.label(l2)
        k(f"buffer_store_dword v15, off, s[8:11], s{SSO}")
        k("s_mov_b64 exec, -1")
        k.label(l1)
        if filler:
            filler()
        k(f"s_cmp_lg_u32 s{S_W}, 1")
        k(f"s_cbranch_scc1 {lab}")
        k("s_mov_b32 s95, 0x40000")
        k(f"s_mov_b64 exec, {(1 << nprod) - 1:#x}")
        k.label(lp)
        k(f"buffer_load_dword v14, v13, s[8:11], s{SPO} offen sc1")
        k("s_waitcnt vmcnt(0)")
        k("v_cmp_ne_u32 vcc, 1, v14")
        k("s_sub_u32 s95, s95, 1")
        k(f"s_cbranch_vccz {lp}_x")
        k(f"s_cbranch_scc0 {lp}")
        k.label(lp + "_x")
        k("s_mov_b64 exec, -1")
        k.label(lab)
    g_qb = lambda: k(f"s_mov_b32 s29, s{S_QB}")
    g_hd = lambda: k(f"s_mov_b32 s29, s{S_HD}")
    g_rb = lambda: k(f"s_mov_b32 s29, s{S_RB}")
    g_cb = lambda: k(f"s_mov_b32 s29, s{S_CB}")
    g_rs2 = lambda: k(f"s_lshr_b32 s29, s{S_RS}, 1")
    def g_sm():
        k(f"s_and_b32 s29, s{S_RS}, 1")
        k("s_lshl_b32 s29, s29, 3")
        k(f"s_add_u32 s29, s29, s{S_CS}")
    def targets(t):
        for i in range(3):
            k(f"s_mov_b32 s{60+i}, {t[i] if i < len(t) else 0}")

    ACC = 32
    def c_layout(p):
        FB = ACC + p.MX * p.NB * 4
        if p.name == "gu":
            XBUF = [FB, FB + 8]; WBUF = [FB + 16, FB + 44]; top = FB + 72
        elif p.name == "qkv":
            XBUF = [FB, FB + 8]; WBUF = [FB + 16, FB + 48]; top = FB + 80
        else:
            XBUF = [FB, FB + 8]; WBUF = [FB + 16, FB + 56]; top = FB + 96
        return FB, XBUF, WBUF, top
    def acc(p, m, j):
        return ACC + (m * p.NB + j) * 4
    def c_units(p):
        FB, XBUF, WBUF, top = c_layout(p)
        U = []
        if p.name == "gu":
            for u in range(4):
                st, h = u >> 1, u & 1
                rd = []
                if h == 0:
                    rd += [(XBUF[st] + 4 * m, 5, st * p.STEP + 1024 * m) for m in range(2)]
                rd += [(WBUF[h] + 4 * j, 6, st * p.STEP + (8 + 7 * h + j) * 1024) for j in range(7)]
                mm = [(acc(p, m, 7 * h + j), WBUF[h] + 4 * j, XBUF[st] + 4 * m) for j in range(7) for m in range(2)]
                U.append((rd, mm))
        elif p.name == "qkv":
            for st in range(2):
                rd = [(XBUF[st] + 4 * m, 5, st * p.STEP + 1024 * m) for m in range(2)]
                rd += [(WBUF[st] + 4 * j, 6, st * p.STEP + (8 + j) * 1024) for j in range(8)]
                mm = [(acc(p, m, j), WBUF[st] + 4 * j, XBUF[st] + 4 * m) for j in range(8) for m in range(2)]
                U.append((rd, mm))
        else:
            for u in range(2):
                rd, mm = [], []
                for s_ in range(2):
                    st = 2 * u + s_
                    rd += [(XBUF[u] + 4 * s_, 5, st * p.STEP)]
                    rd += [(WBUF[u] + 20 * s_ + 4 * j, 6, st * p.STEP + (4 + j) * 1024) for j in range(5)]
                    mm += [(acc(p, 0, j), WBUF[u] + 20 * s_ + 4 * j, XBUF[u] + 4 * s_) for j in range(5)]
                U.append((rd, mm))
        return U
    AXR, AWR = [4, 5, 6, 30], [27, 28, 29, 31]
    def c_addr(p):
        k(f"s_mul_i32 s28, s{S_W}, {p.MX*1024}")
        for i in range(p.R):
            k(f"v_add_u32 v{AWR[i]}, {p.SL[i]:#x}, v3")
            k(f"v_add_u32 v{AXR[i]}, s28, v{AWR[i]}")
    def c_mainloop(p, swap, tag, tail_extra=(), after_b0=None):
        U = c_units(p)
        NUS = len(U)
        def rdi(r, slot, sp=False):
            if sp and r[1] == 5:
                return f"ds_read2st64_b64 {vr(r[0],4)}, v9 offset0:{r[2]//512} offset1:{r[2]//512+1}"
            return f"ds_read_b128 {vr(r[0],4)}, v{(AXR if r[1] == 5 else AWR)[slot]} offset:{r[2]}"
        def special(slot):
            if p.name != "wo":
                return False
            k("v_lshlrev_b32 v9, 3, v1")
            k(f"v_sub_u32 v9, v{AXR[slot]}, v9")
            return True
        extra = list(tail_extra)
        seen = set()
        def run(mm, rd, nex=0, mid=(), z=False):
            rd = list(rd)
            mid = list(mid)
            per = 1 if len(rd) <= len(mm) else 2
            for i, (a, w, x) in enumerate(mm):
                a_, b_ = (w, x) if swap else (x, w)
                c_ = "0" if z and a not in seen else vr(a, 4)
                seen.add(a)
                k(f"{MF} {vr(a,4)}, {vr(a_,4)}, {vr(b_,4)}, {c_}")
                if not rd and mid:
                    k(mid.pop(0))
                for _ in range(per):
                    if rd:
                        k(rd.pop(0))
                for _ in range(nex):
                    if extra:
                        k(extra.pop(0))
            for r in rd + mid:
                k(r)
        R = p.R
        def stage(slot, mid=(), z=False, nex=0, entry=None):
            for u in range(NUS):
                last = u == NUS - 1
                if entry and u == entry[0]:
                    k.label(entry[1])
                k("s_waitcnt lgkmcnt(0)")
                if last:
                    k("s_barrier")
                ns = (slot + 1) % R if last else slot
                run(U[u][1], [rdi(r, ns) for r in U[(u + 1) % NUS][0]], nex, mid if last else (), z)
        c_addr(p)
        nfull = p.nst - 1
        sp = special(0)
        npeel = 1 if p.big else 0
        u0 = NUS * p.skip // p.SPS
        k(f"s_mov_b32 s36, {(nfull - npeel + R - 1) // R}")
        k("s_barrier")
        ts(tag + 1)
        for r in U[u0][0]:
            k(rdi(r, 0, sp))
        if after_b0:
            after_b0()
        if p.name == "wo":
            for st in range(nfull):
                stage(st % R, nex=1 if st else 0)
        else:
            L = k.newlabel()
            if npeel:
                stage(0, (), True)
            p0 = (R - (nfull - npeel) % R) % R
            if p0 or u0:
                k(f"s_branch {L}_mid")
            k(".p2align 4")
            k.label(L)
            for pos in range(R):
                stage((npeel + pos - p0) % R, ["s_sub_u32 s36, s36, 1", "s_cmp_lg_u32 s36, 0"] if pos == R - 1 else (),
                      entry=(u0, L + "_mid") if pos == p0 and (p0 or u0) else None)
            k(f"s_cbranch_scc1 {L}")
        sl = nfull % R
        nt = NUS
        nm_ = sum(len(U[u][1]) for u in range(nt))
        nex = (len(extra) + nm_ - 1) // nm_
        for u in range(nt):
            sp = special(sl) if u < nt - 1 else False
            k("s_waitcnt lgkmcnt(0)")
            run(U[u][1], [rdi(r, sl, sp) for r in U[u + 1][0]] if u < nt - 1 else [], nex)
        assert not extra
        k.nop(3)
        ts(tag + 2)

    EXT = 216
    STR = 248
    def ext_reg(p, j):
        return EXT + 2 * j
    def c_ext_loads(p):
        npl = 2
        k(f"s_mul_i32 s28, s{S_CB}, {p.NB*p.WS}")
        k(f"s_add_u32 s28, s28, {p.wsrc + p.nsteps*1024:#x}")
        c, msk = DUMMY[p.name]
        k(f"s_cmp_eq_u32 s{S_CB}, {c}")
        k(f"s_cselect_b32 s30, 0, {p.WS}")
        k(f"v_lshlrev_b32 v9, {3 if npl == 2 else 4}, v1")
        for j in range(p.NB):
            if (msk >> j) & 1:
                k(f"s_mul_i32 s29, s30, {j}")
                k("s_add_u32 s29, s29, s28")
            else:
                k(f"s_add_u32 s29, s28, {j*p.WS}")
            k(f"buffer_load_dwordx{npl} {vr(ext_reg(p,j),npl)}, v9, s[8:11], s29 offen")
    def c_ext_build(p, k=k):
        for j in range(p.NB):
            r = ext_reg(p, j)
            k(f"v_add_f32 v10, v{r}, v{r+1}")
            k("v_cvt_pk_bf16_f32 v11, v10, v10")
            k("v_and_b32 v11, 0xffff0000, v11")
            k("v_sub_f32 v11, v10, v11")
            k(f"v_cvt_pk_bf16_f32 v{r}, v10, v11")
            k(f"v_cvt_pk_bf16_f32 v{r+1}, v10, v11")
    def c_zero_acc(p):
        for i in range(0, p.MX * p.NB * 4, 2):
            k(f"v_mov_b64 {vr(ACC+i,2)}, 0")
    def c_stats_loads(stats):
        T = STR
        k("v_lshlrev_b32 v9, 15, v8")
        k("v_lshl_add_u32 v9, v7, 3, v9")
        k(f"s_lshl_b32 s28, s{S_RB}, 2")
        k(f"s_add_u32 s28, s28, s{S_W}")
        k("s_lshl_b32 s28, s28, 8")
        k(f"s_add_u32 s28, s28, {stats:#x}")
        k("s_add_u32 s29, s28, 16384")
        for m in range(2):
            k(f"buffer_load_dwordx2 {vr(T+4*m,2)}, v9, s[8:11], s28 offen offset:{128*m} {LSC}")
            k(f"buffer_load_dwordx2 {vr(T+4*m+2,2)}, v9, s[8:11], s29 offen offset:{128*m} {LSC}")
    def c_stats_valu(wait=True):
        T = STR
        L = ["s_waitcnt vmcnt(0)"] if wait else []
        add = [f"v_add_f32 v{T+4*m+i}, v{T+4*m+i}, v{T+4*m+2+i}" for m in range(2) for i in range(2)]
        L += add
        for sw in ("v_permlane32_swap_b32", "v_permlane16_swap_b32"):
            L += [f"v_mov_b32 v{T+4*m+2+i}, v{T+4*m+i}" for m in range(2) for i in range(2)]
            L += ["s_nop 1"]
            L += [f"{sw} v{T+4*m+i}, v{T+4*m+2+i}" for m in range(2) for i in range(2)]
            L += ["s_nop 0"]
            L += add
        for m in range(2):
            t = T + 4 * m
            L += [f"v_mul_f32 v{t}, {f2u(-1.0/640):#x}, v{t}",
                  f"v_mul_f32 v{t+1}, {f2u(1.0/640):#x}, v{t+1}",
                  f"v_cvt_pk_bf16_f32 v{t+2}, v{t}, v{t}",
                  f"v_fma_f32 v{t+1}, -v{t}, v{t}, v{t+1}",
                  f"v_and_b32 v{t+3}, 0xffff0000, v{t+2}",
                  f"v_max_f32 v{t+1}, 0, v{t+1}",
                  f"v_sub_f32 v{t+3}, v{t}, v{t+3}",
                  f"v_add_f32 v{t+1}, {f2u(1e-5):#x}, v{t+1}",
                  f"v_cvt_pk_bf16_f32 v{t+3}, v{t+3}, v{t+3}",
                  f"v_rsq_f32 v{10+m}, v{t+1}"]
        return L
    def ext_mfma(p, j, swap):
        for m in range(2):
            x, r = STR + 4 * m + 2, ext_reg(p, j)
            a_, b_ = (r, x) if swap else (x, r)
            k(f"v_mfma_f32_16x16x16_bf16 {vr(acc(p,m,j),4)}, {vr(a_,2)}, {vr(b_,2)}, {vr(acc(p,m,j),4)}")

    def c_res_to_acc():
        for i in range(10):
            k(f"v_lshlrev_b32 v{ACC+2*i}, 16, v{RES+i}")
            k(f"v_and_b32 v{ACC+2*i+1}, 0xffff0000, v{RES+i}")

    def c_small_pre(xdst, sdst, layadd):
        small_addr()
        k("v_mov_b32 v14, v9")
        k(f"s_mov_b32 s29, {xdst:#x}")
        k("s_add_u32 s30, s30, s29")
        k("s_add_u32 s31, s31, s29")
        k("v_lshlrev_b32 v26, 3, v7")
        k(f"s_lshl_b32 s29, s{S_CS}, 14")
        k("s_lshl_b32 s28, s28, 7")
        k("s_add_u32 s29, s29, s28")
        k(f"s_add_u32 s29, s29, {sdst:#x}")
    def c_small_touch():
        if not TOUCH & 4:
            return
        k("buffer_load_dwordx4 v[200:203], v3, s[8:11], s30 offen sc1")
        k("buffer_load_dwordx4 v[200:203], v3, s[8:11], s30 offen offset:1024 sc1")
        k("buffer_load_dwordx4 v[200:203], v14, s[8:11], s31 offen sc1")
        k("buffer_load_dwordx2 v[200:201], v26, s[8:11], s29 offen sc1")
    def c_small_epilogue():
        T = 56
        for i in range(4):
            k(f"v_cvt_pk_bf16_f32 v{RES+i}, v{ACC+2*i}, v{ACC+2*i+1}")
        k(f"buffer_store_dwordx4 {vr(RES,4)}, v3, s[8:11], s30 offen {XSC}")
        for i in (8, 9):
            k(f"v_cvt_pk_bf16_f32 v{RES+i}, v{ACC+2*i}, v{ACC+2*i+1}")
            k(f"v_cvt_pk_bf16_f32 v{T+i-8}, v{ACC+2*i}, v{ACC+2*i+1}")
            k(f"v_cvt_pk_bf16_f32 v{T+i-6}, v{ACC+2*i}, v{ACC+2*i+1}")
        for i in range(4, 8):
            k(f"v_cvt_pk_bf16_f32 v{RES+i}, v{ACC+2*i}, v{ACC+2*i+1}")
        k(f"buffer_store_dwordx4 {vr(RES+4,4)}, v3, s[8:11], s30 offen offset:1024 {XSC}")
        k(f"v_permlane16_swap_b32 v{T}, v{T+2}")
        k(f"v_permlane16_swap_b32 v{T+1}, v{T+3}")
        k("s_mov_b32 exec_lo, 0xffff")
        k("s_mov_b32 exec_hi, 0xffff")
        k(f"buffer_store_dwordx4 {vr(T,4)}, v14, s[8:11], s31 offen {XSC}")
        k("s_mov_b64 exec, -1")
        k(f"v_pk_add_f32 v[10:11], {vr(ACC,2)}, {vr(ACC+2,2)}")
        k(f"v_pk_mul_f32 v[12:13], {vr(ACC,2)}, {vr(ACC,2)}")
        for i in range(2, 20, 2):
            if i >= 4:
                k(f"v_pk_add_f32 v[10:11], v[10:11], {vr(ACC+i,2)}")
            k(f"v_pk_fma_f32 v[12:13], {vr(ACC+i,2)}, {vr(ACC+i,2)}, v[12:13]")
        k("v_add_f32 v10, v10, v11")
        k("v_add_f32 v11, v12, v13")
        for sw in ("v_permlane32_swap_b32", "v_permlane16_swap_b32"):
            k("v_mov_b32 v12, v10")
            k("v_mov_b32 v13, v11")
            k("s_nop 1")
            k(f"{sw} v10, v12")
            k(f"{sw} v11, v13")
            k("s_nop 0")
            k("v_pk_add_f32 v[10:11], v[10:11], v[12:13]")
        k("s_mov_b64 exec, 0xffff")
        k(f"buffer_store_dwordx2 v[10:11], v26, s[8:11], s29 offen {XSC}")
        k("s_mov_b64 exec, -1")
        k("s_nop 1")

    def sig_rows_big():
        k(f"s_lshr_b32 s28, s{S_RS}, 1")
        k("s_lshl_b32 s28, s28, 13")
        k("v_lshl_add_u32 v12, v1, 9, s28")
        k(f"s_mov_b64 s[{SSIG}:{SSIG+1}], 0xffff")
    def idx_big():
        k(f"s_lshl_b32 s28, s{S_RB}, 4")
        k(f"s_add_u32 s28, s28, s{S_CB}")
    def idx_small():
        k(f"s_lshl_b32 s28, s{S_RS}, 3")
        k(f"s_add_u32 s28, s28, s{S_CS}")

    def c_raw(swap, tail, join):
        p = PH["qkv"]
        FB, XBUF, WBUF, top = c_layout(p)
        AW, AXx, AC = 192, 200, 202
        CB_, ONE, CS, SX, GR = [232, 240], 204, 208, 216, 224
        k("v_and_b32 v4, 3, v1")
        k("v_bfe_u32 v5, v1, 2, 2")
        k("v_lshlrev_b32 v6, 1, v5")
        k("v_and_b32 v27, 1, v8")
        k("v_lshl_add_u32 v6, v27, 3, v6")
        k("v_lshl_add_u32 v5, v8, 3, v5")
        k("v_lshlrev_b32 v5, 8, v5")
        k("v_add_u32 v5, 0x4000, v5")
        if swap:
            k("v_lshrrev_b32 v27, 1, v4")
            k("v_mul_u32_u24 v27, 40, v27")
            k("v_and_b32 v28, 1, v4")
            k("v_lshl_add_u32 v27, v28, 4, v27")
            k("v_mul_u32_u24 v28, 40, v4")
            k("v_and_b32 v29, 1, v4")
            k("v_mul_u32_u24 v29, 40, v29")
            src = [(27, 80 * (b >> 1) + 8 * (b & 1)) for b in range(6)] + [(28, 32), (29, 192)]
        else:
            k("v_lshlrev_b32 v27, 3, v4")
            src = [(27, 32 * b) for b in range(8)]
        for b, (rg, off) in enumerate(src):
            k(f"v_add_u32 v30, {off}, v{rg}")
            k("v_lshrrev_b32 v31, 4, v30")
            k("v_xor_b32 v31, v31, v6")
            k("v_and_b32 v30, 8, v30")
            k("v_lshl_add_u32 v30, v31, 4, v30")
            k(f"v_add_u32 v{AW+b}, v30, v5")
        for i in range(2):
            k(f"v_mov_b32 v{AC+i}, v{AW+i}")
            for w_ in range(1, 4):
                k(f"s_cmp_eq_u32 s{S_W}, {w_}")
                k("s_cselect_b64 vcc, -1, 0")
                k(f"v_cndmask_b32 v{AC+i}, v{AC+i}, v{AW+2*w_+i}, vcc")
        k("v_lshrrev_b32 v4, 1, v7")
        k("v_xor_b32 v4, v4, v8")
        k("v_lshlrev_b32 v4, 4, v4")
        k("v_lshl_add_u32 v4, v7, 7, v4")
        k(f"s_lshl_b32 s28, s{S_W}, 12")
        k(f"v_add_u32 v{AXx}, s28, v4")
        k(f"v_xor_b32 v{AXx+1}, 64, v{AXx}")
        for i in range(4):
            k(f"v_mov_b32 v{ONE+i}, 0x3f803f80")
        for i in list(range(ACC, ACC + 64, 2)) + list(range(CS, CS + 24, 2)):
            k(f"v_mov_b64 {vr(i,2)}, 0")
        def reads(u):
            so, st = (u >> 1) * 32768, u & 1
            r = [f"ds_read_b128 {vr(XBUF[st]+4*m,4)}, v{AXx+st} offset:{so + 2048*m}" for m in range(2)]
            for b in range(8):
                for h in range(2):
                    r.append(f"ds_read_b64_tr_b16 {vr(WBUF[st]+4*b+2*h,2)}, v{AW+b} offset:{so + 8192*st + 1024*h}")
            for i in range(2):
                for h in range(2):
                    r.append(f"ds_read_b64_tr_b16 {vr(CB_[st]+4*i+2*h,2)}, v{AC+i} offset:{so + 8192*st + 1024*h}")
            return r
        def mfmas(st):
            mm = []
            for j in range(8):
                for m in range(2):
                    w_, x_ = WBUF[st] + 4 * j, XBUF[st] + 4 * m
                    a_, b_ = (w_, x_) if swap else (x_, w_)
                    mm.append((acc(p, m, j), a_, b_))
            for m in range(2):
                mm.append((SX + 4 * m, ONE, XBUF[st] + 4 * m))
                mm.append((GR + 4 * m, XBUF[st] + 4 * m, XBUF[st] + 4 * m))
                mm.append((CS + 4 * m, ONE, CB_[st] + 4 * m))
            return [f"{MF} {vr(a,4)}, {vr(x,4)}, {vr(y,4)}, {vr(a,4)}" for a, x, y in mm]
        tog = [f"v_xor_b32 v{r}, 0x10000, v{r}" for r in range(AW, AW + 12)]
        def unit(u, nxt, pre=()):
            for x in pre:
                k(x)
            rd = reads(nxt) if nxt is not None else []
            if RAWW:
                k("s_waitcnt lgkmcnt(8)")
                late = u & 1 and nxt is not None
                n = 0
                for i, m_ in enumerate(mfmas(u & 1)):
                    if late and i == 4:
                        k("s_waitcnt lgkmcnt(0)")
                        k("s_barrier")
                    if not late and i == 12:
                        k(f"s_waitcnt lgkmcnt({n})")
                    k(m_)
                    if late and i < 4:
                        continue
                    for _ in range(2 if late and i < 8 else 1):
                        if rd:
                            k(rd.pop(0))
                            n += 1
                assert not rd
                return
            k("s_waitcnt lgkmcnt(0)")
            if u & 1 and nxt is not None:
                k("s_barrier")
            for m_ in mfmas(u & 1):
                k(m_)
                for _ in range(2):
                    if rd:
                        k(rd.pop(0))
        k("s_mov_b32 s36, 4")
        k("s_barrier")
        ts(1)
        for x in reads(0):
            k(x)
        for _ in range(NTB):
            touch()
        L = k.newlabel()
        k.label(L)
        touch()
        unit(0, 1)
        unit(1, 2)
        if TGAP:
            touch()
        unit(2, 3)
        unit(3, 0, tog + ["s_sub_u32 s36, s36, 1", "s_cmp_lg_u32 s36, 0"])
        k(f"s_cbranch_scc1 {L}")
        unit(0, 1)
        unit(1, 2)
        unit(2, 3)
        unit(3, None)
        k(f"s_lshl_b32 s28, s{S_W}, 10")
        k(f"s_add_u32 s28, s28, {140*1024}")
        k("v_lshl_add_u32 v4, v1, 3, s28")
        k(f"v_mov_b32 v5, {140*1024:#x}")
        k("v_lshl_add_u32 v5, v1, 3, v5")
        k("v_lshrrev_b32 v6, 2, v7")
        k("v_and_b32 v27, 3, v7")
        k("v_cmp_eq_u32 s[56:57], v6, v8")
        k("v_cmp_eq_u32 s[58:59], 0, v8")
        k("s_nop 1")
        for i in range(2):
            c = CS + 4 * i
            k(f"v_cndmask_b32 v{c}, 0, v{c}, s[58:59]")
            k(f"v_cvt_pk_bf16_f32 v{c+1}, v{c}, v{c}")
            k(f"v_and_b32 v{c+1}, 0xffff0000, v{c+1}")
            k(f"v_sub_f32 v{c+1}, v{c}, v{c+1}")
            k(f"v_cvt_pk_bf16_f32 v{c+2}, v{c}, v{c+1}")
            k(f"v_cvt_pk_bf16_f32 v{c+3}, v{c}, v{c+1}")
            k(f"ds_write_b64 v4, {vr(c+2,2)} offset:{512*i}")
        for m in range(2):
            t, g_ = STR + 4 * m, GR + 4 * m
            for i in range(1, 4):
                k(f"v_cmp_eq_u32 vcc, {i}, v27")
                k("s_nop 1")
                k(f"v_cndmask_b32 v{g_}, v{g_}, v{g_+i}, vcc")
            k(f"v_cndmask_b32 v{t}, 0, v{SX+4*m}, s[58:59]")
            k(f"v_cndmask_b32 v{t+1}, 0, v{g_}, s[56:57]")
            k(f"v_mov_b64 {vr(t+2,2)}, 0")
        k("s_waitcnt lgkmcnt(0)")
        k("s_barrier")
        for j in range(8):
            k(f"ds_read_b64 {vr(ext_reg(p,j),2)}, v5 offset:{512*j}")
        lab = k.newlabel()
        k("v_lshlrev_b32 v198, 5, v1")
        k(f"s_cmp_lg_u32 s{S_W}, 3")
        k(f"s_cbranch_scc1 {lab}")
        k("s_mov_b64 exec, 0xff")
        k("buffer_load_dword v199, v198, s[76:79], 0 offen sc1")
        k("s_mov_b64 exec, -1")
        k.label(lab)
        for x in tail:
            k(x)
        k("s_waitcnt lgkmcnt(0)")
        ts(2)
        k(f"s_branch {join}")

    def scale_pack(a, o, r):
        rr = vr(r & ~1, 2)
        k(f"v_pk_mul_f32 {vr(a,2)}, {vr(a,2)}, {rr} op_sel:[0,{r&1}] op_sel_hi:[1,{r&1}]")
        k(f"v_pk_mul_f32 {vr(a+2,2)}, {vr(a+2,2)}, {rr} op_sel:[0,{r&1}] op_sel_hi:[1,{r&1}]")
        k(f"v_cvt_pk_bf16_f32 v{o}, v{a}, v{a+1}")
        k(f"v_cvt_pk_bf16_f32 v{o+1}, v{a+2}, v{a+3}")
    p = PH["qkv"]
    FB, XBUF, WBUF, top_qkv = c_layout(p)
    def touch():
        if NT0 >= 5:
            return
        lab = k.newlabel()
        k("s_cmp_eq_u32 s39, 0")
        k(f"s_cbranch_scc1 {lab}")
        k("s_mov_b64 exec, s[84:85]")
        k("buffer_load_dword v16, v17, s[80:83], s37 offen")
        k("s_mov_b64 exec, -1")
        k("s_add_u32 s37, s37, s38")
        k("s_sub_u32 s39, s39, 1")
        k.label(lab)
    if NT0 < 5:
        k("s_lshr_b32 s28, s2, 3")
        k("v_and_b32 v9, 31, v1")
        k("v_mul_u32_u24 v9, 1280, v9")
        k("v_lshrrev_b32 v10, 5, v1")
        k("v_lshl_add_u32 v9, v10, 7, v9")
        k("s_and_b32 s29, s2, 1")
        k("s_lshl_b32 s29, s29, 5")
        k("s_add_u32 s29, s29, s28")
        k(f"s_mul_i32 s29, s29, {32*1280}")
        k("v_mul_u32_u24 v10, 7282, v1")
        k("v_lshrrev_b32 v10, 16, v10")
        k("v_mul_u32_u24 v11, 9, v10")
        k("v_sub_u32 v11, v1, v11")
        k("v_mul_u32_u24 v10, 3840, v10")
        k("v_lshl_add_u32 v10, v11, 7, v10")
        k(f"s_lshr_b32 s30, s{S_CB}, 2")
        k("s_mul_i32 s30, s30, 896")
        k(f"s_mul_i32 s28, s28, {4*3840}")
        k("s_add_u32 s30, s30, s28")
        k(f"s_mov_b32 s31, {128*3840}")
        k(f"s_cmp_eq_u32 s{S_W}, 0")
        k("s_cselect_b64 s[80:81], s[68:69], s[72:73]")
        k("s_cselect_b32 s82, s70, s74")
        k("s_mov_b32 s83, 0x00020000")
        k("s_cselect_b32 s37, s29, s30")
        k("s_cselect_b32 s38, 256, s31")
        k("s_mov_b32 s84, -1")
        k("s_cselect_b32 s85, -1, 15")
        k("s_cselect_b64 vcc, -1, 0")
        k("v_cndmask_b32 v17, v10, v9, vcc")
        k(f"s_mul_i32 s28, s38, {NT0}")
        k("s_add_u32 s37, s37, s28")
        k(f"s_cmp_lt_u32 s{S_W}, 2")
        k(f"s_cselect_b32 s39, {5 - NT0}, 0")
    for _ in range(NT1):
        touch()
    k(f"s_cmp_lg_u32 s{S_W}, 3")
    k("s_cbranch_scc1 L_c_layer2")
    k("v_mov_b64 v[10:11], 0")
    k("v_lshlrev_b32 v9, 3, v1")
    k("s_lshl_b32 s28, s2, 9")
    k(f"s_add_u32 s28, s28, {CNT:#x}")
    k(f"buffer_store_dwordx2 v[10:11], v9, s[8:11], s28 offen {SC}")
    k("s_getreg_b32 s46, hwreg(HW_REG_XCC_ID)")
    k("s_and_b32 s46, s46, 7")
    k("s_lshl_b32 s28, s46, 5")
    k("v_mov_b32 v2, 1")
    k("s_waitcnt vmcnt(0)")
    k("s_mov_b64 exec, 1")
    k("buffer_atomic_add v2, off, s[76:79], s28 sc0 sc1")
    k("s_mov_b64 exec, -1")
    k("s_branch L_c_layer2")
    k.label("L_c_layer")
    k("s_barrier")
    c_stats_loads(STA)
    k.label("L_c_layer2")
    ts(0)
    k(f"s_cmp_ge_u32 s{S_CB}, 11")
    k("s_cbranch_scc1 L_c_v")
    k("v_and_b32 v9, 7, v7")
    k("v_lshrrev_b32 v12, 3, v7")
    k("v_lshl_add_u32 v9, v12, 4, v9")
    k("v_lshrrev_b32 v12, 1, v8")
    k(f"v_mul_u32_u24 v12, {USTR}, v12")
    k("v_and_b32 v13, 1, v8")
    k("v_lshl_add_u32 v12, v13, 9, v12")
    k("v_lshl_add_u32 v12, v9, 4, v12")
    k(f"v_mul_u32_u24 v13, {USTR}, v8")
    k("v_lshl_add_u32 v13, v7, 4, v13")
    k(f"s_mul_i32 s28, s{S_CB}, {6*USTR}")
    k(f"s_mul_i32 s29, s{S_RB}, 10240")
    k("s_add_u32 s28, s28, s29")
    k(f"s_add_u32 s28, s28, s{S_LAY}")
    k(f"s_add_u32 s28, s28, {QKVI:#x}")
    k(f"s_lshl_b32 s29, s{S_W}, 10")
    k("s_add_u32 s30, s28, s29")
    k(f"s_and_b32 s29, s{S_W}, 1")
    k("s_lshl_b32 s29, s29, 9")
    k("s_add_u32 s31, s28, s29")
    k(f"s_lshr_b32 s29, s{S_W}, 1")
    k("s_lshl_b32 s29, s29, 8")
    k("s_add_u32 s31, s31, s29")
    k("s_add_u32 s31, s31, 4096")
    k(f"s_add_u32 s29, s31, {4*USTR}")
    QKT = ["s_nop 0", f"v_mul_f32 v10, {f2u(SQRTC):#x}, v10", f"v_mul_f32 v11, {f2u(SQRTC):#x}, v11"]
    k(f"s_cmp_eq_u32 s{S_LAY}, 0")
    k("s_cbranch_scc1 L_raw_qk")
    c_mainloop(p, True, 0, c_stats_valu() + QKT)
    k.label("L_join_qk")
    for j in (0, 1, 2, 3, 6):
        ext_mfma(p, j, True)
    for b in range(3):
        if b == 2:
            for m in range(2):
                scale_pack(acc(p, m, 6), FB + 24 + 2 * m, 10 + m)
            k(f"buffer_store_dwordx4 {vr(FB+24,4)}, v13, s[8:11], s31 offen {SC}")
            k(f"s_cmp_eq_u32 s{S_CB}, 10")
            k("s_cbranch_scc1 L_c_qk_skip")
        for m in range(2):
            o = FB + 8 * b + 4 * m
            scale_pack(acc(p, m, 2 * b), o, 10 + m)
            scale_pack(acc(p, m, 2 * b + 1), o + 2, 10 + m)
            k(f"buffer_store_dwordx4 {vr(o,4)}, v12, s[8:11], s30 offen offset:{128*m} {SC}")
            if b == 0:
                for j in ((4, 5), (7,))[m]:
                    ext_mfma(p, j, True)
        k(f"s_add_u32 s30, s30, {2*USTR}")
    for m in range(2):
        scale_pack(acc(p, m, 7), FB + 28 + 2 * m, 10 + m)
    k("s_mov_b64 exec, 0xffffffff")
    k(f"buffer_store_dwordx4 {vr(FB+28,4)}, v13, s[8:11], s29 offen {SC}")
    k("s_mov_b64 exec, -1")
    k.label("L_c_qk_skip")
    k("v_lshrrev_b32 v9, 3, v1")
    k("v_and_b32 v10, 7, v1")
    k(f"s_mul_i32 s28, s{S_CB}, 6")
    k("v_add_u32 v14, s28, v9")
    k("v_and_b32 v12, 31, v14")
    k("v_lshl_add_u32 v12, v12, 3, v10")
    k("v_lshlrev_b32 v12, 9, v12")
    k(f"s_lshr_b32 s28, s{S_RB}, 1")
    k("v_cmp_eq_u32 s[30:31], s28, v10")
    k("v_cmp_le_u32 vcc, 32, v14")
    k("s_or_b64 s[30:31], s[30:31], vcc")
    k("v_cmp_gt_u32 vcc, 64, v14")
    k("s_and_b64 s[30:31], s[30:31], vcc")
    k("v_cmp_gt_u32 vcc, 6, v9")
    k(f"s_and_b64 s[{SSIG}:{SSIG+1}], s[30:31], vcc")
    k("s_branch L_c_attn")

    k.label("L_c_v")
    RSV = top_qkv
    VAD = RSV + 8
    k(f"s_mul_i32 s30, s{S_RB}, 10240")
    k(f"s_mul_i32 s29, s{S_W}, 1280")
    k("s_add_u32 s30, s30, s29")
    k(f"s_add_u32 s30, s30, s{S_LAY}")
    k(f"s_add_u32 s30, s30, {QKVI + 32*USTR + 5120:#x}")
    k(f"s_sub_u32 s29, s{S_CB}, 11")
    k("s_lshl_b32 s29, s29, 7")
    k("v_mul_u32_u24 v9, 320, v8")
    k("v_add_u32 v10, s29, v7")
    for j in range(8):
        k("v_mul_u32_u24 v12, 3277, v10")
        k("v_lshrrev_b32 v12, 16, v12")
        k(f"v_mul_u32_u24 v13, {USTR-320}, v12")
        k("v_lshl_add_u32 v13, v10, 4, v13")
        k(f"v_add_u32 v{VAD+j}, v13, v9")
        k("v_add_u32 v10, 16, v10")
    k(f"s_lshl_b32 s28, s{S_W}, 7")
    k(f"s_add_u32 s28, s28, {SCRATCH}")
    k("v_lshl_add_u32 v12, v7, 2, s28")
    k("v_lshl_add_u32 v13, v8, 4, s28")
    VT = ["s_nop 0", "ds_write_b32 v12, v10", "ds_write_b32 v12, v11 offset:64"]
    k(f"s_cmp_eq_u32 s{S_LAY}, 0")
    k("s_cbranch_scc1 L_raw_v")
    c_mainloop(p, False, 0, c_stats_valu() + VT)
    k.label("L_join_v")
    k("s_waitcnt lgkmcnt(0)")
    k(f"ds_read_b128 {vr(RSV,4)}, v13")
    k(f"ds_read_b128 {vr(RSV+4,4)}, v13 offset:64")
    for j in range(8):
        ext_mfma(p, j, False)
    k("s_waitcnt lgkmcnt(0)")
    for j in range(8):
        o = FB + 4 * j
        for m in range(2):
            a = acc(p, m, j)
            k(f"v_pk_mul_f32 {vr(a,2)}, {vr(a,2)}, {vr(RSV+4*m,2)}")
            k(f"v_pk_mul_f32 {vr(a+2,2)}, {vr(a+2,2)}, {vr(RSV+4*m+2,2)}")
            k(f"v_cvt_pk_bf16_f32 v{o+2*m}, v{a}, v{a+1}")
            k(f"v_cvt_pk_bf16_f32 v{o+2*m+1}, v{a+2}, v{a+3}")
        k(f"buffer_store_dwordx4 {vr(o,4)}, v{VAD+j}, s[8:11], s30 offen {SC}")
    k(f"s_sub_u32 s28, s{S_CB}, 11")
    k("s_lshl_b32 s30, s28, 7")
    k("s_mul_i32 s31, s30, 3277")
    k("s_lshr_b32 s31, s31, 16")
    k("s_add_u32 s30, s30, 127")
    k("s_mul_i32 s30, s30, 3277")
    k("s_lshr_b32 s30, s30, 16")
    k("s_and_b32 s28, s28, 1")
    k("s_lshl_b32 s28, s28, 7")
    k("s_add_u32 s28, s28, 128")
    k("s_lshl_b32 s29, s31, 12")
    k("s_add_u32 s28, s28, s29")
    k("v_lshl_add_u32 v12, v1, 9, s28")
    k("v_lshrrev_b32 v9, 3, v1")
    k("v_add_u32 v9, s31, v9")
    k(f"v_cmp_ge_u32 s[{SSIG}:{SSIG+1}], s30, v9")

    k.label("L_c_attn")
    M16 = "v_mfma_f32_32x32x16_bf16"
    M8 = "v_mfma_f32_32x32x8_bf16"
    QL = [32, 36]; QHA = [40, 42]; QHB = [44, 46]
    S = [48, 64]; O = [80, 96]; NM = [112, 128]; P = 144
    KL = [152, 156]; KH = 160; V = [164, 172]
    A3, A4, A5, A6, A7, A8 = 26, 27, 28, 29, 30, 31
    VS1, VS2, VA0 = 180, 181, 182
    SUP, SPASS, SSEG, SSTR = 48, 50, 51, 52
    def idx_attn():
        k(f"s_mul_i32 s28, s{S_HD}, 20")
        k("s_add_u32 s29, s28, 19")
        k("s_lshr_b32 s28, s28, 7")
        k("s_lshr_b32 s29, s29, 7")
        k("s_and_b32 s30, s28, s29")
        k("s_or_b32 s31, s28, s29")
        k("s_and_b32 s30, s30, 1")
        k("s_xor_b32 s30, s30, 1")
        k("s_lshl_b32 s30, s30, 4")
        k("s_and_b32 s31, s31, 1")
        k("s_lshl_b32 s31, s31, 4")
        targets([18, "s30", "s31"])
        k(f"s_lshl_b32 s28, s{S_HD}, 3")
        k(f"s_add_u32 s28, s28, s{S_QB}")
    k(f"v_mov_b32 v{A3}, v3")
    k(f"v_and_b32 v{A6}, 31, v1")
    k(f"v_lshrrev_b32 v{A7}, 5, v1")
    k("v_and_b32 v9, 7, v1")
    k(f"v_lshlrev_b32 v{A8}, 4, v9")
    k("v_bfe_u32 v9, v1, 4, 1")
    k(f"v_lshl_add_u32 v{A8}, v9, 7, v{A8}")
    k("v_and_b32 v9, 8, v1")
    k(f"v_add_u32 v{A8}, v{A8}, v9")
    k(f"v_lshl_add_u32 v{A4}, v{A7}, 8, v{A8}")
    k(f"v_cmp_gt_u32 s[30:31], 28, v{A6}")
    k("s_mov_b32 s28, 0xfff00000")
    k("s_mov_b32 s29, 0xfff00000")
    k(f"v_mul_u32_u24 v9, 192, v{A7}")
    k("v_sub_u32 v9, 192, v9")
    k("v_mov_b32 v10, 144")
    k("v_cndmask_b32 v9, v9, v10, s[30:31]")
    k("s_mov_b32 s30, 0x01100000")
    k("s_mov_b32 s31, 0x01100000")
    k("v_mov_b32 v10, 128")
    k("v_cndmask_b32 v9, v9, v10, s[30:31]")
    k(f"v_mul_u32_u24 v{VA0}, 320, v{A7}")
    k(f"v_lshl_add_u32 v{VA0}, v{A6}, 4, v{VA0}")
    k(f"v_add_u32 v{VA0}, 5120, v{VA0}")
    k(f"v_cndmask_b32 v{VA0}, v{VA0}, v9, s[28:29]")
    k("v_mov_b32 v9, 1280")
    k(f"v_cndmask_b32 v{VS1}, v9, 0, s[28:29]")
    k("v_mov_b32 v9, 6400")
    k(f"v_cndmask_b32 v{VS2}, v9, 0, s[28:29]")
    k(f"s_mov_b32 s{SUP}, 0")
    k(f"s_mov_b32 s{SUP+1}, -1")
    k(f"s_mov_b32 s{SPASS}, 0")
    k(f"s_movk_i32 s{SSTR}, 10240")
    ts(3)
    k(f"s_add_u32 s{SSO}, s{S_SEAM}, {CNT:#x}")
    def attn_dep():
        lab = k.newlabel()
        k(f"s_cmp_lg_u32 s{S_LAY}, 0")
        k(f"s_cbranch_scc1 {lab}")
        get_coords()
        res_load()
        k.label(lab)
        seam_pre(0, idx_attn)
        k(f"s_mul_i32 s28, s{S_HD}, {USTR}")
        k(f"s_add_u32 s28, s28, s{S_LAY}")
        k(f"s_add_u32 s39, s28, {QKVI + 32*USTR:#x}")
        k("s_add_u32 s38, s39, 4096")
        k(f"s_lshl_b32 s29, s{S_QB}, 1")
        k(f"s_lshr_b32 s30, s{S_W}, 1")
        k("s_add_u32 s29, s29, s30")
        k("s_mul_i32 s29, s29, 10240")
        k("s_add_u32 s28, s28, s29")
        k(f"s_add_u32 s28, s28, {QKVI:#x}")
        k(f"s_and_b32 s30, s{S_W}, 1")
        k("s_lshl_b32 s29, s30, 11")
        k("s_add_u32 s29, s29, s28")
        k("s_lshl_b32 s30, s30, 8")
        k("s_add_u32 s30, s30, s28")
        k("s_add_u32 s30, s30, 4096")
        if TLBT:
            k(f"s_add_u32 s31, s39, {UNIT}")
            k("s_add_u32 s28, s28, 8192")
            k("s_mov_b64 exec, 1")
            k("buffer_load_dword v183, off, s[8:11], s31 sc1")
            k("s_sub_u32 s31, s39, 128")
            k("buffer_load_dword v183, off, s[8:11], s31 sc1")
            k("buffer_load_dword v183, off, s[8:11], s28 sc1")
            k("s_mov_b64 exec, -1")
    def zero_o():
        for i in range(0, 32, 2):
            k(f"v_mov_b64 {vr(O[0]+i,2)}, 0")
        for i in (0, 2):
            k(f"v_mov_b64 {vr(P+4+i,2)}, 0")
            k(f"v_mov_b64 {vr(V[1]+4+i,2)}, 0")
    def k0_loads():
        k(f"buffer_load_dwordx4 {vr(KL[0],4)}, v3, s[8:11], s39 offen {LSC}")
        k(f"buffer_load_dwordx2 {vr(KH,2)}, v{A4}, s[8:11], s38 offen {LSC}")
    zero_o()
    k("s_waitcnt vmcnt(0)")
    k(f"s_xor_b32 s28, s{S_W}, 3")
    k(f"s_or_b32 s28, s28, s{S_LAY}")
    k("s_cbranch_scc1 L_c_tkdone")
    k("v_lshlrev_b32 v198, 5, v1")
    k("s_mov_b32 s29, 0x40000")
    k("s_mov_b64 exec, 0xff")
    k.label("L_c_tkl")
    k("s_mov_b32 s30, 0")
    for i in range(8):
        k(f"v_readlane_b32 s31, v199, {i}")
        k("s_add_u32 s30, s30, s31")
    k("s_cmp_ge_u32 s30, 256")
    k("s_cbranch_scc1 L_c_tkx")
    k("s_sub_u32 s29, s29, 1")
    k("s_cbranch_scc1 L_c_tkx")
    k("buffer_load_dword v199, v198, s[76:79], 0 offen sc1")
    k("s_waitcnt vmcnt(0)")
    k("s_branch L_c_tkl")
    k.label("L_c_tkx")
    k("v_cmp_ne_u32 vcc, 32, v199")
    k("v_readfirstlane_b32 s30, v2")
    k("s_lshl_b32 s31, s46, 5")
    k("s_add_u32 s30, s30, s31")
    k("s_add_u32 s30, s30, 256")
    k("s_and_b32 s28, s2, 7")
    k("s_lshl_b32 s28, s28, 5")
    k("s_lshr_b32 s29, s2, 3")
    k("s_add_u32 s28, s28, s29")
    if FORCE_SLOW:
        k("s_mov_b32 s28, s2")
        k("s_mov_b64 vcc, 1")
    k("s_cmp_eq_u64 vcc, 0")
    k("s_cselect_b32 s28, s30, s28")
    k("s_mov_b64 exec, -1")
    k("v_mov_b32 v198, s28")
    k(f"v_mov_b32 v199, {SCRATCH + 1024:#x}")
    k("ds_write_b32 v199, v198")
    k("s_waitcnt lgkmcnt(0)")
    k.label("L_c_tkdone")
    k("s_barrier")
    ts(4)
    seam_post(filler=attn_dep)
    k("s_barrier")
    ts(8)
    k0_loads()
    for q in range(2):
        k(f"buffer_load_dwordx4 {vr(QL[q],4)}, v3, s[8:11], s29 offen offset:{1024*q} {LSC}")
        k(f"buffer_load_dwordx2 {vr(QHA[q],2)}, v{A8}, s[8:11], s30 offen offset:{512*q} {LSC}")
    k("s_waitcnt vmcnt(0)")
    ts(21)
    for q in range(2):
        for i in range(2):
            k(f"v_cndmask_b32 v{QHB[q]+i}, 0, v{QHA[q]+i}, s[{SUP}:{SUP+1}]")
            k(f"v_cndmask_b32 v{QHA[q]+i}, v{QHA[q]+i}, 0, s[{SUP}:{SUP+1}]")
    def rdK(b, t):
        c, tt = divmod(t, 4)
        return f"ds_read_b128 {vr(KL[b],4)}, v{A3} offset:{c*10240 + tt*1024}"
    def rdH(pp, c):
        return f"ds_read_b64 {vr(KH+2*pp,2)}, v{A4} offset:{c*10240 + 4096 + pp*512}"
    def rdV(b):
        return [f"ds_read_b128 {vr(V[b],4)}, v{A5}", f"ds_read_b128 {vr(V[b]+4,4)}, v{A5} offset:640"]
    def smfma(sb, t, q, c):
        qh = QHA[q] if (t & 3) < 2 else QHB[q]
        return [f"{M16} {vr(S[sb],16)}, {vr(KL[t&1],4)}, {vr(QL[q],4)}, {c}",
                f"{M8} {vr(S[sb],16)}, {vr(KH+2*(t&1),2)}, {vr(qh,2)}, {vr(S[sb],16)}"]
    def rowmax_into(dst, sb, first):
        s = S[sb]
        if first:
            k(f"v_max3_f32 v{dst}, v{s}, v{s+1}, v{s+2}")
            rest = list(range(3, 16))
        else:
            rest = list(range(16))
        while len(rest) >= 2:
            k(f"v_max3_f32 v{dst}, v{dst}, v{s+rest[0]}, v{s+rest[1]}")
            rest = rest[2:]
        if rest:
            k(f"v_max_f32 v{dst}, v{dst}, v{s+rest[0]}")
    f0, f1 = smfma(0, 0, 0, "0"), smfma(1, 0, 1, "0")
    for x in (f0[0], f1[0], f0[1], f1[1]):
        k(x)
    k.nop(11)
    rowmax_into(10, 0, True)
    rowmax_into(11, 1, True)
    k.label("L_attn_start")
    k("v_mov_b32 v12, v10")
    k("v_mov_b32 v13, v11")
    k("s_nop 1")
    k("v_permlane32_swap_b32 v10, v12")
    k("v_permlane32_swap_b32 v11, v13")
    k("s_nop 1")
    k("v_max_f32 v10, v10, v12")
    k("v_max_f32 v11, v11, v13")
    k("v_sub_f32 v10, 0, v10")
    k("v_sub_f32 v12, 0, v11")
    k("v_mov_b32 v11, v10")
    k("v_mov_b32 v13, v12")
    for i in range(0, 16, 2):
        k(f"v_mov_b64 {vr(NM[0]+i,2)}, v[10:11]")
    k(f"v_mov_b32 v{A5}, v{VA0}")
    k(f"s_cmp_lg_u32 s{SPASS}, 0")
    for x in smfma(0, 0, 0, vr(NM[0], 16)):
        k(x)
    for i in range(0, 16, 2):
        k(f"v_mov_b64 {vr(NM[1]+i,2)}, v[12:13]")
    k(f"s_cselect_b32 s{SSEG}, 2, 0")
    k("s_cselect_b32 s36, 16, 1")
    k("s_cbranch_scc1 L_attn_nock0")
    ts(22)
    k("s_barrier")
    k.label("L_attn_nock0")
    ts(9)
    for x in rdV(0) + [rdK(1, 1), rdH(1, 0)]:
        k(x)
    k(f"v_add_u32 v{A5}, v{VS1}, v{A5}")
    k(f"v_exp_f32 v{S[0]}, v{S[0]}")
    k(f"v_exp_f32 v{S[0]+1}, v{S[0]+1}")
    k(".p2align 6")
    k.label("L_attn_loop")
    for t in range(4):
        for q in range(2):
            a = S[q]
            nt, nq = (t, 1) if q == 0 else (t + 1, 0)
            pt, pq = (t - 1, 1) if q == 0 else (t, 0)
            sm = smfma(nq, nt, nq, vr(NM[nq], 16))
            ex = [f"v_exp_f32 v{a+i}, v{a+i}" for i in range(16)]
            cv = [f"v_cvt_pk_bf16_f32 v{P+i}, v{a+2*i}, v{a+2*i+1}" for i in range(8)]
            nex = [f"v_exp_f32 v{S[nq]+i}, v{S[nq]+i}" for i in range(2)]
            pvb = f"{M16} {vr(O[pq],16)}, {vr(V[pt&1]+4,4)}, {vr(P+4,4)}, {vr(O[pq],16)}"
            pva = f"{M16} {vr(O[q],16)}, {vr(V[t&1],4)}, {vr(P,4)}, {vr(O[q],16)}"
            g1 = ex[2:6] + cv[0:2]
            g2 = ex[6:10] + cv[2:4]
            g3 = ex[10:14] + cv[4:6]
            g4 = ex[14:16] + cv[6:8] + nex
            if q == 0:
                g3[0:0] = ["s_waitcnt lgkmcnt(0)"] + rdV((t + 1) & 1) + [rdK(t & 1, t + 2)] + ([rdH(t & 1, 1)] if t >= 2 else [])
                g4 += [f"v_add_u32 v{A5}, v{VS2 if t == 2 else VS1}, v{A5}"]
            elif t == 3:
                g1[0:0] = ["s_sub_u32 s36, s36, 1"]
                g3[0:0] = ["s_cmp_lg_u32 s36, 0"]
                g3 += [f"v_add_u32 v{x}, s{SSTR}, v{x}" for x in (A3, A4)]
            for x in [sm[0]] + g1 + [sm[1]] + g2 + [pvb] + g3 + [pva] + g4:
                k(x)
    k("s_cbranch_scc1 L_attn_loop")
    k(f"s_cmp_lt_u32 s{SSEG}, 2")
    k("s_cbranch_scc1 L_attn_ck")
    k(f"{M16} {vr(O[1],16)}, {vr(V[1]+4,4)}, {vr(P+4,4)}, {vr(O[1],16)}")
    k("s_waitcnt lgkmcnt(0)")
    ts(10)
    k(f"s_xor_b32 s28, s{S_W}, 2")
    k(f"s_or_b32 s28, s28, s{S_LAY}")
    k("s_cbranch_scc1 L_attn_nopc")
    k("v_lshlrev_b32 v184, 9, v1")
    k(f"s_mov_b32 s28, {CNT + 384:#x}")
    k("s_mov_b32 exec_hi, 0")
    k("buffer_load_dword v185, v184, s[8:11], s28 offen sc1")
    k("s_mov_b64 exec, -1")
    k.label("L_attn_nopc")
    for x in (A3, A4):
        k(f"v_subrev_u32 v{x}, {UNIT}, v{x}")
    k(f"v_bfe_u32 v9, v{A6}, 3, 1")
    k("v_mul_u32_u24 v9, 20480, v9")
    k(f"v_and_b32 v12, 7, v{A6}")
    k(f"v_lshrrev_b32 v13, 4, v{A6}")
    k("v_lshl_add_u32 v12, v13, 3, v12")
    k("v_lshl_add_u32 v14, v12, 4, v9")
    k(f"v_lshl_add_u32 v14, v{A7}, 8, v14")
    k("v_lshl_add_u32 v9, v12, 3, v9")
    k(f"v_mul_u32_u24 v13, 40960, v{A7}")
    k("v_add_u32 v9, v9, v13")
    k(f"s_lshl_b32 s28, s{S_QB}, 2")
    k(f"s_add_u32 s28, s28, s{S_W}")
    k("s_mul_i32 s28, s28, 81920")
    k(f"s_add_u32 s28, s28, s{S_LAY}")
    k(f"s_add_u32 s28, s28, {OF:#x}")
    k(f"s_lshl_b32 s29, s{S_HD}, 9")
    k("s_add_u32 s29, s29, s28")
    k("s_add_u32 s29, s29, 2048")
    for q in range(2):
        k(f"v_cndmask_b32 v{10+q}, v{O[q]+12}, v{O[q]+8}, s[{SUP}:{SUP+1}]")
    k("v_add_f32 v12, v10, v11")
    k(f"v_cmp_ngt_f32 vcc, {f2u(2.0**30):#x}, v12")
    k("v_rcp_f32 v10, v10")
    k("v_rcp_f32 v11, v11")
    k(f"s_lshr_b32 s30, s{S_HD}, 3")
    k(f"s_and_b32 s31, s{S_HD}, 16")
    k("s_add_u32 s30, s30, s31")
    k("s_lshl_b32 s30, s30, 10")
    k(f"s_and_b32 s31, s{S_HD}, 1")
    k("s_lshl_b32 s31, s31, 9")
    k("s_add_u32 s30, s30, s31")
    k(f"s_and_b32 s31, s{S_HD}, 6")
    k("s_lshl_b32 s31, s31, 6")
    k("s_add_u32 s30, s30, s31")
    k("s_add_u32 s30, s30, s28")
    k("s_add_u32 s31, s29, 40960")
    k(f"s_cmp_lg_u32 s{SPASS}, 0")
    k("s_cbranch_scc1 L_attn_out")
    k("s_cbranch_vccnz L_attn_slow")
    k.label("L_attn_out")
    for q in range(2):
        o = S[q]
        for i in range(3):
            scale_pack(O[q] + 4 * i, o + 2 * i, 10 + q)
        k(f"buffer_store_dwordx4 {vr(o,4)}, v14, s[8:11], s{29+2*q} offen {SC}")
    k("s_nop 0")
    for i in range(2):
        k(f"v_permlane32_swap_b32 v{S[0]+4+i}, v{S[1]+4+i}")
    k(f"buffer_store_dwordx2 {vr(S[0]+4,2)}, v9, s[8:11], s30 offen {SC}")
    ts(11)
    k(f"s_lshl_b32 s28, s{S_QB}, 14")
    k(f"s_and_b32 s29, s{S_HD}, 1")
    k("s_lshl_b32 s29, s29, 7")
    k("s_add_u32 s28, s28, s29")
    k("v_lshl_add_u32 v12, v1, 9, s28")
    k(f"s_mov_b64 s[{SSIG}:{SSIG+1}], 0xffffffff")
    targets([16, 16])
    seam_pre(1, idx_small)
    c_res_to_acc()
    k("s_waitcnt vmcnt(0)")
    k(f"s_xor_b32 s28, s{S_W}, 2")
    k(f"s_or_b32 s28, s28, s{S_LAY}")
    k("s_cbranch_scc1 L_attn_pcok")
    k("v_lshlrev_b32 v184, 9, v1")
    k("v_mov_b32 v186, 31")
    k("v_mov_b32 v187, 30")
    k("v_cmp_lt_u32 vcc, 11, v1")
    k(f"s_mov_b32 s28, {CNT + 384:#x}")
    k("s_mov_b32 s29, 0x40000")
    k("v_cndmask_b32 v186, v186, v187, vcc")
    k("s_mov_b32 exec_hi, 0")
    k.label("L_attn_pchk")
    k("v_cmp_ne_u32 vcc, v186, v185")
    k("s_sub_u32 s29, s29, 1")
    k("s_cbranch_scc1 L_attn_pcx")
    k("s_cbranch_vccz L_attn_pcx")
    k("s_sleep 8")
    k("buffer_load_dword v185, v184, s[8:11], s28 offen sc1")
    k("s_waitcnt vmcnt(0)")
    k("s_branch L_attn_pchk")
    k.label("L_attn_pcx")
    k("s_mov_b64 exec, -1")
    k.label("L_attn_pcok")
    k("s_barrier")
    ts(12)
    seam_post(filler=lambda: c_ext_loads(PH["gu"]))

    k("s_barrier")
    ts(16)
    if POLL2:
        k("s_waitcnt vmcnt(0)")
    c_small_pre(XB, STB, 0)
    eb = ["s_waitcnt vmcnt(0)"]
    c_ext_build(PH["gu"], eb.append)
    c_mainloop(PH["wo"], True, 16, eb)
    k.nop(5)
    c_small_epilogue()
    ts(19)
    lseam_pre(1, g_rs2, g_sm, g_rb)
    k("s_waitcnt vmcnt(0)")
    k("s_barrier")
    ts(20)
    lseam_post(16)

    p = PH["gu"]
    FB, XBUF, WBUF, top_gu = c_layout(p)
    k("s_barrier")
    ts(24)
    if POLL2:
        k("s_waitcnt vmcnt(0)")
    c_stats_loads(STB)
    k(f"s_lshl_b32 s28, s{S_RB}, 2")
    k(f"s_add_u32 s28, s28, s{S_W}")
    k(f"s_mul_i32 s28, s28, {2*55296}")
    k(f"s_add_u32 s28, s28, {HF:#x}")
    k(f"s_mul_i32 s29, s{S_CB}, 3072")
    k("s_add_u32 s30, s28, s29")
    k("s_add_u32 s31, s30, 55296")
    k(f"s_lshl_b32 s29, s{S_CB}, 9")
    k("s_add_u32 s29, s28, s29")
    k(f"s_add_u32 s29, s29, {46*1024}")
    k("v_and_b32 v9, 1, v8")
    k("v_mul_u32_u24 v9, 55296, v9")
    k("v_lshrrev_b32 v12, 1, v8")
    k("v_lshl_add_u32 v9, v12, 8, v9")
    k("v_lshl_add_u32 v9, v7, 4, v9")
    if TOUCH & 8:
        k("buffer_load_dwordx4 v[244:247], v9, s[8:11], s29 offen sc1")
        for j in range(3):
            for m in range(2):
                k(f"buffer_load_dwordx4 v[244:247], v3, s[8:11], s{30+m} offen offset:{1024*j} sc1")
    c_mainloop(p, True, 24, c_stats_valu() + ["s_nop 0", "v_mul_f32 v10, v10, v10", "v_mul_f32 v11, v11, v11"])
    def glu(m, b, o):
        g_, u_ = acc(p, m, 2 * b), acc(p, m, 2 * b + 1)
        for i in range(4):
            k(f"v_max_f32 v{g_+i}, 0, v{g_+i}")
        for i in (0, 2):
            k(f"v_pk_mul_f32 {vr(g_+i,2)}, {vr(g_+i,2)}, {vr(u_+i,2)}")
        scale_pack(g_, o, 10 + m)
    for j in (0, 1, 2, 3, 12, 13):
        ext_mfma(p, j, True)
    later = [4, 5, 6, 7, 8, 9, 10, 11]
    for j in range(3):
        for m in range(2):
            o = FB + 4 + 8 * j + 4 * m
            for h in range(2):
                glu(m, 2 * j + h, o + 2 * h)
                for _ in range(2):
                    if later:
                        ext_mfma(p, later.pop(0), True)
            k(f"buffer_store_dwordx4 {vr(o,4)}, v3, s[8:11], s{30+m} offen offset:{1024*j} {HSC}")
        if j == 0:
            for m in range(2):
                glu(m, 6, FB + 2 * m)
            k("s_nop 1")
            k(f"v_permlane16_swap_b32 v{FB}, v{FB+2}")
            k(f"v_permlane16_swap_b32 v{FB+1}, v{FB+3}")
            k(f"buffer_store_dwordx4 {vr(FB,4)}, v9, s[8:11], s29 offen {HSC}")
            k(f"s_cmp_eq_u32 s{S_CB}, 15")
            k("s_cbranch_scc1 L_c_gu_skip")
    k.label("L_c_gu_skip")
    ts(27)
    c_res_to_acc()
    lseam_pre(2, g_rb, g_cb, g_rs2)
    k("s_waitcnt vmcnt(0)")
    k("s_barrier")
    ts(28)
    lseam_post(16)

    k("s_barrier")
    ts(32)
    if POLL2:
        k("s_waitcnt vmcnt(0)")
    def down_b0():
        lab = k.newlabel()
        k(f"s_cmp_lg_u32 s{S_LAY}, 0")
        k(f"s_cbranch_scc1 {lab}")
        c_ext_loads(PH["qkv"])
        c_small_pre(XA, STA, LSTR)
        k.label(lab)
    c_mainloop(PH["down"], True, 32, (), down_b0)
    k(f"s_cmp_lg_u32 s{S_LAY}, 0")
    k("s_cbranch_scc1 L_c_final")
    k.nop(3)
    c_small_epilogue()
    ts(35)
    k("s_waitcnt vmcnt(4)")
    c_ext_build(PH["qkv"])
    lseam_pre(3, g_rs2, g_sm, g_rb)
    k("s_waitcnt vmcnt(0)")
    k("s_barrier")
    ts(36)
    lseam_post(16)
    k(f"s_mov_b32 s{S_LAY}, {LSTR:#x}")
    k(f"s_mov_b32 s{S_SEAM}, 20")
    k(f"s_add_u32 s{S_TS}, s{S_TS}, 320")
    k("s_branch L_c_layer")

    k.label("L_c_final")
    k("v_mul_u32_u24 v9, 1280, v7")
    k("v_and_b32 v10, 1, v8")
    k("v_lshl_add_u32 v9, v10, 5, v9")
    k("v_lshrrev_b32 v10, 1, v8")
    k("v_lshl_add_u32 v9, v10, 4, v9")
    k(f"s_lshl_b32 s28, s{S_RS}, 2")
    k(f"s_add_u32 s28, s28, s{S_W}")
    k(f"s_mul_i32 s28, s28, {16*1280}")
    k(f"s_mul_i32 s29, s{S_CS}, 160")
    k("s_add_u32 s28, s28, s29")
    for i in range(10):
        k(f"v_cvt_pk_bf16_f32 v{56+i}, v{ACC+2*i}, v{ACC+2*i+1}")
    k("v_mov_b32 v66, v64")
    k("v_mov_b32 v67, v65")
    for j in range(3):
        for i in range(2):
            k(f"v_permlane16_swap_b32 v{56+4*j+i}, v{58+4*j+i}")
        if j == 2:
            k("s_mov_b32 exec_lo, 0xffff")
            k("s_mov_b32 exec_hi, 0xffff")
        k(f"buffer_store_dwordx4 {vr(56+4*j,4)}, v9, s[24:27], s28 offen offset:{64*j}")
    if INSTR:
        ts(35)
        k("s_waitcnt vmcnt(0)")
        ts(36)
    k.label(L_end)
    k("s_endpgm")

    k.label("L_attn_ck")
    k(f"s_cmp_eq_u32 s{SSEG}, 0")
    k("s_cselect_b32 s36, 3, 12")
    k(f"s_add_u32 s{SSEG}, s{SSEG}, 1")
    k("s_barrier")
    k("s_branch L_attn_loop")

    k.label("L_l_attn")
    k("s_barrier")
    k(f"s_cmp_lg_u32 s{S_LAY}, 0")
    k("s_cbranch_scc1 L_l_havec")
    get_coords()
    k.label("L_l_havec")
    k(f"s_mul_i32 s28, s{S_HD}, {USTR}")
    k(f"s_add_u32 s28, s28, s{S_LAY}")
    k(f"s_lshl_b32 s29, s{S_W}, 10")
    k("s_mov_b32 m0, s29")
    k("s_add_u32 s31, s28, s29")
    k(f"s_add_u32 s31, s31, {QKVI + 32*USTR:#x}")
    k("s_mov_b32 s28, 0x100")
    k("s_mov_b32 s29, 0x10000")
    k("v_mov_b32 v8, 0x3f803f80")
    k("v_cndmask_b32 v8, 0, v8, s[28:29]")
    for i in range(1, 4):
        k(f"v_mov_b32 v{8+i}, v8")
    k("ds_write_b128 v3, v[8:11]")
    k("s_waitcnt lgkmcnt(0)")
    k(f"s_cmp_eq_u32 s{S_W}, 0")
    k(f"s_mov_b32 s36, {5 if KV5 else 8}")
    k("s_barrier")
    k("s_cbranch_scc1 L_l_skip0")
    def pieces(n, first=False):
        lab = k.newlabel()
        if not first:
            k(f"s_mov_b32 s36, {n}")
        k.label(lab)
        k(f"buffer_load_dwordx4 v3, s[8:11], s31 offen {LSC} lds")
        if first:
            k.label("L_l_skip0")
        k("s_add_u32 m0, m0, 4096")
        k("s_add_u32 s31, s31, 4096")
        k("s_sub_u32 s36, s36, 1")
        k("s_cmp_lg_u32 s36, 0")
        k(f"s_cbranch_scc1 {lab}")
    if KV5:
        pieces(5, True)
        k("s_waitcnt vmcnt(3)")
        pieces(6)
        k("s_waitcnt vmcnt(6)")
    else:
        pieces(8, True)
        k("s_waitcnt vmcnt(3)")
    ts(23, 1)
    k("s_barrier")
    k("s_setprio 3")
    pieces(11 if KV5 else 14)
    k("s_waitcnt vmcnt(9)")
    k("s_barrier")
    pieces(18)
    sb, vb = 56, 64
    k(f"s_lshl_b32 s28, s{S_W}, 8")
    k("s_add_u32 s28, s28, s2")
    k(f"s_cmp_lg_u32 s{S_LAY}, 0")
    k("s_cselect_b32 s28, 1000, s28")
    k("s_cmp_ge_u32 s28, 972")
    k("s_cbranch_scc1 L_attn_noprep")
    k(f"s_mov_b32 s{sb+27}, 0x00020000")
    k("s_and_b32 s37, s28, 31")
    k("s_cmp_lt_u32 s28, 732")
    k("s_cbranch_scc1 L_prep_notq")
    k("s_sub_u32 s28, s28, 732")
    k(f"s_and_b32 s{sb}, s28, 7")
    k("s_lshr_b32 s28, s28, 3")
    k("s_lshl_b32 s28, s28, 6")
    k("v_add_u32 v5, s28, v1")
    k(f"v_lshlrev_b32 v{vb}, 1, v5")
    k(f"s_mov_b32 s{sb+24}, s32")
    k(f"s_mov_b32 s{sb+25}, s33")
    k(f"s_mov_b32 s{sb+26}, {640*3840}")
    k(f"s_movk_i32 s{sb+20}, 3840")
    k("v_mul_u32_u24 v6, 3277, v5")
    k("v_lshrrev_b32 v6, 16, v6")
    k("v_mul_u32_u24 v7, 20, v6")
    k("v_sub_u32 v7, v5, v7")
    k("v_mul_u32_u24 v8, 43, v6")
    k("v_lshrrev_b32 v8, 8, v8")
    k("v_mul_u32_u24 v9, 6, v8")
    k("v_sub_u32 v9, v6, v9")
    k("v_and_b32 v10, 6, v9")
    k("v_bfe_u32 v11, v7, 2, 1")
    k("v_add_u32 v10, v10, v11")
    k("v_and_b32 v11, 1, v9")
    k("v_lshlrev_b32 v12, 3, v11")
    k("v_bfe_u32 v11, v7, 3, 1")
    k("v_lshl_add_u32 v12, v11, 2, v12")
    k("v_lshrrev_b32 v14, 2, v9")
    k("v_add_u32 v14, 6, v14")
    k("v_and_b32 v17, 3, v9")
    k("v_lshlrev_b32 v17, 2, v17")
    k("v_cmp_le_u32 s[30:31], 16, v7")
    k("s_nop 1")
    k("v_cndmask_b32 v10, v10, v14, s[30:31]")
    k("v_cndmask_b32 v12, v12, v17, s[30:31]")
    k("v_and_b32 v13, 3, v7")
    k("v_add_u32 v12, v12, v13")
    k("v_lshl_add_u32 v10, v8, 3, v10")
    k("v_lshrrev_b32 v14, 4, v5")
    k("v_add_u32 v14, 8, v14")
    k("v_and_b32 v17, 15, v5")
    k("s_movk_i32 s30, 1280")
    k("v_cmp_le_u32 s[30:31], s30, v5")
    k("s_nop 1")
    k("v_cndmask_b32 v10, v10, v14, s[30:31]")
    k("v_cndmask_b32 v12, v12, v17, s[30:31]")
    k("v_mov_b32 v9, v12")
    k("s_movk_i32 s31, 21504")
    k(f"s_mov_b32 s35, {WQKV_F:#x}")
    k("s_movk_i32 s38, 80")
    k("s_mov_b32 s39, 1")
    k("s_branch L_prep_go")
    k.label("L_prep_notq")
    k("s_cmp_ge_u32 s28, 432")
    k("s_cbranch_scc1 L_prep_small")
    k(f"s_and_b32 s{sb}, s28, 7")
    k("s_lshr_b32 s31, s28, 3")
    k("s_cmp_ge_u32 s31, 27")
    k(f"s_cselect_b32 s{sb+24}, s90, s88")
    k(f"s_cselect_b32 s{sb+25}, s91, s89")
    k("s_cselect_b32 s29, 21504, 0")
    k("s_cselect_b32 s30, 27, 0")
    k("s_sub_u32 s30, s31, s30")
    k(f"s_mov_b32 s{sb+26}, {640*3456}")
    k(f"s_movk_i32 s{sb+20}, 3456")
    k("s_lshl_b32 s30, s30, 6")
    k("v_add_u32 v9, s30, v1")
    k(f"v_lshlrev_b32 v{vb}, 1, v9")
    k("v_lshrrev_b32 v10, 4, v9")
    k("v_mov_b32 v11, 111")
    k("v_cmp_eq_u32 vcc, 107, v10")
    k(f"s_add_u32 s35, s29, {WGU_F:#x}")
    k("s_mov_b32 s31, 43008")
    k("v_cndmask_b32 v10, v10, v11, vcc")
    k("s_movk_i32 s38, 80")
    k("s_mov_b32 s39, 1")
    k("s_branch L_prep_go")
    k.label("L_prep_small")
    k(f"s_movk_i32 s{sb+20}, 1280")
    k("s_mov_b32 s39, 0")
    k(f"s_mov_b32 s29, {640*1280}")
    k("s_movk_i32 s30, 432")
    k("s_movk_i32 s38, 80")
    k("s_movk_i32 s31, 20480")
    k(f"s_mov_b32 s35, {WO_F:#x}")
    k("s_cmp_ge_u32 s28, 512")
    k(f"s_cselect_b32 s{sb+24}, s92, s86")
    k(f"s_cselect_b32 s{sb+25}, s93, s87")
    k(f"s_cselect_b32 s{sb+26}, {1728*1280}, s29")
    k("s_cselect_b32 s29, 512, s30")
    k("s_cselect_b32 s38, 216, s38")
    k("s_cselect_b32 s31, 55296, s31")
    k(f"s_cselect_b32 s35, {WD_F:#x}, s35")
    k("s_sub_u32 s28, s28, s29")
    k(f"s_mul_i32 s{sb}, s28, 205")
    k(f"s_lshr_b32 s{sb}, s{sb}, 11")
    k(f"s_mul_i32 s29, s{sb}, 10")
    k("s_sub_u32 s28, s28, s29")
    k("s_lshl_b32 s28, s28, 6")
    k("v_add_u32 v9, s28, v1")
    k(f"v_lshlrev_b32 v{vb}, 1, v9")
    k("v_lshrrev_b32 v10, 4, v9")
    k.label("L_prep_go")
    k("v_mul_u32_u24 v10, s31, v10")
    k("v_add_u32 v10, s35, v10")
    k("v_and_b32 v9, 15, v9")
    k(f"v_lshl_add_u32 v{vb+1}, v9, 4, v10")
    k(f"v_lshl_add_u32 v{vb+2}, v9, 3, v10")
    k(f"s_mul_i32 s{sb+1}, s{sb}, 10")
    k(f"s_mov_b32 s{sb+23}, s{sb+1}")
    k("s_mov_b32 s35, 0")
    k.label("L_prep_rows")
    k("s_cmp_lg_u32 s39, 0")
    k("s_cbranch_scc1 L_prep_rx")
    k("s_cmp_eq_u32 s38, 80")
    k("s_cbranch_scc1 L_prep_rwo")
    prep_rows(k, "wd", sb)
    k("s_branch L_prep_ld")
    k.label("L_prep_rwo")
    prep_rows(k, "wo", sb)
    k("s_branch L_prep_ld")
    k.label("L_prep_rx")
    prep_rows(k, "x", sb)
    k.label("L_prep_ld")
    k("s_cmp_lg_u32 s35, 0")
    k("s_cbranch_scc1 L_prep_ld2")
    prep_loads(k, sb, vb, vb + 16)
    k("s_mov_b32 s35, 1")
    k(f"s_add_u32 s{sb+23}, s{sb+23}, 5")
    k("s_branch L_prep_rows")
    k.label("L_prep_ld2")
    k("s_waitcnt vmcnt(40)")
    prep_loads(k, sb, vb, vb + 56)
    k("s_barrier")
    k("s_waitcnt vmcnt(0)")
    ts(5, 1)
    prep_finish(k, sb, vb, 10, SC, "s38", "s39")
    k("s_lshl_b32 s37, s37, 9")
    k(f"s_add_u32 s37, s37, {CNT + 384:#x}")
    ts(6, 1)
    k("s_waitcnt vmcnt(0)")
    k("s_mov_b64 exec, 1")
    k("buffer_atomic_add v15, off, s[8:11], s37 sc1")
    k("s_mov_b64 exec, -1")
    k("s_branch L_attn_Bgo")
    k.label("L_attn_noprep")
    k("s_waitcnt vmcnt(0)")
    k("s_barrier")
    k.label("L_attn_Bgo")
    ts(13, 1)
    ts(15, 1, 1)
    ts(7, 1, 2)
    k(f"s_cmp_lg_u32 s{S_LAY}, 0")
    k("s_cbranch_scc1 L_attn_prepok")
    if TOUCH & 1:
        l_touch_h()
    k.label("L_attn_prepok")
    if PFW:
        k(f"s_cmp_lg_u32 s{S_W}, 3")
        k("s_cbranch_scc1 L_attn_nopf")
        if PFW == 1:
            k(f"s_cmp_eq_u32 s{S_LAY}, 0")
            k("s_cbranch_scc1 L_attn_nopf")
        k(f"s_lshl_b32 s28, s{S_CS}, 2")
        k(f"s_and_b32 s29, s{S_RS}, 3")
        k("s_add_u32 s28, s28, s29")
        k("s_mul_i32 s29, s28, 25600")
        k(f"s_add_u32 s29, s29, {WO_F:#x}")
        k("s_mov_b32 s36, 25")
        k.label("L_pf_wo")
        k("buffer_load_dwordx4 v[20:23], v3, s[8:11], s29 offen")
        k("s_add_u32 s29, s29, 1024")
        k("s_sub_u32 s36, s36, 1")
        k("s_cmp_lg_u32 s36, 0")
        k("s_cbranch_scc1 L_pf_wo")
        k("s_min_u32 s28, s28, 29")
        k(f"s_mul_i32 s29, s28, {7*21504}")
        k(f"s_add_u32 s29, s29, {WGU_F:#x}")
        k("s_mov_b32 s36, 7")
        k.label("L_pf_gu")
        for st in eval(os.environ.get("PFST", "[0, 1, 2]")):
            k(f"s_add_u32 s30, s29, {st*2048}")
            k("buffer_load_dwordx4 v[20:23], v3, s[8:11], s30 offen")
            k("buffer_load_dwordx4 v[20:23], v3, s[8:11], s30 offen offset:1024")
        k("s_add_u32 s29, s29, 21504")
        k("s_sub_u32 s36, s36, 1")
        k("s_cmp_lg_u32 s36, 0")
        k("s_cbranch_scc1 L_pf_gu")
        k.label("L_attn_nopf")
    if TOUCH & 16:
        l_touch_x()
    ts(14, 1, 3)
    l_setup_w(PH["wo"])
    l_setup_x(PH["wo"])
    k(f"s_setprio {LPRIO}")
    k("s_barrier")
    k("s_branch L_l_after_attn")

    k.label("L_attn_slow")
    k(f"s_mov_b32 s{SPASS}, 1")
    k("v_mov_b32 v10, 0xff800000")
    k("v_mov_b32 v11, 0xff800000")
    k("s_mov_b32 s36, 0")
    k0_loads()
    k(rdH(1, 0))
    k("s_waitcnt vmcnt(0)")
    k("s_branch L_attn_slow_in")
    k.label("L_attn_slow_loop")
    k(rdH(0, 0))
    k(rdH(1, 0))
    for t in range(4):
        k(rdK(t & 1, t))
        if t == 0:
            k.label("L_attn_slow_in")
        k("s_waitcnt lgkmcnt(0)")
        for q in range(2):
            for x in smfma(q, t, q, "0"):
                k(x)
        k.nop(16)
        rowmax_into(10, 0, False)
        rowmax_into(11, 1, False)
    k(f"v_add_u32 v{A3}, s{SSTR}, v{A3}")
    k(f"v_add_u32 v{A4}, s{SSTR}, v{A4}")
    k("s_add_u32 s36, s36, 1")
    k("s_cmp_lg_u32 s36, 16")
    k("s_cbranch_scc1 L_attn_slow_loop")
    k(f"v_subrev_u32 v{A3}, {UNIT}, v{A3}")
    k(f"v_subrev_u32 v{A4}, {UNIT}, v{A4}")
    k0_loads()
    zero_o()
    k("s_waitcnt vmcnt(0)")
    k("s_branch L_attn_start")
    k.label("L_raw_qk")
    c_raw(True, c_stats_valu(False) + QKT, "L_join_qk")
    k.label("L_raw_v")
    c_raw(False, c_stats_valu(False) + VT, "L_join_v")
    k.label("L_mega_last")
    k("s_endpgm")
    return k.text(256, 102)


def main(out):
    hdr = open("cdna_kernels/" + NAME + ".s.ref").read().split("\n")
    hdr = [l for l in hdr if l.startswith(";") and "@launch" not in l and "Override launch" not in l and "grid=ceil" not in l]
    mega = gen_mega()
    L = [f"; @launch kernel=mega_kernel grid=(256,1,1) block=(512,1,1) lds={UNIT}"]
    txt = "\n".join(hdr + L) + "\n" + '.amdgcn_target "amdgcn-amd-amdhsa--gfx950"\n'
    txt += mega
    if os.environ.get("PLAIN", "0") == "1":
        txt = txt.replace("; @launch kernel=mega_kernel grid", "; @launch grid").replace("mega_kernel", NAME + "_kernel")
    open(out, "w").write(txt)


if __name__ == "__main__":
    main(sys.argv[1] if len(sys.argv) > 1 else "cdna_kernels/" + NAME + ".s")
```
